```python
import torch

def _softmax(x, axis=-1):
    return torch.softmax(x, dim=axis)
def _gelu(x):
    return torch.nn.functional.gelu(x, approximate="tanh")
def _silu(x):
    return torch.nn.functional.silu(x)
def _sigmoid(x):
    return torch.sigmoid(x)
def _layernorm(x, axis=-1, eps=1e-5):
    m = x.mean(dim=axis, keepdim=True)
    v = x.var(dim=axis, keepdim=True, unbiased=False)
    return (x - m) / torch.sqrt(v + eps)
def _scatter_add(tgt, idx, src, axis=0):
    return tgt.clone().index_add_(axis, idx, src)
def _segment_sum(src, seg, n):
    out = torch.zeros((n,) + src.shape[1:], dtype=src.dtype)
    return out.index_add_(0, seg, src)
def _pad(x, pw):
    flat = tuple(v for pair in reversed(pw) for v in pair)
    return torch.nn.functional.pad(x, flat)

kernel_name = 'gated_mix__sliding_block__softmax_full_mha__prompt'

def setup_inputs():

    _w = (lambda a: (lambda t: t.to(torch.bfloat16) if t.is_floating_point() else t)(torch.as_tensor(a)))
    def _A_setup():
        B, S, D = 1, 2048, 448
        return {
            "x": _w((lambda *s: torch.randn(*s, dtype=torch.bfloat16) * 0.05)(B, S, D)),
            "wqkv": _w((lambda *s: torch.randn(*s, dtype=torch.bfloat16) * 1.6)(D, 3 * D)),
            "wo": _w((lambda *s: torch.randn(*s, dtype=torch.bfloat16) * 0.05)(D, D)),
        }
    _A_in = _A_setup()

    def _B_setup():
        B, S, D = 1, 2048, 448
        return {
            "x": _w((lambda *s: torch.randn(*s, dtype=torch.bfloat16) * 0.05)(B, S, D)),
            "wqkv": _w((lambda *s: torch.randn(*s, dtype=torch.bfloat16) * 1.6)(D, 3 * D)),
            "wo": _w((lambda *s: torch.randn(*s, dtype=torch.bfloat16) * 0.1)(D, D)),
        }
    _B_in = _B_setup()

    return {
        "A_x": _A_in["x"],
        "A_wqkv": _A_in["wqkv"],
        "A_wo": _A_in["wo"],
        "B_x": _B_in["x"],
        "B_wqkv": _B_in["wqkv"],
        "B_wo": _B_in["wo"],
        "gate_w": _w((lambda *s: torch.randn(*s, dtype=torch.bfloat16) * 0.05)(448) * 16.0),
    }

def reference(A_x, A_wqkv, A_wo, B_x, B_wqkv, B_wo, gate_w):
    def _A_ref(x, wqkv, wo):
        B, S, D = x.shape
        H = 16; Dh = D // H; W = 256
        qkv = (lambda x, *d: x.permute(*d))((x @ wqkv).reshape(B, S, 3, H, Dh), 2, 0, 3, 1, 4)
        q, k, v = qkv[0], qkv[1], qkv[2]
        scores = torch.einsum("bhqd,bhkd->bhqk", q, k) * (Dh ** -0.5)
        idx = torch.arange(S)
        mask = (idx[:, None] - idx[None, :] >= 0) & (idx[:, None] - idx[None, :] < W)
        scores = torch.where(mask[None, None], scores, -1e9)
        p = _softmax(scores, axis=-1)
        o = torch.einsum("bhqk,bhkd->bhqd", p, v)
        return (lambda x, *d: x.permute(*d))(o, 0, 2, 1, 3).reshape(B, S, D) @ wo

    def _B_ref(x, wqkv, wo):
        B, S, D = x.shape
        H = 16; Dh = D // H
        qkv = (lambda x, *d: x.permute(*d))((x @ wqkv).reshape(B, S, 3, H, Dh), 2, 0, 3, 1, 4)
        q, k, v = qkv[0], qkv[1], qkv[2]
        scale = Dh ** -0.5
        scores = torch.einsum("bhqd,bhkd->bhqk", q, k) * scale
        p = _softmax(scores, axis=-1)
        o = torch.einsum("bhqk,bhkd->bhqd", p, v)
        return (lambda x, *d: x.permute(*d))(o, 0, 2, 1, 3).reshape(B, S, D) @ wo

    x = A_x
    g = _sigmoid((x * gate_w).sum(-1, keepdims=True))
    a = _A_ref(x, A_wqkv, A_wo)
    b = _B_ref(x, B_wqkv, B_wo)
    return g * a + (1 - g) * b
```

```python
class Asm:
    def __init__(self):
        self.l = []
    def __call__(self, s):
        for x in s.split("\n"):
            x = x.strip()
            if x:
                self.l.append("  " + x)
    def label(self, n):
        self.l.append(n + ":")
    def raw(self, s):
        self.l.append(s)
    def c(self, s):
        self.l.append("  ; " + s)
    def text(self):
        return "\n".join(self.l) + "\n"

def vr(b, n=1):
    return f"v{b}" if n == 1 else f"v[{b}:{b+n-1}]"
def sr(b, n=1):
    return f"s{b}" if n == 1 else f"s[{b}:{b+n-1}]"

class Ctr:
    def __init__(self, a, name, maxv):
        self.a, self.name, self.maxv = a, name, maxv
        self.q = []
    def issue(self, tag):
        self.q.append(tag)
    def wait(self, tags, emit=True):
        if not isinstance(tags, (list, tuple, set)):
            tags = [tags]
        idx = [i for i, t in enumerate(self.q) if t in tags]
        if not idx:
            return None
        last = idx[-1]
        n = len(self.q) - 1 - last
        assert n <= self.maxv, (self.name, n)
        self.q = self.q[last+1:]
        if emit:
            self.a(f"s_waitcnt {self.name}({n})")
        return n
    def wait_all(self):
        self.q = []
        self.a(f"s_waitcnt {self.name}(0)")
    def clone(self, a):
        c = Ctr(a, self.name, self.maxv); c.q = list(self.q); return c

def srd(a, d, base, size, add=None):
    if add is None:
        a(f"s_mov_b32 s{d}, s{base}")
        a(f"s_mov_b32 s{d+1}, s{base+1}")
    else:
        a(f"s_add_u32 s{d}, s{base}, {add}")
        a(f"s_addc_u32 s{d+1}, s{base+1}, 0")
    a(f"s_mov_b32 s{d+2}, {size}")
    a(f"s_mov_b32 s{d+3}, 0x00020000")

def kernel_begin(a, name):
    a.raw(f".globl {name}")
    a.raw(".p2align 8")
    a.raw(f".type {name},@function")
    a.label(name)

def descriptor(name, vgpr, sgpr=102):
    acc = (vgpr + 3) // 4 * 4
    return f""".amdhsa_kernel {name}
  .amdhsa_next_free_vgpr {vgpr}
  .amdhsa_next_free_sgpr {sgpr}
  .amdhsa_accum_offset {acc}
  .amdhsa_group_segment_fixed_size 0
  .amdhsa_kernarg_size 80
  .amdhsa_user_sgpr_count 2
  .amdhsa_user_sgpr_kernarg_segment_ptr 1
  .amdhsa_system_sgpr_workgroup_id_x 1
.end_amdhsa_kernel
"""
```

```python
import sys, struct, math
from asmlib import *

NAME = "gated_mix__sliding_block__softmax_full_mha__prompt"
QF_OFF = 0
KV_OFF = 4 << 20
OF_OFF = 12 << 20
G_OFF = 16 << 20
WS_SIZE = G_OFF + 16384
X_BYTES = 2048 * 896
W_BYTES = 448 * 2688
WO_BYTES = 448 * 896
def f32bits(x): return struct.unpack("<I", struct.pack("<f", x))[0]
QSCALE = f32bits(math.log2(math.e) / math.sqrt(28.0))
LOG2E = f32bits(math.log2(math.e))

P_SLOT = 37888
P_LDS = 4 * P_SLOT + 64

def proj_kernel(a):
    kernel_begin(a, "proj_kernel")
    SX, SW, SG, SWS = 16, 20, 24, 28
    sTB, sGRP, sWV, sG7, sMAT = 32, 33, 34, 35, 36
    a("s_cmp_ge_u32 s2, 256")
    a("s_cbranch_scc1 P_end")
    a("s_load_dwordx4 s[4:7], s[0:1], 0")
    a("s_load_dwordx2 s[8:9], s[0:1], 32")
    a("s_load_dwordx2 s[10:11], s[0:1], 48")
    a("s_load_dwordx2 s[12:13], s[0:1], 72")
    a("v_lshrrev_b32 v1, 6, v0")
    a("v_and_b32 v0, 63, v0")
    a(f"v_readfirstlane_b32 s{sWV}, v1")
    a("s_and_b32 s40, s2, 1\ns_lshl_b32 s40, s40, 3\ns_lshr_b32 s41, s2, 3\ns_and_b32 s42, s41, 7")
    a(f"s_add_u32 s{sTB}, s40, s42")
    a("s_and_b32 s40, s2, 6\ns_lshl_b32 s40, s40, 1\ns_lshr_b32 s41, s41, 3")
    a(f"s_add_u32 s{sGRP}, s40, s41")
    a(f"s_and_b32 s{sG7}, s{sGRP}, 7")
    a(f"s_lshr_b32 s{sMAT}, s{sGRP}, 3")
    a(f"s_cmp_lt_u32 s{sWV}, 4")
    a("s_cbranch_scc1 P_compute")
    sLW, sLX, sLWd, sOX, sOW = 37, 38, 39, 44, 45
    a(f"s_sub_u32 s{sLW}, s{sWV}, 4")
    XA, WA = 8, 12
    a("v_lshrrev_b32 v1, 3, v0")
    a(f"s_lshl_b32 s40, s{sTB}, 7\ns_lshl_b32 s41, s{sLW}, 5\ns_add_u32 s40, s40, s41")
    a("v_add_u32 v2, s40, v1")
    a("v_mul_u32_u24 v2, 896, v2")
    a("v_lshrrev_b32 v3, 4, v0")
    a("v_and_b32 v4, 7, v0")
    a("v_xor_b32 v3, v3, v4")
    a("v_lshlrev_b32 v3, 4, v3")
    a("v_xor_b32 v4, 64, v3")
    a(f"v_add_u32 v{XA}, v2, v3")
    a(f"v_add_u32 v{XA+1}, v2, v4")
    a(f"v_add_u32 v{XA+1}, 7168, v{XA+1}")
    a(f"v_add_u32 v{XA+2}, 14336, v{XA}")
    a(f"v_add_u32 v{XA+3}, 14336, v{XA+1}")
    a(f"s_mul_i32 s42, s{sG7}, 336")
    a(f"s_lshl_b32 s41, s{sLW}, 6")
    for n in range(6):
        a(f"s_add_u32 s40, s41, {256*n}")
        a("v_add_u32 v1, s40, v0")
        a("v_mul_u32_u24 v2, 3121, v1")
        a("v_lshrrev_b32 v2, 16, v2")
        a("v_mul_u32_u24 v3, 21, v2")
        a("v_sub_u32 v3, v1, v3")
        a("v_and_b32 v4, 3, v2")
        a("v_lshlrev_b32 v4, 2, v4")
        a("v_bfe_u32 v5, v2, 2, 2")
        a("v_and_b32 v2, 48, v2")
        a("v_or3_b32 v2, v2, v4, v5")
        a("v_mul_u32_u24 v2, 2688, v2")
        a("v_lshl_add_u32 v2, v3, 4, v2")
        a(f"v_add_u32 v{WA+n}, s42, v2")
    a(f"s_lshl_b32 s{sLX}, s{sLW}, 12")
    a(f"s_lshl_b32 s{sLWd}, s{sLW}, 10")
    a("s_waitcnt lgkmcnt(0)")
    srd(a, SX, 4, X_BYTES)
    a(f"s_cmp_eq_u32 s{sMAT}, 0")
    a(f"s_cselect_b32 s{SW}, s6, s8")
    a(f"s_cselect_b32 s{SW+1}, s7, s9")
    a(f"s_mov_b32 s{SW+2}, {W_BYTES}")
    a(f"s_mov_b32 s{SW+3}, 0x00020000")
    srd(a, SG, 10, 896)
    srd(a, SWS, 12, WS_SIZE)
    a(f"s_cmp_eq_u32 s{sLW}, 0")
    a("s_cbranch_scc1 P_load0")
    def loader(nw, lab):
        vm = Ctr(a, "vmcnt", 63)
        def issue(c):
            slot = (c % 4) * P_SLOT
            a(f"s_mov_b32 s{sOX}, {c*128}")
            a(f"s_mov_b32 s{sOW}, {c*64*2688}")
            for n in range(6):
                if n < 4:
                    a(f"s_add_u32 m0, s{sLX}, {slot + n*1024}")
                    a("s_nop 0")
                    a(f"buffer_load_dwordx4 v{XA+n}, {sr(SX,4)}, s{sOX} offen lds")
                    vm.issue(c)
                if n < nw:
                    a(f"s_add_u32 m0, s{sLWd}, {slot + 16384 + n*4096}")
                    a("s_nop 0")
                    a(f"buffer_load_dwordx4 v{WA+n}, {sr(SW,4)}, s{sOW} offen lds")
                    vm.issue(c)
        for c in range(4):
            issue(c)
        a(f"s_lshl_b32 s40, s{sTB}, 7\ns_lshl_b32 s41, s{sGRP}, 3\ns_add_u32 s40, s40, s41")
        a(f"s_lshl_b32 s41, s{sLW}, 1\ns_add_u32 s40, s40, s41")
        a("v_lshrrev_b32 v1, 5, v0")
        a("v_add_u32 v20, s40, v1")
        a("v_and_b32 v2, 31, v0")
        a("v_lshlrev_b32 v21, 5, v2")
        a("v_mul_u32_u24 v22, 896, v20")
        a("v_add_u32 v22, v22, v21")
        for c in range(7):
            vm.wait(c)
            a("s_barrier")
            if 1 <= c <= 3:
                issue(c + 3)
            if c == 3:
                a(f"buffer_load_dwordx4 v[24:27], v22, {sr(SX,4)}, 0 offen"); vm.issue("g")
                a(f"buffer_load_dwordx4 v[28:31], v22, {sr(SX,4)}, 0 offen offset:16"); vm.issue("g")
                a(f"buffer_load_dwordx4 v[32:35], v21, {sr(SG,4)}, 0 offen"); vm.issue("g")
                a(f"buffer_load_dwordx4 v[36:39], v21, {sr(SG,4)}, 0 offen offset:16"); vm.issue("g")
        a("s_branch P_gate")
    loader(5, "P_loadN")
    a.label("P_load0")
    loader(6, "P_load0")
    a.label("P_gate")
    a("s_waitcnt vmcnt(0)")
    a("v_mov_b32 v40, 0")
    for i in range(8):
        a(f"v_lshlrev_b32 v41, 16, v{24+i}")
        a(f"v_and_b32 v42, 0xffff0000, v{24+i}")
        a(f"v_lshlrev_b32 v43, 16, v{32+i}")
        a(f"v_and_b32 v44, 0xffff0000, v{32+i}")
        a("v_mul_f32 v41, v41, v43")
        a("v_mul_f32 v42, v42, v44")
        a("v_cvt_pk_bf16_f32 v41, v41, v42")
        a("v_and_b32 v42, 0xffff0000, v41")
        a("v_lshlrev_b32 v41, 16, v41")
        a("v_add_f32 v40, v40, v41")
        a("v_add_f32 v40, v40, v42")
    for sh in (1, 2, 4, 8):
        a("s_nop 1")
        a(f"v_add_f32_dpp v40, v40, v40 row_shr:{sh} row_mask:0xf bank_mask:0xf bound_ctrl:0")
    a("s_nop 1")
    a("v_add_f32_dpp v40, v40, v40 row_bcast:15 row_mask:0xa bank_mask:0xf")
    a("v_cvt_pk_bf16_f32 v40, v40, v40")
    a("v_lshlrev_b32 v40, 16, v40")
    a(f"v_mul_f32 v41, 0x{LOG2E ^ 0x80000000:08x}, v40")
    a("v_exp_f32 v41, v41")
    a("s_nop 0")
    a("v_add_f32 v41, 1.0, v41")
    a("v_rcp_f32 v41, v41")
    a("s_nop 0")
    a("v_cvt_pk_bf16_f32 v41, v41, v41")
    a("v_lshlrev_b32 v42, 16, v41")
    a("v_sub_f32 v43, 1.0, v42")
    a("v_cvt_pk_bf16_f32 v43, v43, v43")
    a("v_lshlrev_b32 v43, 16, v43")
    a("v_lshlrev_b32 v20, 3, v20")
    a(f"s_mov_b32 s40, {G_OFF}")
    a("s_mov_b32 exec_lo, 0x80000000")
    a("s_mov_b32 exec_hi, 0x80000000")
    a(f"buffer_store_dwordx2 v[42:43], v20, {sr(SWS,4)}, s40 offen")
    a("s_branch P_end")

    a.label("P_compute")
    sTP, sHT, sTI = 37, 38, 39
    XAD, WAD = 8, 12
    vL16, vK16, vVC = 13, 14, 15
    XF = [[16, 20], [24, 28]]
    WF = [[32, 36, 40], [44, 48, 52]]
    ACC = [[56 + 16*(3*tt+uu) for uu in range(3)] for tt in range(2)]
    PK = 152
    a(f"s_and_b32 s{sTP}, s{sWV}, 1")
    a(f"s_lshr_b32 s{sHT}, s{sWV}, 1")
    a("v_and_b32 v1, 31, v0")
    a("v_lshrrev_b32 v2, 5, v0")
    a("v_bfe_u32 v3, v0, 1, 3")
    a(f"s_lshl_b32 s40, s{sTP}, 13")
    a("v_lshlrev_b32 v4, 7, v1")
    a("v_add_u32 v4, s40, v4")
    for ks in range(4):
        a(f"v_or_b32 v5, {2*ks}, v2")
        a("v_xor_b32 v5, v5, v3")
        a(f"v_lshl_add_u32 v{XAD+ks}, v5, 4, v4")
    a("v_bfe_u32 v4, v0, 2, 2")
    a("v_lshlrev_b32 v4, 1, v4")
    a("v_add_u32 v4, v4, v2")
    a("v_mul_u32_u24 v4, 672, v4")
    a("v_bfe_u32 v5, v0, 4, 1")
    a("v_lshl_add_u32 v4, v5, 5, v4")
    a("v_and_b32 v5, 3, v0")
    a("v_lshl_add_u32 v4, v5, 3, v4")
    a(f"s_mul_i32 s40, s{sHT}, 168")
    a(f"v_add_u32 v{WAD}, s40, v4")
    a(f"v_lshlrev_b32 v{vL16}, 4, v0")
    a("v_and_b32 v4, 0x33, v0")
    a("v_bfe_u32 v5, v0, 2, 1")
    a("v_lshl_or_b32 v4, v5, 3, v4")
    a("v_bfe_u32 v5, v0, 3, 1")
    a("v_lshl_or_b32 v4, v5, 2, v4")
    a(f"v_lshlrev_b32 v{vK16}, 4, v4")
    a(f"v_mov_b32 v{vVC}, 0")
    a("s_mov_b32 exec_lo, 0x10000000\ns_mov_b32 exec_hi, 0x10000000")
    a(f"v_mov_b32 v{vVC}, 0x3f803f80")
    a("s_mov_b64 exec, -1")
    a(f"s_mul_i32 s{sTI}, s{sG7}, 6")
    a(f"s_mul_i32 s40, s{sHT}, 3")
    a(f"s_add_u32 s{sTI}, s{sTI}, s40")
    a("s_waitcnt lgkmcnt(0)")
    srd(a, SWS, 12, WS_SIZE)
    a(f"s_lshl_b32 s41, s{sTB}, 2\ns_lshl_b32 s42, s{sTP}, 1\ns_add_u32 s41, s41, s42")
    a(f"s_lshl_b32 s42, s{sMAT}, 10\ns_add_u32 s41, s41, s42")
    for uu in range(3):
        a(f"s_add_u32 s40, s{sTI}, {uu}\ns_and_b32 s40, s40, 15\ns_lshl_b32 s40, s40, 6")
        a(f"s_add_u32 s{44+uu}, s40, s41")
    a(f"s_mov_b32 s47, 0x{QSCALE:08x}")
    variants = {"QQQ": None, "QKK": None, "KKK": None, "KKV": None, "VVV": None}
    a(f"s_cmp_lt_u32 s{sTI}, 15\ns_cbranch_scc1 P_QQQ")
    a(f"s_cmp_eq_u32 s{sTI}, 15\ns_cbranch_scc1 P_QKK")
    a(f"s_cmp_lt_u32 s{sTI}, 30\ns_cbranch_scc1 P_KKK")
    a(f"s_cmp_eq_u32 s{sTI}, 30\ns_cbranch_scc1 P_KKV")
    a("s_branch P_VVV")
    def reads(g):
        b, ks = g & 1, g & 3
        r = []
        for tt in range(2):
            r.append(f"ds_read_b128 {vr(XF[b][tt],4)}, v{XAD+ks} offset:{tt*4096}")
        for uu in range(3):
            for e in range(2):
                r.append(f"ds_read_b64_tr_b16 {vr(WF[b][uu]+2*e,2)}, v{WAD} offset:{16384 + ks*5376 + e*336 + uu*56}")
        return [r[0], r[2], r[3], r[1], r[4], r[5], r[6], r[7]]
    for var in variants:
        a.label("P_" + var)
        a("s_barrier")
        for x in reads(0): a(x)
        for g in range(28):
            b = g & 1
            a("s_waitcnt lgkmcnt(0)")
            nxt = []
            if g + 1 < 28:
                if (g + 1) & 3 == 0:
                    a("s_barrier")
                    c = (g + 1) >> 2
                    d = P_SLOT if c % 4 else -3 * P_SLOT
                    for r in range(5):
                        a(f"v_add_u32 v{XAD+r}, {d & 0xffffffff}, v{XAD+r}")
                nxt = reads(g + 1)
            order = [(0,0),(1,0),(0,1),(1,1),(0,2),(1,2)]
            for i, (tt, uu) in enumerate(order):
                D = vr(ACC[tt][uu], 16)
                C = "0" if g == 0 else D
                X, W = vr(XF[b][tt], 4), vr(WF[b][uu], 4)
                if var[uu] == "V":
                    a(f"v_mfma_f32_32x32x16_bf16 {D}, {X}, {W}, {C}")
                else:
                    a(f"v_mfma_f32_32x32x16_bf16 {D}, {W}, {X}, {C}")
                for x in nxt[2*i:2*i+2]: a(x)
        a("s_nop 7")
        n = 0
        for uu in range(3):
            ty = var[uu]
            if ty == "Q":
                a(f"s_lshl_b32 s40, s{44+uu}, 11")
            else:
                a(f"s_lshl_b32 s40, s{44+uu}, 12")
                a(f"s_add_u32 s40, s40, {KV_OFF + (2048 if ty == 'V' else 0)}")
            for tt in range(2):
                D = ACC[tt][uu]
                P = PK + 8 * (n & 1); n += 1
                if ty == "Q":
                    for r in range(16): a(f"v_mul_f32 v{D+r}, s47, v{D+r}")
                for r in range(8): a(f"v_cvt_pk_bf16_f32 v{P+r}, v{D+2*r}, v{D+2*r+1}")
                if ty == "V":
                    a("s_mov_b32 exec_lo, 0xf0000000\ns_mov_b32 exec_hi, 0xf0000000")
                    for r in range(8): a(f"v_mov_b32 v{P+r}, v{vVC}")
                else:
                    a("s_mov_b32 exec_lo, 0")
                    a(f"v_mov_b32 v{P+6}, 0\nv_mov_b32 v{P+7}, 0")
                a("s_mov_b64 exec, -1")
                va = vK16 if ty == "K" else vL16
                if tt == 1:
                    a(f"s_add_u32 s40, s40, {2048 if ty == 'Q' else 4096}")
                a(f"buffer_store_dwordx4 {vr(P,4)}, v{va}, {sr(SWS,4)}, s40 offen")
                a(f"buffer_store_dwordx4 {vr(P+4,4)}, v{va}, {sr(SWS,4)}, s40 offen offset:1024")
        a("s_branch P_end")
    a.label("P_end")
    a("s_endpgm")
    return 168

T_AREG = 65536
T_LDS = 65536 + 49152

def attn_kernel(a):
    kernel_begin(a, "attn_kernel")
    SWS, SKB, SKA = 16, 20, 24
    sH, sTB, sWV, sQH, sKQ, sM0, sOFF = 32, 33, 34, 35, 36, 37, 38
    sQB, sQA, sTBt, sTAt = 39, 44, 45, 46
    vL16, vDB, vDA, vBA, vAA, vIDX, vGB, vGA, vN = 1, 2, 3, 4, 5, 6, 8, 10, 7
    QB = [12, 20]; QA = 28
    FR = {"K0": 36, "K1": 40, "V0": 44, "V1": 48}
    S = [52, 68]
    O = {"B0": 84, "B1": 100, "A": 116}
    MASK = 132
    T0 = 148
    a("s_cmp_ge_u32 s2, 256")
    a("s_cbranch_scc1 T_end")
    a("s_load_dwordx2 s[12:13], s[0:1], 72")
    a("v_lshrrev_b32 v1, 6, v0")
    a("v_and_b32 v0, 63, v0")
    a(f"v_readfirstlane_b32 s{sWV}, v1")
    a("s_and_b32 s40, s2, 7\ns_lshl_b32 s40, s40, 1\ns_bfe_u32 s41, s2, 0x10003")
    a(f"s_add_u32 s{sH}, s40, s41")
    a(f"s_lshr_b32 s{sTB}, s2, 4")
    a(f"s_lshr_b32 s{sQH}, s{sWV}, 2")
    a(f"s_and_b32 s{sKQ}, s{sWV}, 3")
    a(f"v_lshlrev_b32 v{vL16}, 4, v0")
    a(f"s_lshl_b32 s{sM0}, s{sWV}, 11")
    a(f"s_lshr_b32 s40, s{sWV}, 1\ns_lshl_b32 s40, s40, 16\ns_and_b32 s41, s{sWV}, 1\ns_lshl_b32 s41, s41, 11\ns_add_u32 s40, s40, s41")
    a(f"v_add_u32 v{vDB}, s40, v{vL16}")
    a(f"s_lshl_b32 s40, s{sTB}, 14\ns_sub_u32 s40, s40, 32768\ns_add_u32 s40, s40, s{sM0}")
    a(f"v_add_u32 v{vDA}, s40, v{vL16}")
    a(f"s_lshl_b32 s40, s{sKQ}, 12")
    a(f"v_add_u32 v{vBA}, s40, v{vL16}")
    a(f"s_mul_i32 s41, s{sQH}, 5\ns_add_u32 s41, s41, s{sKQ}\ns_lshl_b32 s41, s41, 12\ns_add_u32 s41, s41, {T_AREG}")
    a(f"v_add_u32 v{vAA}, s41, v{vL16}")
    a(f"s_lshl_b32 s40, s{sH}, 6\ns_lshl_b32 s41, s{sTB}, 2\ns_add_u32 s40, s40, s41")
    a(f"s_lshl_b32 s42, s{sQH}, 1\ns_add_u32 s42, s42, s40\ns_add_u32 s42, s42, 1024")
    a(f"s_lshl_b32 s{sQB}, s42, 11")
    a(f"s_add_u32 s42, s40, s{sKQ}")
    a(f"s_lshl_b32 s{sQA}, s42, 11")
    a(f"s_lshl_b32 s42, s{sQH}, 1\ns_add_u32 s42, s42, s41\ns_lshr_b32 s43, s{sKQ}, 1")
    a(f"s_add_u32 s{sTBt}, s42, s43")
    a(f"s_add_u32 s{sTAt}, s41, s{sKQ}")
    a(f"v_and_b32 v{vN}, 31, v0")
    a(f"s_lshl_b32 s40, s{sH}, 18")
    a(f"s_add_u32 s40, s40, {KV_OFF}")
    a(f"s_add_u32 s41, s40, {16 << 18}")
    a("s_waitcnt lgkmcnt(0)")
    srd(a, SKB, 12, 262144, add="s41")
    srd(a, SWS, 12, WS_SIZE)
    srd(a, SKA, 12, 262144, add="s40")
    vm = Ctr(a, "vmcnt", 63)
    lg = Ctr(a, "lgkmcnt", 15)
    def dmaB(s):
        return [f"s_add_u32 m0, s{sM0}, {(s % 4) * 16384}\ns_mov_b32 s{sOFF}, {s * 4096}\n"
                f"buffer_load_dwordx4 v{vDB}, {sr(SKB,4)}, s{sOFF} offen lds",
                f"buffer_load_dwordx4 v{vDB}, {sr(SKB,4)}, s{sOFF} offen offset:1024 lds"]
    def dmaA(i):
        return [f"s_add_u32 m0, s{sM0}, {T_AREG + i * 16384}\ns_nop 0\n"
                f"buffer_load_dwordx4 v{vDA}, {sr(SKA,4)}, 0 offen lds",
                f"buffer_load_dwordx4 v{vDA}, {sr(SKA,4)}, 0 offen offset:1024 lds\n"
                f"v_add_u32 v{vDA}, 16384, v{vDA}"]
    for x in dmaB(0): a(x); vm.issue("B0")
    for q in range(2):
        for j in range(2):
            a(f"buffer_load_dwordx4 {vr(QB[q]+4*j,4)}, v{vL16}, {sr(SWS,4)}, s{sQB} offen offset:{q*2048+j*1024}"); vm.issue("QB")
    for s in (1, 2):
        for x in dmaB(s): a(x); vm.issue(f"B{s}")
    for j in range(2):
        a(f"buffer_load_dwordx4 {vr(QA+4*j,4)}, v{vL16}, {sr(SWS,4)}, s{sQA} offen offset:{j*1024}"); vm.issue("QA")
    a(f"v_lshlrev_b32 v{T0}, 3, v{vN}")
    a(f"s_lshl_b32 s40, s{sTBt}, 8\ns_add_u32 s40, s40, {G_OFF}")
    a(f"s_lshl_b32 s41, s{sTAt}, 8\ns_add_u32 s41, s41, {G_OFF}")
    a(f"buffer_load_dwordx2 {vr(vGB,2)}, v{T0}, {sr(SWS,4)}, s40 offen"); vm.issue("G")
    a(f"buffer_load_dwordx2 {vr(vGA,2)}, v{T0}, {sr(SWS,4)}, s41 offen"); vm.issue("G")
    a(f"v_mov_b32 v{vIDX}, 0xdddddddd")
    for r in range(48): a(f"v_mov_b32 v{O['B0']+r}, 0")
    a(f"v_lshrrev_b32 v{T0+1}, 5, v0")
    a(f"v_lshlrev_b32 v{T0+1}, 3, v{T0+1}")
    a(f"v_sub_u32 v{T0+1}, v{vN}, v{T0+1}")
    a(f"s_cmp_eq_u32 s{sQH}, 0")
    a("s_cselect_b32 s40, 0, 0xff800000")
    a("s_cselect_b32 s41, 0xff800000, 0")
    a(f"v_mov_b32 v{T0+2}, s40\nv_mov_b32 v{T0+3}, s41")
    for r in range(16):
        a(f"v_cmp_le_i32 s[42:43], {16*(r>>3) + (r&7)}, v{T0+1}")
        a("s_nop 1")
        a(f"v_cndmask_b32 v{MASK+r}, v{T0+2}, v{T0+3}, s[42:43]")

    def btile(s, q): return dict(key=("B", s), Q=QB[q], O=O[f"B{q}"], mask=False, addr=vBA, off=(s % 4) * 16384)
    def atile(i, m): return dict(key=("A", i), Q=QA, O=O["A"], mask=m, addr=vAA, off=i * 4096)
    Btiles = [btile(s, q) for s in range(16) for q in range(2)]
    seqs = [Btiles + [atile(i, i == 0) for i in range(5)], Btiles + [atile(i, i == 3) for i in range(4)]]
    FOFF = {"K0": 0, "K1": 1024, "V0": 2048, "V1": 3072}
    def load(lg, f, t):
        a(f"ds_read_b128 {vr(FR[f],4)}, v{t['addr']} offset:{t['off'] + FOFF[f]}")
        lg.issue(f)
    def reload_after(lg, f, tiles, i):
        if i + 1 < len(tiles) and tiles[i+1]["key"] != tiles[i]["key"]:
            load(lg, f, tiles[i+1])
    def qk(lg, tiles, i, j):
        t = tiles[i]; D = vr(S[i & 1], 16)
        lg.wait(f"K{j}")
        C = D if j == 1 else (vr(MASK, 16) if t["mask"] else "0")
        a(f"v_mfma_f32_32x32x16_bf16 {D}, {vr(FR[f'K{j}'],4)}, {vr(t['Q']+4*j,4)}, {C}")
        reload_after(lg, f"K{j}", tiles, i)
    def pv(lg, tiles, i, j):
        t = tiles[i]
        lg.wait(f"V{j}")
        a(f"v_smfmac_f32_32x32x32_bf16 {vr(t['O'],16)}, {vr(FR[f'V{j}'],4)}, {vr(S[i&1]+8*j,8)}, v{vIDX}")
        reload_after(lg, f"V{j}", tiles, i)
    def slot(lg, vm, tiles, i):
        s0 = S[i & 1]
        e = lambda r: a(f"v_exp_f32 v{s0+r}, v{s0+r}")
        extra = []
        t = tiles[i]
        if t["key"][0] == "B" and i % 2 == 0:
            s = t["key"][1]
            need = [f"B{s+1}"] if s < 15 else ["A0", "A1", "A2", "QA"]
            vm.wait(need)
            a("s_barrier")
            if s + 3 < 16: extra += [(x, f"B{s+3}") for x in dmaB(s + 3)]
            if s < 3: extra += [(x, f"A{s}") for x in dmaA(s)]
        def ex():
            if extra:
                x, tag = extra.pop(0); a(x); vm.issue(tag)
        e(0); e(1)
        if i > 0: pv(lg, tiles, i - 1, 1)
        e(2); ex(); e(3); e(4)
        if i + 1 < len(tiles): qk(lg, tiles, i + 1, 0)
        e(5); e(6); ex(); e(7)
        if i + 1 < len(tiles): qk(lg, tiles, i + 1, 1)
        e(8); e(9); ex(); e(10); e(11)
        pv(lg, tiles, i, 0)
        e(12); ex(); e(13); e(14); e(15)
        a("s_nop 1")
        assert not extra
    vm.wait(["B0", "QB"])
    a("s_barrier")
    for f in ("K0", "K1", "V0", "V1"): load(lg, f, Btiles[0])
    tiles = seqs[0]
    qk(lg, tiles, 0, 0); qk(lg, tiles, 0, 1)
    a("s_nop 11")
    SPLIT = 31
    for i in range(SPLIT): slot(lg, vm, tiles, i)
    a(f"s_cmp_lg_u32 s{sQH}, 0")
    a("s_cbranch_scc1 T_tail1")
    for hf in range(2):
        if hf: a.label("T_tail1")
        lg2, vm2 = lg.clone(a), vm.clone(a)
        tiles = seqs[hf]
        for i in range(SPLIT, len(tiles)): slot(lg2, vm2, tiles, i)
        pv(lg2, tiles, len(tiles) - 1, 1)
        assert not lg2.q, lg2.q
        if hf == 0: a("s_branch T_red")
    a.label("T_red")
    vW, vRB, vLB, vRA, vLA = T0, T0+1, T0+2, T0+3, T0+4
    a(f"s_lshl_b32 s40, s{sQH}, 15\ns_lshl_b32 s41, s{sKQ}, 11\ns_add_u32 s40, s40, s41")
    a(f"v_add_u32 v{vW}, s40, v{vL16}")
    a(f"s_lshl_b32 s40, s{sWV}, 13")
    a(f"v_add_u32 v{vRB}, s40, v{vL16}")
    a("s_or_b32 s40, s40, 8192")
    a(f"v_lshlrev_b32 v{vLB}, 4, v{vN}")
    a(f"v_add_u32 v{vLB}, 1536, v{vLB}")
    a(f"s_lshl_b32 s41, s{sKQ}, 13\ns_add_u32 s41, s41, 65536")
    a(f"s_add_u32 s42, s41, 4096")
    a(f"v_add_u32 v{vLA}, s42, v{vLB}")
    a(f"v_add_u32 v{vLB}, s40, v{vLB}")
    a(f"s_lshl_b32 s42, s{sQH}, 12\ns_add_u32 s42, s42, s41")
    a(f"v_add_u32 v{vRA}, s42, v{vL16}")
    a(f"s_lshl_b32 s42, s{sQH}, 11\ns_add_u32 s42, s42, s41")
    a(f"v_add_u32 v{T0+5}, s42, v{vL16}")
    a("s_barrier")
    for o in range(4):
        for k in range(2):
            a(f"ds_write_b128 v{vW}, {vr(O['B0']+8*o+4*k,4)} offset:{o*8192+k*1024}")
    for o in range(2):
        for k in range(2):
            a(f"ds_write_b128 v{T0+5}, {vr(O['A']+8*o+4*k,4)} offset:{o*4096+k*1024}")
    a("s_waitcnt lgkmcnt(0)")
    a("s_barrier")
    RB, RA, LB, LA = 52, 84, 36, 40
    for src in range(4):
        for k in range(2):
            a(f"ds_read_b128 {vr(RB+8*src+4*k,4)}, v{vRB} offset:{src*2048+k*1024}")
        a(f"ds_read_b32 v{LB+src}, v{vLB} offset:{src*2048}")
    a("s_waitcnt lgkmcnt(0)")
    for src in range(2):
        for k in range(2):
            a(f"ds_read_b128 {vr(RA+8*src+4*k,4)}, v{vRA} offset:{src*2048+k*1024}")
        a(f"ds_read_b32 v{LA+src}, v{vLA} offset:{src*2048}")
    for r in range(8):
        a(f"v_add_f32 v{RB+r}, v{RB+r}, v{RB+8+r}")
        a(f"v_add_f32 v{RB+16+r}, v{RB+16+r}, v{RB+24+r}")
    for r in range(8):
        a(f"v_add_f32 v{RB+r}, v{RB+r}, v{RB+16+r}")
    a(f"v_add_f32 v{LB}, v{LB}, v{LB+1}\nv_add_f32 v{LB+2}, v{LB+2}, v{LB+3}\nv_add_f32 v{LB}, v{LB}, v{LB+2}")
    a("s_waitcnt lgkmcnt(0)")
    for r in range(8):
        a(f"v_add_f32 v{RA+r}, v{RA+r}, v{RA+8+r}")
    a(f"v_add_f32 v{LA}, v{LA}, v{LA+1}")
    a("s_waitcnt vmcnt(0)")
    a(f"s_mov_b32 s48, 0x{f32bits(2.0**-40):08x}\ns_mov_b32 s49, 0x{f32bits(2.0**60):08x}")

    def finalize(tag, R, L, G, sOdd, sTile, mat):
        a(f"v_mov_b32 v{T0+6}, v{L}")
        for r in range(8): a(f"v_fma_f32 v{T0+6}, v{R+r}, 0, v{T0+6}")
        a(f"v_cmp_lt_f32 vcc, s48, v{T0+6}")
        a(f"v_cmp_gt_f32 s[42:43], s49, v{T0+6}")
        a("s_and_b64 vcc, vcc, s[42:43]")
        a("s_cmp_eq_u64 vcc, -1")
        a(f"s_cbranch_scc0 T_slow{tag}")
        a.label(f"T_fin{tag}")
        a(f"v_rcp_f32 v{L}, v{L}")
        a("s_nop 0")
        a(f"v_mul_f32 v{L}, v{L}, v{G}")
        for r in range(8): a(f"v_mul_f32 v{R+r}, v{R+r}, v{L}")
        for r in range(4): a(f"v_cvt_pk_bf16_f32 v{R+r}, v{R+2*r}, v{R+2*r+1}")
        a(f"s_and_b32 s40, s{sOdd}, 1")
        a("s_cselect_b32 exec_hi, -1, 0\ns_mov_b32 exec_lo, 0")
        a(f"v_mov_b32 v{R+2}, 0\nv_mov_b32 v{R+3}, 0")
        a("s_mov_b64 exec, -1")
        a(f"s_lshl_b32 s41, s{sTile}, 5\ns_add_u32 s41, s41, s{sH}\ns_lshl_b32 s41, s41, 1\ns_add_u32 s41, s41, s40")
        a(f"s_lshl_b32 s41, s41, 10\ns_add_u32 s41, s41, {OF_OFF + mat*16*2048}")
        a(f"buffer_store_dwordx4 {vr(R,4)}, v{vL16}, {sr(SWS,4)}, s41 offen")
    finalize("B", RB, LB, vGB + 1, sKQ, sTBt, 1)
    finalize("A", RA, LA, vGA, sQH, sTAt, 0)
    a("s_branch T_end")

    def slow(tag, R, L, SK, sOdd, sTile, mat):
        Q, KF, VF, SS, OO, M, DL = 12, 20, 28, 100, 116, 44, 45
        sT, sT1, sKO = 50, 51, 52
        a.label(f"T_slow{tag}")
        a(f"s_add_u32 s40, s{sH}, {16*mat}\ns_lshl_b32 s40, s40, 6\ns_add_u32 s40, s40, s{sTile}\ns_lshl_b32 s40, s40, 11")
        for j in range(2):
            a(f"buffer_load_dwordx4 {vr(Q+4*j,4)}, v{vL16}, {sr(SWS,4)}, s40 offen offset:{j*1024}")
        if mat == 0:
            a(f"s_sub_i32 s53, s{sTile}, 8\ns_max_i32 s53, s53, 0\ns_add_u32 s{sT1}, s{sTile}, 1")
        else:
            a(f"s_mov_b32 s53, 0\ns_mov_b32 s{sT1}, 64")
        a(f"v_mov_b32 v{M}, 0xff800000")
        a(f"v_mov_b32 v{T0+7}, 0xff800000")
        for r in range(16): a(f"v_mov_b32 v{OO+r}, 0")
        for p in range(2):
            a(f"s_mov_b32 s{sT}, s53")
            a.label(f"T_slow{tag}_p{p}")
            a(f"s_lshl_b32 s{sKO}, s{sT}, 12")
            for j in range(2):
                a(f"buffer_load_dwordx4 {vr(KF+4*j,4)}, v{vL16}, {sr(SK,4)}, s{sKO} offen offset:{j*1024}")
            if p == 1:
                for j in range(2):
                    a(f"buffer_load_dwordx4 {vr(VF+4*j,4)}, v{vL16}, {sr(SK,4)}, s{sKO} offen offset:{2048+j*1024}")
            if mat == 0:
                a(f"s_sub_u32 s40, s{sTile}, s{sT}\ns_lshl_b32 s40, s40, 5")
                a(f"v_lshrrev_b32 v{DL}, 5, v0\nv_lshlrev_b32 v{DL}, 3, v{DL}\nv_sub_u32 v{DL}, v{vN}, v{DL}")
                a(f"v_add_u32 v{DL}, s40, v{DL}")
            a("s_waitcnt vmcnt(0)")
            a(f"v_mfma_f32_32x32x16_bf16 {vr(SS,16)}, {vr(KF,4)}, {vr(Q,4)}, 0")
            a(f"v_mfma_f32_32x32x16_bf16 {vr(SS,16)}, {vr(KF+4,4)}, {vr(Q+4,4)}, {vr(SS,16)}")
            a("s_nop 15")
            if mat == 0:
                a("s_movk_i32 s41, 256")
                for r in range(16):
                    a(f"v_subrev_u32 v{DL+1}, {16*(r>>3)+(r&7)}, v{DL}")
                    a(f"v_cmp_gt_u32 s[42:43], s41, v{DL+1}")
                    a("s_nop 1")
                    a(f"v_cndmask_b32 v{SS+r}, v{T0+7}, v{SS+r}, s[42:43]")
            if p == 0:
                for r in range(16): a(f"v_max_f32 v{M}, v{M}, v{SS+r}")
            else:
                for r in range(16): a(f"v_sub_f32 v{SS+r}, v{SS+r}, v{M}")
                for r in range(16): a(f"v_exp_f32 v{SS+r}, v{SS+r}")
                a("s_nop 1")
                for j in range(2):
                    a(f"v_smfmac_f32_32x32x32_bf16 {vr(OO,16)}, {vr(VF+4*j,4)}, {vr(SS+8*j,8)}, v{vIDX}")
            a(f"s_add_u32 s{sT}, s{sT}, 1\ns_cmp_lt_u32 s{sT}, s{sT1}")
            a(f"s_cbranch_scc1 T_slow{tag}_p{p}")
            if p == 0:
                a(f"v_mov_b32 v{DL}, v{M}\ns_nop 1")
                a(f"v_permlane32_swap_b32 v{M}, v{DL}\ns_nop 1")
                a(f"v_max_f32 v{M}, v{M}, v{DL}")
        a("s_nop 15")
        a(f"v_mov_b32 v{DL}, v{OO+12}\nv_mov_b32 v{L}, v{OO+12}\ns_nop 1")
        a(f"v_permlane32_swap_b32 v{DL}, v{L}\ns_nop 1")
        a(f"s_and_b32 s40, s{sOdd}, 1")
        a(f"s_cbranch_scc1 T_slow{tag}_odd")
        for r in range(8): a(f"v_mov_b32 v{R+r}, v{OO+r}")
        a(f"s_branch T_fin{tag}")
        a.label(f"T_slow{tag}_odd")
        for r in range(8): a(f"v_mov_b32 v{R+r}, v{OO+8+r}")
        a(f"s_branch T_fin{tag}")
    slow("B", RB, LB, SKB, sKQ, sTBt, 1)
    slow("A", RA, LA, SKA, sQH, sTAt, 0)
    a.label("T_end")
    a("s_endpgm")
    return T0 + 8

O_LDS = 4 * 28672

def out_kernel(a):
    kernel_begin(a, "out_kernel")
    SWS, SWO, SO = 16, 20, 24
    sTP, sCB, sWV, sM0, sOFF = 32, 33, 34, 35, 36
    vL16, vD, vO0, vO1 = 1, 2, 3, 4
    vT = [5, 6]; vT2 = [7, 8]
    OFR = 16
    WF = [[144, 148], [152, 156]]
    ACC = [160 + 16*i for i in range(4)]
    a("s_cmp_ge_u32 s2, 224")
    a("s_cbranch_scc1 O_end")
    a("s_load_dwordx2 s[4:5], s[0:1], 16")
    a("s_load_dwordx2 s[6:7], s[0:1], 40")
    a("s_load_dwordx2 s[8:9], s[0:1], 56")
    a("s_load_dwordx2 s[12:13], s[0:1], 72")
    a("v_lshrrev_b32 v1, 6, v0")
    a("v_and_b32 v0, 63, v0")
    a(f"v_readfirstlane_b32 s{sWV}, v1")
    a("s_and_b32 s40, s2, 7\ns_lshl_b32 s40, s40, 2\ns_bfe_u32 s41, s2, 0x20003")
    a(f"s_add_u32 s{sTP}, s40, s41")
    a(f"s_lshr_b32 s{sCB}, s2, 5")
    a(f"v_lshlrev_b32 v{vL16}, 4, v0")
    a(f"s_mul_i32 s{sM0}, s{sWV}, 28672")
    a("v_lshrrev_b32 v9, 3, v0")
    a(f"s_and_b32 s40, s{sWV}, 1\ns_mul_i32 s40, s40, 224")
    a("v_add_u32 v9, s40, v9")
    a("v_mul_u32_u24 v9, 896, v9")
    a("v_bfe_u32 v10, v0, 4, 1\nv_lshlrev_b32 v10, 2, v10\nv_and_b32 v11, 7, v0\nv_xor_b32 v10, v10, v11")
    a("v_lshl_add_u32 v9, v10, 4, v9")
    a(f"s_lshl_b32 s40, s{sCB}, 7")
    a(f"v_add_u32 v{vD}, s40, v9")
    a(f"s_lshl_b32 s40, s{sTP}, 17\ns_lshl_b32 s41, s{sWV}, 14\ns_add_u32 s40, s40, s41\ns_add_u32 s40, s40, {OF_OFF}")
    a(f"v_add_u32 v{vO0}, s40, v{vL16}")
    a(f"v_add_u32 v{vO1}, 65536, v{vO0}")
    a("v_bfe_u32 v9, v0, 2, 2")
    a("v_lshlrev_b32 v10, 7, v9")
    a("v_bfe_u32 v11, v0, 4, 1\nv_lshl_add_u32 v10, v11, 5, v10")
    a("v_and_b32 v11, 3, v0\nv_lshl_add_u32 v10, v11, 3, v10")
    a("v_bfe_u32 v11, v0, 3, 1\nv_lshl_add_u32 v10, v11, 6, v10")
    a(f"v_add_u32 v{vT2[0]}, s{sM0}, v10")
    a("v_xor_b32 v10, 64, v10")
    a(f"v_add_u32 v{vT2[1]}, s{sM0}, v10")
    a("v_lshrrev_b32 v11, 5, v0")
    a(f"v_lshl_add_u32 v{vT[0]}, v11, 9, v{vT2[0]}")
    a(f"v_lshl_add_u32 v{vT[1]}, v11, 9, v{vT2[1]}")
    a("s_waitcnt lgkmcnt(0)")
    srd(a, SWS, 12, WS_SIZE)
    a(f"s_cmp_lt_u32 s{sWV}, 2")
    a(f"s_cselect_b32 s{SWO}, s4, s6\ns_cselect_b32 s{SWO+1}, s5, s7")
    a(f"s_mov_b32 s{SWO+2}, {WO_BYTES}\ns_mov_b32 s{SWO+3}, 0x00020000")
    srd(a, SO, 8, X_BYTES)
    vm = Ctr(a, "vmcnt", 63)
    for grp in range(4):
        a(f"s_mov_b32 s44, {grp*4096}")
        for i in range(8):
            if i < 7:
                n = grp * 7 + i
                a(f"s_add_u32 m0, s{sM0}, {n*1024}\ns_mov_b32 s{sOFF}, {n*7168}")
                a(f"buffer_load_dwordx4 v{vD}, {sr(SWO,4)}, s{sOFF} offen lds"); vm.issue(grp)
            kk, tt = grp * 4 + (i >> 1), i & 1
            a(f"buffer_load_dwordx4 {vr(OFR+(kk*2+tt)*4,4)}, v{[vO0,vO1][tt]}, {sr(SWS,4)}, s44 offen offset:{(kk&3)*1024}"); vm.issue(grp)
    def reads(kk):
        b = kk & 1; hd, j = kk >> 1, kk & 1
        r = []
        for ct in range(2):
            for e in range(2):
                ad = vT2[ct] if (j == 1 and e == 1) else vT[ct]
                r.append(f"ds_read_b64_tr_b16 {vr(WF[b][ct]+2*e,2)}, v{ad} offset:{(28*hd+16*j+8*e)*128}")
        return r
    vm.wait(0)
    for x in reads(0): a(x)
    for kk in range(16):
        b = kk & 1
        nxt = []
        if kk + 1 < 16:
            if (kk + 1) % 4 == 0: vm.wait((kk + 1) // 4)
            nxt = reads(kk + 1)
        a("s_waitcnt lgkmcnt(0)")
        for i, (ct, tt) in enumerate([(0,0),(0,1),(1,0),(1,1)]):
            D = vr(ACC[ct*2+tt], 16)
            a(f"v_mfma_f32_32x32x16_bf16 {D}, {vr(WF[b][ct],4)}, {vr(OFR+(kk*2+tt)*4,4)}, {'0' if kk == 0 else D}")
            for x in nxt[2*i:2*i+2]: a(x)
    a(f"s_lshl_b32 s40, s{sWV}, 12")
    a(f"v_add_u32 v9, s40, v{vL16}")
    a(f"s_lshl_b32 s40, s{sWV}, 14")
    a(f"v_add_u32 v10, s40, v{vL16}")
    a(f"s_lshl_b32 s40, s{sTP}, 1\ns_and_b32 s41, s{sWV}, 1\ns_add_u32 s40, s40, s41\ns_lshl_b32 s40, s40, 5")
    a("v_and_b32 v11, 31, v0\nv_add_u32 v11, s40, v11\nv_mul_u32_u24 v11, 896, v11")
    a("v_lshrrev_b32 v12, 5, v0\nv_lshl_add_u32 v11, v12, 3, v11")
    a(f"s_lshl_b32 s40, s{sCB}, 7\ns_lshr_b32 s41, s{sWV}, 1\ns_lshl_b32 s41, s41, 6\ns_add_u32 s40, s40, s41")
    a("s_barrier")
    for t in range(4):
        for k in range(4):
            a(f"ds_write_b128 v9, {vr(ACC[t]+4*k,4)} offset:{t*16384+k*1024}")
    a("s_waitcnt lgkmcnt(0)")
    a("s_barrier")
    R = 16
    for src in range(4):
        for k in range(4):
            a(f"ds_read_b128 {vr(R+16*src+4*k,4)}, v10 offset:{src*4096+k*1024}")
        if src == 1: pass
    a("s_waitcnt lgkmcnt(8)")
    for r in range(16): a(f"v_add_f32 v{R+r}, v{R+r}, v{R+16+r}")
    a("s_waitcnt lgkmcnt(0)")
    for r in range(16): a(f"v_add_f32 v{R+32+r}, v{R+32+r}, v{R+48+r}")
    for r in range(16): a(f"v_add_f32 v{R+r}, v{R+r}, v{R+32+r}")
    for r in range(8): a(f"v_cvt_pk_bf16_f32 v{R+16+r}, v{R+2*r}, v{R+2*r+1}")
    for g in range(4):
        a(f"buffer_store_dwordx2 {vr(R+16+2*g,2)}, v11, {sr(SO,4)}, s40 offen offset:{g*16}")
    a.label("O_end")
    a("s_endpgm")
    return 224

def main(out):
    a = Asm()
    hdr = open("cdna_kernels/" + NAME + ".s.ref").read().split("; Override launch")[0]
    a.raw(hdr.rstrip())
    a.raw(f"; @launch kernel=proj_kernel grid=(256,1,1) block=(512,1,1) lds={P_LDS}")
    a.raw(f"; @launch kernel=attn_kernel grid=(256,1,1) block=(512,1,1) lds={T_LDS}")
    a.raw(f"; @launch kernel=out_kernel grid=(224,1,1) block=(256,1,1) lds={O_LDS}")
    a.raw('.amdgcn_target "amdgcn-amd-amdhsa--gfx950"')
    a.raw(".text")
    v1 = proj_kernel(a); v2 = attn_kernel(a); v3 = out_kernel(a)
    a.raw('.section .rodata,"a"')
    for n, v in (("proj_kernel", v1), ("attn_kernel", v2), ("out_kernel", v3)):
        a.raw(".p2align 6")
        a.raw(descriptor(n, v))
    open(out, "w").write(a.text())

if __name__ == "__main__":
    main(sys.argv[1] if len(sys.argv) > 1 else "cdna_kernels/" + NAME + ".s")
```

```python
import sys, struct, math
from asmlib import *

NAME = "gated_mix__sliding_block__softmax_full_mha__prompt"
KV_OFF = 0
OF_OFF = 8 << 20
FL1_OFF = 12 << 20
FLO_OFF = FL1_OFF + 8192
WS_SIZE = FLO_OFF + 32768
X_BYTES = 2048 * 896
W_BYTES = 448 * 2688
WO_BYTES = 448 * 896
def f32bits(x): return struct.unpack("<I", struct.pack("<f", x))[0]
QSCALE = f32bits(math.log2(math.e) / math.sqrt(28.0))
LOG2E = f32bits(math.log2(math.e))
SPIN_MAX = 200000

OPT = dict(a.lstrip("-").split("=") if "=" in a else (a.lstrip("-"), "1") for a in sys.argv[1:] if a.startswith("--"))
STAMPS = "stamps" in OPT
ST_OFF = 32 << 20

R_SLOT = 30720
L_AREG, L_QX = 0, 49152
L_S = [65536, 81920, 106496, 122880]
L_GW, L_G = 98304, 99328
L_WQ = 106496
L_WOA, L_WOB = 0, 57344
L_SCRA = 0
L_SCRB = 65536
L_SCR3 = 0
LDS = 163840

pX, pWA, pWOA, pWB, pWOB, pGW, pOUT, pDBG, pWS = 4, 6, 8, 12, 14, 16, 18, 20, 22
SWS, SKA, SKB, S1, S2, S3, S4 = 24, 28, 32, 36, 40, 44, 48
sH, sTB, sWV, sQH, sKQ, sG16, sNON, sM0, sOFF, sTBt, sTAt = 52, 53, 54, 55, 56, 57, 58, 60, 61, 62, 63
t0, t1, t2, t3 = 64, 65, 66, 67
u0, u1 = 10, 11
sCNT = 3

class Stamper:
    def __init__(self, a): self.a = a
    def start(self):
        if STAMPS:
            self.a("s_memrealtime s[100:101]"); self.a("s_memtime s[68:69]")
    def __call__(self, i):
        if STAMPS: self.a(f"s_memtime s[{68+2*i}:{69+2*i}]")
    def dump(self):
        if not STAMPS: return
        a = self.a
        a("s_waitcnt vmcnt(0)")
        a("s_memtime s[98:99]"); a("s_memrealtime s[66:67]")
        a("s_waitcnt lgkmcnt(0)")
        a("s_mov_b64 exec, -1")
        srd(a, S4, pWS, 0x100000, add=ST_OFF)
        a(f"s_lshl_b32 s64, s2, 4\ns_add_u32 s64, s64, s{sWV}\ns_lshl_b32 s64, s64, 7")
        a("v_mov_b32 v1, 0")
        for i in range(16):
            a(f"v_mov_b32 v2, s{68+2*i}")
            a(f"buffer_store_dword v2, v1, {sr(S4,4)}, s64 offen offset:{4*i}")
        a(f"v_mov_b32 v2, s100\nbuffer_store_dword v2, v1, {sr(S4,4)}, s64 offen offset:64")
        a(f"v_mov_b32 v2, s66\nbuffer_store_dword v2, v1, {sr(S4,4)}, s64 offen offset:68")

def g16_table():
    two = [h for h in range(16) if (56 * h) % 128 > 64]
    one = [h for h in range(16) if h not in two]
    set1 = [0, 3, 4, 7, 8, 11, 12, 15]; set2 = [1, 2, 5, 6, 9, 10, 13, 14]
    order = two + one
    t = dict(zip(order, set1 + set2))
    v = 0
    for h in range(16): v |= t[h] << (4 * h)
    return v

def kernel(a):
    K = NAME + "_kernel"
    kernel_begin(a, K)
    st = Stamper(a)
    uid = [0]
    def lab(p):
        uid[0] += 1; return f"{p}_{uid[0]}"
    vL16 = 1
    a("s_cmp_ge_u32 s2, 256")
    a("s_cbranch_scc1 L_end")
    st.start()
    a("s_load_dwordx8 s[4:11], s[0:1], 0")
    a("s_load_dwordx8 s[12:19], s[0:1], 32")
    a("s_load_dwordx4 s[20:23], s[0:1], 64")
    a("v_lshrrev_b32 v1, 6, v0")
    a("v_and_b32 v0, 63, v0")
    a(f"v_readfirstlane_b32 s{sWV}, v1")
    a(f"v_lshlrev_b32 v{vL16}, 4, v0")
    a(f"s_and_b32 s{t0}, s2, 7\ns_lshl_b32 s{t0}, s{t0}, 1\ns_bfe_u32 s{t1}, s2, 0x10003")
    a(f"s_add_u32 s{sH}, s{t0}, s{t1}")
    a(f"s_lshr_b32 s{sTB}, s2, 4")
    tb = g16_table()
    a(f"s_mov_b32 s{t2}, 0x{tb & 0xffffffff:08x}\ns_mov_b32 s{t3}, 0x{tb >> 32:08x}")
    a(f"s_lshl_b32 s{t0}, s{sH}, 2\ns_lshr_b64 s[{t2}:{t3}], s[{t2}:{t3}], s{t0}\ns_and_b32 s{sG16}, s{t2}, 15")
    a(f"s_lshr_b32 s{sQH}, s{sWV}, 2")
    a(f"s_and_b32 s{sKQ}, s{sWV}, 3")
    a(f"s_lshl_b32 s{sM0}, s{sWV}, 11")
    a(f"s_lshl_b32 s{t1}, s{sTB}, 2")
    a(f"s_lshl_b32 s{t0}, s{sQH}, 1\ns_add_u32 s{t0}, s{t0}, s{t1}\ns_lshr_b32 s{t2}, s{sKQ}, 1")
    a(f"s_add_u32 s{sTBt}, s{t0}, s{t2}")
    a(f"s_add_u32 s{sTAt}, s{t1}, s{sKQ}")

    vDB, vBA0, vBA1, vAA, vIDX, vN, vGA, vGB = 2, 3, 4, 5, 6, 7, 8, 9
    T = 10
    QB = [16, 24]; QA = 32
    FR = {"K0": 40, "K1": 44, "V0": 48, "V1": 52}
    S = [56, 72]
    RED = 88
    O = {"B0": 160, "B1": 176, "A": 208}
    MASK = 224
    vNON = 252

    def common_srds():
        srd(a, SWS, pWS, WS_SIZE)
        a(f"s_lshl_b32 s{t0}, s{sH}, 18")
        srd(a, SKA, pWS, 262144, add=f"s{t0}")
        a(f"s_add_u32 s{t0}, s{t0}, {16 << 18}")
        srd(a, SKB, pWS, 262144, add=f"s{t0}")

    def phase2_setup():
        a(f"s_lshr_b32 s{t0}, s{sWV}, 1\ns_lshl_b32 s{t0}, s{t0}, 16\ns_and_b32 s{t1}, s{sWV}, 1\ns_lshl_b32 s{t1}, s{t1}, 11\ns_add_u32 s{t0}, s{t0}, s{t1}")
        a(f"v_add_u32 v{vDB}, s{t0}, v{vL16}")
        a(f"s_lshl_b32 s{t0}, s{sKQ}, 12\ns_add_u32 s{t0}, s{t0}, {L_S[0]}")
        a(f"v_add_u32 v{vBA0}, s{t0}, v{vL16}")
        a(f"v_add_u32 v{vBA1}, {L_S[2] - L_S[0]}, v{vBA0}")
        a(f"s_mul_i32 s{t0}, s{sQH}, 5\ns_add_u32 s{t0}, s{t0}, s{sKQ}\ns_lshl_b32 s{t0}, s{t0}, 12")
        a(f"v_add_u32 v{vAA}, s{t0}, v{vL16}")
        a(f"v_mov_b32 v{vIDX}, 0xdddddddd")
        a(f"v_and_b32 v{vN}, 31, v0")
        for k in ("B0", "B1", "A"):
            for r in range(16): a(f"v_mov_b32 v{O[k]+r}, 0")
        a(f"v_lshrrev_b32 v{T}, 5, v0\nv_lshlrev_b32 v{T}, 3, v{T}\nv_sub_u32 v{T}, v{vN}, v{T}")
        a(f"s_cmp_eq_u32 s{sQH}, 0")
        a(f"s_cselect_b32 s{t0}, 0, 0xff800000")
        a(f"s_cselect_b32 s{t1}, 0xff800000, 0")
        a(f"v_mov_b32 v{T+1}, s{t0}\nv_mov_b32 v{T+2}, s{t1}")
        for r in range(0, 16, 2):
            a(f"v_cmp_le_i32 s[{t2}:{t3}], {16*(r>>3) + (r&7)}, v{T}")
            a(f"v_cmp_le_i32 s[{u0}:{u1}], {16*(r>>3) + (r&7) + 1}, v{T}")
            a("s_nop 0")
            a(f"v_cndmask_b32 v{MASK+r}, v{T+1}, v{T+2}, s[{t2}:{t3}]")
            a(f"v_cndmask_b32 v{MASK+r+1}, v{T+1}, v{T+2}, s[{u0}:{u1}]")
        a(f"s_add_u32 s{sOFF}, s{sTB}, 1\ns_and_b32 s{sOFF}, s{sOFF}, 15\ns_lshl_b32 s{sOFF}, s{sOFF}, 12")

    def get_nonce(issued):
        L, D = lab("L_non"), lab("L_non_done")
        a(f"s_mov_b32 s{sCNT}, {SPIN_MAX}")
        if issued: a(f"s_branch {L}_chk")
        a.label(L)
        a(f"buffer_load_dwordx2 {vr(vNON,2)}, v{T+3}, {sr(S4,4)}, 0 offen sc1")
        a.label(L + "_chk")
        a("s_waitcnt vmcnt(0)")
        a(f"v_readfirstlane_b32 s{sNON}, v{vNON}\nv_readfirstlane_b32 s{sNON+1}, v{vNON+1}")
        a(f"s_sub_u32 s{sCNT}, s{sCNT}, 1\ns_cbranch_scc1 {D}")
        a(f"s_cmp_eq_u32 s{sNON}, 0\ns_cbranch_scc1 {L}")
        a.label(D)

    def poll(vaddr, soff, need, tmp):
        L, D = lab("L_poll"), lab("L_poll_done")
        a(f"s_mov_b32 s{sCNT}, {SPIN_MAX}")
        a.label(L)
        a(f"buffer_load_dwordx2 {vr(tmp,2)}, v{vaddr}, {sr(SWS,4)}, {soff} offen sc1")
        a("s_waitcnt vmcnt(0)")
        a(f"v_cmp_eq_u64 vcc, s[{sNON}:{sNON+1}], {vr(tmp,2)}")
        if need is not None: a(f"s_orn2_b64 vcc, vcc, s[{need}:{need+1}]")
        a(f"s_cmp_eq_u64 vcc, -1\ns_cbranch_scc1 {D}")
        a("s_sleep 1")
        a(f"s_sub_u32 s{sCNT}, s{sCNT}, 1\ns_cbranch_scc0 {L}")
        a.label(D)

    def flag_store(soff):
        a("s_mov_b64 exec, 1")
        a(f"buffer_store_dwordx2 {vr(vNON,2)}, v{vL16}, {sr(SWS,4)}, {soff} offen sc1")
        a("s_mov_b64 exec, -1")

    a(f"s_cmp_lt_u32 s{sWV}, 4")
    a("s_cbranch_scc1 L_compute")
    XA, WA, WQA = 16, 20, 24
    sLX, sLW, sOX, sOW = u0, u1, t2, t3
    a("v_lshrrev_b32 v2, 3, v0")
    a(f"s_lshl_b32 s{t0}, s{sTB}, 7\ns_lshl_b32 s{t1}, s{sKQ}, 5\ns_add_u32 s{t0}, s{t0}, s{t1}")
    a(f"v_add_u32 v2, s{t0}, v2")
    a("v_mul_u32_u24 v2, 896, v2")
    a("v_lshrrev_b32 v3, 4, v0\nv_and_b32 v4, 7, v0\nv_xor_b32 v3, v3, v4\nv_lshlrev_b32 v3, 4, v3\nv_xor_b32 v4, 64, v3")
    a(f"v_add_u32 v{XA}, v2, v3\nv_add_u32 v{XA+1}, v2, v4\nv_add_u32 v{XA+1}, 7168, v{XA+1}")
    a(f"v_add_u32 v{XA+2}, 14336, v{XA}\nv_add_u32 v{XA+3}, 14336, v{XA+1}")
    a(f"s_and_b32 s{t0}, s{sG16}, 7\ns_mul_i32 s{t0}, s{t0}, 224\ns_add_u32 s{t0}, s{t0}, 896")
    a(f"s_lshl_b32 s{t1}, s{sKQ}, 6")
    for n in range(4):
        a(f"v_add_u32 v2, s{t1}, v0")
        if n: a(f"v_add_u32 v2, {256*n}, v2")
        a("v_mul_u32_u24 v3, 4682, v2\nv_lshrrev_b32 v3, 16, v3")
        a("v_mul_u32_u24 v4, 14, v3\nv_sub_u32 v4, v2, v4")
        a("v_and_b32 v5, 1, v3\nv_lshlrev_b32 v5, 2, v5\nv_bfe_u32 v6, v3, 1, 2\nv_and_b32 v3, 0x78, v3\nv_or3_b32 v3, v3, v5, v6")
        a("v_mul_u32_u24 v3, 2688, v3\nv_lshl_add_u32 v3, v4, 4, v3")
        a(f"v_add_u32 v{WA+n}, s{t0}, v3")
    a("v_lshrrev_b32 v2, 2, v0\nv_mul_u32_u24 v2, 2688, v2\nv_and_b32 v3, 3, v0\nv_lshl_add_u32 v2, v3, 4, v2")
    a(f"s_mul_i32 s{t0}, s{sH}, 56\ns_and_b32 s{t1}, s{sKQ}, 1\ns_mul_i32 s{t1}, s{t1}, {14*43008}\ns_add_u32 s{t0}, s{t0}, s{t1}")
    a(f"v_add_u32 v{WQA}, s{t0}, v2")
    a(f"v_mov_b32 v{T+3}, 0")
    a("s_waitcnt lgkmcnt(0)")
    a(f"s_lshl_b32 s{sLX}, s{sKQ}, 12")
    a(f"s_lshl_b32 s{sLW}, s{sKQ}, 10")
    srd(a, S1, pX, X_BYTES)
    a(f"s_cmp_lt_u32 s{sG16}, 8")
    a(f"s_cselect_b32 s{S2}, s{pWA}, s{pWB}\ns_cselect_b32 s{S2+1}, s{pWA+1}, s{pWB+1}")
    a(f"s_mov_b32 s{S2+2}, {W_BYTES}\ns_mov_b32 s{S2+3}, 0x00020000")
    a(f"s_cmp_ge_u32 s{sKQ}, 2")
    a("s_cbranch_scc1 L_load3")
    def loader(nw):
        vm = Ctr(a, "vmcnt", 63)
        def issue(c):
            slot = (c % 3) * R_SLOT
            a(f"s_mov_b32 s{sOX}, {c*128}\ns_mov_b32 s{sOW}, {c*64*2688}")
            for n in range(4):
                a(f"s_add_u32 m0, s{sLX}, {slot + n*1024}\ns_nop 0")
                a(f"buffer_load_dwordx4 v{XA+n}, {sr(S1,4)}, s{sOX} offen lds"); vm.issue(c)
                if n < nw:
                    a(f"s_add_u32 m0, s{sLW}, {slot + 16384 + n*4096}\ns_nop 0")
                    a(f"buffer_load_dwordx4 v{WA+n}, {sr(S2,4)}, s{sOW} offen lds"); vm.issue(c)
        def wq(lo, hi):
            for n in range(lo, hi):
                a(f"s_add_u32 m0, s{t0}, {n*1024}\ns_mov_b32 s{t1}, {n*43008}")
                a(f"buffer_load_dwordx4 v{WQA}, {sr(S3,4)}, s{t1} offen lds"); vm.issue("q")
        st(1)
        issue(0); issue(1)
        p = pWA if nw == 4 else pWB
        srd(a, S3, p, W_BYTES)
        common_srds()
        if nw == 4:
            srd(a, S4, pDBG, 256)
            L = lab("L_notag")
            a(f"s_or_b32 s{t0}, s2, s{sKQ}\ns_cmp_lg_u32 s{t0}, 0\ns_cbranch_scc1 {L}")
            a(f"s_memrealtime s[{sNON}:{sNON+1}]\ns_waitcnt lgkmcnt(0)")
            a(f"s_or_b32 s{sNON}, s{sNON}, 1\ns_xor_b32 s{sNON+1}, s{sNON+1}, 0x5bd1e995")
            a(f"v_mov_b32 v{vNON}, s{sNON}\nv_mov_b32 v{vNON+1}, s{sNON+1}")
            a("s_mov_b64 exec, 1")
            a(f"buffer_store_dwordx2 {vr(vNON,2)}, v{T+3}, {sr(S4,4)}, 0 offen sc1")
            a("s_mov_b64 exec, -1")
            a("s_waitcnt vmcnt(0)")
            a.label(L)
        else:
            srd(a, S4, pGW, 896)
            a(f"s_mov_b32 m0, {L_GW}\ns_nop 0")
            a(f"buffer_load_dwordx4 v{vL16}, {sr(S4,4)}, 0 offen lds"); vm.issue("gw")
            srd(a, S4, pDBG, 256)
        for c in range(7):
            vm.wait(c)
            if c in (0, 3, 6): st(2 + c // 3)
            a("s_barrier")
            if c + 2 <= 6: issue(c + 2)
            if c == 5:
                a(f"s_mul_i32 s{t0}, s{sKQ}, 14336\ns_add_u32 s{t0}, s{t0}, {L_WQ}")
                wq(0, 7)
            if c == 6: wq(7, 14)
        a("s_branch L_load_join")
    loader(4)
    a.label("L_load3")
    loader(3)
    a.label("L_load_join")
    phase2_setup()
    get_nonce(False)
    st(5)
    a("s_barrier")
    a(f"s_lshl_b32 s{t0}, s{sKQ}, 2\ns_lshr_b32 s{t1}, s{sH}, 2\ns_add_u32 s{t0}, s{t0}, s{t1}\ns_lshl_b32 s{t0}, s{t0}, 9\ns_add_u32 s{t0}, s{t0}, {FL1_OFF}")
    a(f"v_lshlrev_b32 v{T}, 3, v0")
    a(f"s_and_b32 s{t1}, s{sKQ}, 1\ns_lshl_b32 s{t1}, s{t1}, 11")
    a(f"s_cmp_ge_u32 s{sKQ}, 2")
    a("s_cbranch_scc1 L_pollB")
    a(f"s_lshl_b32 s{u0}, s{sTB}, 2\ns_sub_u32 s{u0}, s{u0}, 8")
    a(f"v_subrev_u32 v{T+1}, s{u0}, v0")
    a(f"v_cmp_gt_u32 s[{t2}:{t3}], 12, v{T+1}")
    a(f"s_lshl_b32 s{u0}, s{u0}, 12\ns_add_u32 s{u0}, s{u0}, s{t1}")
    a(f"v_add_u32 v{T+1}, s{u0}, v{vL16}")
    poll(T, f"s{t0}", t2, RED)
    st(6)
    for i in range(12):
        a(f"s_add_u32 m0, s{t1}, {L_AREG + i*4096}\ns_nop 0")
        a(f"buffer_load_dwordx4 v{T+1}, {sr(SKA,4)}, 0 offen sc1 lds")
        a(f"buffer_load_dwordx4 v{T+1}, {sr(SKA,4)}, 0 offen offset:1024 sc1 lds")
        a(f"v_add_u32 v{T+1}, 4096, v{T+1}")
    a("s_waitcnt vmcnt(0)")
    a("s_branch L_phase2")
    a.label("L_pollB")
    a(f"v_add_u32 v{T+1}, s{t1}, v{vL16}")
    poll(T, f"s{t0}", None, RED)
    st(6)
    for s in range(2):
        if s == 0: a(f"s_lshl_b32 s{u0}, s{sTB}, 12")
        else: a(f"s_mov_b32 s{u0}, s{sOFF}")
        for kq in range(4):
            a(f"s_add_u32 m0, s{t1}, {L_S[s] + kq*4096}\ns_nop 0")
            a(f"buffer_load_dwordx4 v{T+1}, {sr(SKB,4)}, s{u0} offen sc1 lds")
            a(f"buffer_load_dwordx4 v{T+1}, {sr(SKB,4)}, s{u0} offen offset:1024 sc1 lds")
            a(f"s_add_u32 s{u0}, s{u0}, 65536")
    a("s_branch L_phase2")

    a.label("L_compute")
    vST, vVC, XAD, WAD, WQD, GWD = 2, 3, 4, 8, 14, 15
    XR = 16; ACC = [128 + 16*u for u in range(4)]
    WF = [[192 + 16*b + 4*u for u in range(4)] for b in range(2)]
    PK = 224; GWF = [240, 244]; DAC = 248
    a("v_and_b32 v9, 31, v0\nv_lshrrev_b32 v10, 5, v0\nv_bfe_u32 v11, v0, 1, 3")
    a(f"s_lshl_b32 s{t0}, s{sKQ}, 12")
    a(f"v_lshlrev_b32 v12, 7, v9\nv_add_u32 v12, s{t0}, v12")
    for ks in range(4):
        a(f"v_or_b32 v13, {2*ks}, v10\nv_xor_b32 v13, v13, v11\nv_lshl_add_u32 v{XAD+ks}, v13, 4, v12")
    a("v_bfe_u32 v12, v0, 4, 1\nv_lshlrev_b32 v12, 5, v12\nv_and_b32 v13, 3, v0\nv_lshl_add_u32 v12, v13, 3, v12")
    a("v_bfe_u32 v13, v0, 2, 2")
    a("v_lshl_add_u32 v11, v10, 2, v13")
    a(f"v_mul_u32_u24 v11, 448, v11\nv_add_u32 v{WAD}, v11, v12")
    a("v_lshl_add_u32 v11, v10, 3, v13")
    a(f"v_lshl_add_u32 v11, v11, 6, v12\nv_add_u32 v{WQD}, {L_WQ}, v11")
    a(f"v_lshlrev_b32 v{GWD}, 4, v10\nv_add_u32 v{GWD}, {L_GW}, v{GWD}")
    a(f"v_mov_b32 v{vVC}, 0")
    a("s_mov_b32 exec_lo, 0x10000000\ns_mov_b32 exec_hi, 0x10000000")
    a(f"v_mov_b32 v{vVC}, 0x3f803f80")
    a("s_mov_b64 exec, -1")
    a("v_and_b32 v11, 0x33, v0\nv_bfe_u32 v12, v0, 2, 1\nv_lshl_or_b32 v11, v12, 3, v11\nv_bfe_u32 v12, v0, 3, 1\nv_lshl_or_b32 v11, v12, 2, v11")
    a(f"v_lshlrev_b32 v{vST}, 4, v11")
    a(f"v_mov_b32 v{T+3}, 0")
    for r in range(4): a(f"v_mov_b32 v{DAC+r}, 0")
    a("s_waitcnt lgkmcnt(0)")
    common_srds()
    srd(a, S4, pDBG, 256)
    a(f"s_lshr_b32 s{t0}, s{sG16}, 3\ns_lshl_b32 s{t0}, s{t0}, 2\ns_and_b32 s{t1}, s{sG16}, 3\ns_add_u32 s{t0}, s{t0}, s{t1}")
    a(f"s_lshl_b32 s{t0}, s{t0}, 8\ns_add_u32 s{t0}, s{t0}, s{sTAt}\ns_lshl_b32 s{u0}, s{t0}, 12")
    a(f"s_lshl_b32 s{u1}, s{sG16}, 6\ns_add_u32 s{u1}, s{u1}, s{sTAt}\ns_lshl_b32 s{u1}, s{u1}, 3\ns_add_u32 s{u1}, s{u1}, {FL1_OFF}")
    a(f"s_bitcmp1_b32 s{sG16}, 2")
    a("s_cbranch_scc1 L_1a_V")
    def reads1a(g):
        b, ks = g & 1, g & 3
        r = [f"ds_read_b128 {vr(XR+4*g,4)}, v{XAD+ks}"]
        for u in range(4):
            for e in range(2):
                r.append(f"ds_read_b64_tr_b16 {vr(WF[b][u]+2*e,2)}, v{WAD} offset:{16384 + ks*3584 + e*224 + u*56}")
        return r
    for ty in "KV":
        a.label("L_1a_" + ty)
        st(1)
        a("s_barrier")
        st(2)
        for x in reads1a(0): a(x)
        for g in range(28):
            b = g & 1
            a("s_waitcnt lgkmcnt(0)")
            nxt = []
            if g + 1 < 28:
                if (g + 1) & 3 == 0:
                    a("s_barrier")
                    c = (g + 1) >> 2
                    if c in (3, 6): st(2 + c // 3)
                    d = R_SLOT if c % 3 else -2 * R_SLOT
                    for r in range(5): a(f"v_add_u32 v{XAD+r}, {d & 0xffffffff}, v{XAD+r}")
                    if c == 5: a(f"buffer_load_dwordx2 {vr(vNON,2)}, v{T+3}, {sr(S4,4)}, 0 offen sc1")
                nxt = reads1a(g + 1)
            cut = [0, 3, 6, 9, 9]
            for u in range(4):
                D = vr(ACC[u], 16); C = "0" if g == 0 else D
                X, W = vr(XR + 4*g, 4), vr(WF[b][u], 4)
                a(f"v_mfma_f32_32x32x16_bf16 {D}, {X}, {W}, {C}" if ty == "V" else f"v_mfma_f32_32x32x16_bf16 {D}, {W}, {X}, {C}")
                for x in nxt[cut[u]:cut[u+1]]: a(x)
        st(5)
        get_nonce(True)
        a("s_nop 3")
        if ty == "V": a(f"s_add_u32 s{u0}, s{u0}, 2048")
        for u in range(4):
            D = ACC[u]; P = PK + 8 * (u & 1)
            for r in range(8): a(f"v_cvt_pk_bf16_f32 v{P+r}, v{D+2*r}, v{D+2*r+1}")
            if ty == "V":
                a("s_mov_b32 exec_lo, 0xf0000000\ns_mov_b32 exec_hi, 0xf0000000")
                for r in range(8): a(f"v_mov_b32 v{P+r}, v{vVC}")
            else:
                a(f"s_mov_b32 exec_lo, 0\nv_mov_b32 v{P+6}, 0\nv_mov_b32 v{P+7}, 0")
            a("s_mov_b64 exec, -1")
            va = vST if ty == "K" else vL16
            a(f"buffer_store_dwordx4 {vr(P,4)}, v{va}, {sr(SWS,4)}, s{u0} offen sc1")
            a(f"buffer_store_dwordx4 {vr(P+4,4)}, v{va}, {sr(SWS,4)}, s{u0} offen offset:1024 sc1")
            if u < 3: a(f"s_add_u32 s{u0}, s{u0}, 262144")
        if ty == "K": a("s_branch L_1a_join")
    a.label("L_1a_join")
    st(6)
    a(f"s_mov_b32 s{pX}, s{u1}")
    phase2_setup()
    a("s_waitcnt vmcnt(0)")
    flag_store(f"s{pX}")
    st(7)
    a("s_barrier")
    WQF = [[192 + 8*b + 4*m for m in range(2)] for b in range(2)]
    def reads1b(g):
        b = g & 1
        r = []
        for m in range(2):
            for e in range(2):
                r.append(f"ds_read_b64_tr_b16 {vr(WQF[b][m]+2*e,2)}, v{WQD} offset:{m*28672 + g*1024 + e*256}")
        r.append(f"ds_read_b128 {vr(GWF[b],4)}, v{GWD} offset:{g*32}")
        return r
    for x in reads1b(0): a(x)
    for g in range(28):
        b = g & 1
        nxt = reads1b(g + 1) if g + 1 < 28 else []
        for x in nxt: a(x)
        a(f"s_waitcnt lgkmcnt({len(nxt)})")
        for m in range(2):
            D = vr(ACC[m], 16)
            a(f"v_mfma_f32_32x32x16_bf16 {D}, {vr(WQF[b][m],4)}, {vr(XR+4*g,4)}, {'0' if g == 0 else D}")
            for r in (2*m, 2*m+1): a(f"v_dot2c_f32_bf16 v{DAC+r}, v{XR+4*g+r}, v{GWF[b]+r}")
    a("s_nop 2")
    a(f"v_add_f32 v{DAC}, v{DAC}, v{DAC+1}\nv_add_f32 v{DAC+2}, v{DAC+2}, v{DAC+3}\nv_add_f32 v{DAC}, v{DAC}, v{DAC+2}")
    a(f"v_mov_b32 v{DAC+1}, v{DAC}\ns_nop 1\nv_permlane32_swap_b32 v{DAC}, v{DAC+1}\ns_nop 1\nv_add_f32 v{DAC}, v{DAC}, v{DAC+1}")
    a(f"v_cvt_pk_bf16_f32 v{DAC}, v{DAC}, v{DAC}\nv_lshlrev_b32 v{DAC}, 16, v{DAC}")
    a(f"v_mul_f32 v{DAC}, 0x{LOG2E ^ 0x80000000:08x}, v{DAC}\nv_exp_f32 v{DAC}, v{DAC}\ns_nop 0")
    a(f"v_add_f32 v{DAC}, 1.0, v{DAC}\nv_rcp_f32 v{DAC}, v{DAC}\ns_nop 0")
    a(f"v_cvt_pk_bf16_f32 v{DAC}, v{DAC}, v{DAC}\nv_lshlrev_b32 v{DAC}, 16, v{DAC}")
    a(f"v_sub_f32 v{DAC+1}, 1.0, v{DAC}\nv_cvt_pk_bf16_f32 v{DAC+1}, v{DAC+1}, v{DAC+1}\nv_lshlrev_b32 v{DAC+1}, 16, v{DAC+1}")
    a(f"s_lshl_b32 s{t0}, s{sKQ}, 8\ns_add_u32 s{t0}, s{t0}, {L_G}")
    a(f"v_lshl_add_u32 v{T}, v{vN}, 3, s{t0}")
    a(f"ds_write_b64 v{T}, {vr(DAC,2)}")
    a(f"s_lshl_b32 s{t0}, s{sKQ}, 11\ns_add_u32 s{t0}, s{t0}, {L_QX}")
    a(f"v_add_u32 v{T+1}, s{t0}, v{vL16}")
    a(f"v_mov_b32 v{T+2}, 0x{QSCALE:08x}")
    for m in range(2):
        D = ACC[m]; P = 192 + 8*m
        for r in range(16): a(f"v_mul_f32 v{D+r}, v{T+2}, v{D+r}")
        for r in range(8): a(f"v_cvt_pk_bf16_f32 v{P+r}, v{D+2*r}, v{D+2*r+1}")
        a(f"s_mov_b32 exec_lo, 0\nv_mov_b32 v{P+6}, 0\nv_mov_b32 v{P+7}, 0\ns_mov_b64 exec, -1")
        a(f"ds_write_b128 v{T+1}, {vr(P,4)} offset:{m*8192}")
        a(f"ds_write_b128 v{T+1}, {vr(P+4,4)} offset:{m*8192+1024}")
    a("s_waitcnt lgkmcnt(0)")

    a.label("L_phase2")
    st(8)
    a("s_barrier")
    lg = Ctr(a, "lgkmcnt", 15)
    def btile(s, q): return dict(key=("B", s), Q=QB[q], O=O[f"B{q}"], mask=False, addr=[vBA0, vBA1][(s % 4) >> 1], off=(s & 1) * 16384)
    def atile(i, m): return dict(key=("A", i), Q=QA, O=O["A"], mask=m, addr=vAA, off=i * 4096)
    Btiles = [btile(s, q) for s in range(16) for q in range(2)]
    FOFF = {"K0": 0, "K1": 1024, "V0": 2048, "V1": 3072}
    def load(lg, f, t):
        a(f"ds_read_b128 {vr(FR[f],4)}, v{t['addr']} offset:{t['off'] + FOFF[f]}"); lg.issue(f)
    def reload_after(lg, f, tiles, i):
        if i + 1 < len(tiles) and tiles[i+1]["key"] != tiles[i]["key"]: load(lg, f, tiles[i+1])
    a(f"s_lshl_b32 s{t0}, s{sKQ}, 11\ns_add_u32 s{t0}, s{t0}, {L_QX}")
    a(f"v_add_u32 v{T}, s{t0}, v{vL16}")
    a(f"s_lshl_b32 s{t0}, s{sQH}, 12\ns_add_u32 s{t0}, s{t0}, {L_QX + 8192}")
    a(f"v_add_u32 v{T+1}, s{t0}, v{vL16}")
    at0 = atile(0, False)
    for j in range(2):
        a(f"ds_read_b128 {vr(QA+4*j,4)}, v{T} offset:{j*1024}"); lg.issue(f"K{j}")
        load(lg, f"K{j}", at0)
    for f in ("V0", "V1"): load(lg, f, at0)
    for q in range(2):
        for j in range(2):
            a(f"ds_read_b128 {vr(QB[q]+4*j,4)}, v{T+1} offset:{q*2048+j*1024}"); lg.issue("QB")
    a(f"s_lshl_b32 s{t0}, s{sKQ}, 8\ns_add_u32 s{t0}, s{t0}, {L_G}")
    a(f"v_lshl_add_u32 v{T+2}, v{vN}, 3, s{t0}")
    a(f"ds_read_b32 v{vGA}, v{T+2}"); lg.issue("QB")
    a(f"s_and_b32 s{t0}, s{sTBt}, 3\ns_lshl_b32 s{t0}, s{t0}, 8\ns_add_u32 s{t0}, s{t0}, {L_G + 4}")
    a(f"v_lshl_add_u32 v{T+2}, v{vN}, 3, s{t0}")
    a(f"ds_read_b32 v{vGB}, v{T+2}"); lg.issue("QB")

    def dmaB(s):
        return [f"s_add_u32 m0, s{sM0}, {L_S[s % 4]}\ns_add_u32 s{sOFF}, s{sOFF}, 4096\ns_and_b32 s{sOFF}, s{sOFF}, 0xffff",
                f"buffer_load_dwordx4 v{vDB}, {sr(SKB,4)}, s{sOFF} offen sc1 lds",
                f"buffer_load_dwordx4 v{vDB}, {sr(SKB,4)}, s{sOFF} offen offset:1024 sc1 lds"]
    def sbuf(tiles, i): return S[(len(tiles) - i) & 1]
    def qk(lg, tiles, i, j):
        t = tiles[i]; D = vr(sbuf(tiles, i), 16)
        lg.wait(f"K{j}")
        C = D if j == 1 else (vr(MASK, 16) if t["mask"] else "0")
        a(f"v_mfma_f32_32x32x16_bf16 {D}, {vr(FR[f'K{j}'],4)}, {vr(t['Q']+4*j,4)}, {C}")
        reload_after(lg, f"K{j}", tiles, i)
    def pv(lg, tiles, i, j, merge=()):
        t = tiles[i]
        lg.wait([f"V{j}"] + list(merge))
        a(f"v_smfmac_f32_32x32x32_bf16 {vr(t['O'],16)}, {vr(FR[f'V{j}'],4)}, {vr(sbuf(tiles,i)+8*j,8)}, v{vIDX}")
        reload_after(lg, f"V{j}", tiles, i)
    def slot(lg, tiles, i, extra=()):
        s0 = sbuf(tiles, i)
        extra = list(extra)
        xp = [3, 4, 6, 7, 9, 10, 11, 13, 14, 15]
        per = -(-len(extra) // len(xp)) if extra else 0
        isB1 = tiles[i]["key"][0] == "B" and tiles[i]["Q"] == QB[1]
        for r in range(16):
            if r == 2 and i > 0: pv(lg, tiles, i - 1, 1, merge=("K0", "K1") if isB1 else ())
            if r == 5 and i + 1 < len(tiles): qk(lg, tiles, i + 1, 0)
            if r == 8 and i + 1 < len(tiles): qk(lg, tiles, i + 1, 1)
            if r == 12: pv(lg, tiles, i, 0)
            if r in xp:
                for _ in range(per):
                    if extra:
                        x = extra.pop(0)
                        x() if callable(x) else a(x)
            a(f"v_exp_f32 v{s0+r}, v{s0+r}")
        assert not extra
    a(f"s_cmp_lg_u32 s{sQH}, 0")
    a("s_cbranch_scc1 L_A1")
    states = []
    for hf in range(2):
        if hf: a.label("L_A1")
        nA = 5 - hf
        tiles = [atile(i, i == (0 if hf == 0 else 3)) for i in range(nA)] + Btiles
        l2 = lg.clone(a); vm = Ctr(a, "vmcnt", 63)
        qk(l2, tiles, 0, 0); qk(l2, tiles, 0, 1)
        a("s_nop 11")
        for i in range(nA):
            ex = []
            if i == nA - 2:
                l2.wait("QB")
                if hf: a("s_waitcnt vmcnt(2)")
                a("s_barrier")
            if i == 0:
                ex = dmaB(2)
            slot(l2, tiles, i, ex)
        states.append(list(l2.q))
        if hf == 0: a("s_branch L_B")
    assert states[0] == states[1], states
    a.label("L_B")
    st(9)
    lg.q = states[0]
    vm = Ctr(a, "vmcnt", 63); vm.issue("B2"); vm.issue("B2")
    tiles = [atile(3, True)] + Btiles
    RA, LA = RED, RED + 16
    vDW = 14
    def finalize(tag, R, L, G, sOdd, sTile, mat):
        o = []
        o.append(f"v_mov_b32 v{T}, v{L}")
        o += [f"v_fma_f32 v{T}, v{R+r}, 0, v{T}" for r in range(8)]
        o.append(f"v_cmp_lt_f32 vcc, 0x{f32bits(2.0**-40):08x}, v{T}\ns_mov_b64 s[{t2}:{t3}], vcc\n"
                 f"v_cmp_gt_f32 vcc, 0x{f32bits(2.0**60):08x}, v{T}\ns_and_b64 vcc, vcc, s[{t2}:{t3}]\n"
                 f"s_cmp_eq_u64 vcc, -1\ns_cbranch_scc0 L_slow{tag}")
        o.append(lambda: a.label(f"L_fin{tag}"))
        o.append(f"v_rcp_f32 v{L}, v{L}\ns_and_b32 s{t0}, s{sOdd}, 1")
        o.append(f"v_mul_f32 v{L}, v{L}, v{G}")
        o += [f"v_mul_f32 v{R+r}, v{R+r}, v{L}" for r in range(8)]
        o += [f"v_cvt_pk_bf16_f32 v{R+r}, v{R+2*r}, v{R+2*r+1}" for r in range(4)]
        o.append(f"s_cmp_lg_u32 s{t0}, 0\ns_cselect_b32 exec_hi, -1, 0\ns_mov_b32 exec_lo, 0\nv_mov_b32 v{R+2}, 0\nv_mov_b32 v{R+3}, 0\ns_mov_b64 exec, -1")
        o.append(f"s_lshl_b32 s{t1}, s{sTile}, 5\ns_add_u32 s{t1}, s{t1}, s{sH}\ns_lshl_b32 s{t1}, s{t1}, 1\ns_add_u32 s{t1}, s{t1}, s{t0}\n"
                 f"s_lshl_b32 s{t1}, s{t1}, 10\ns_add_u32 s{t1}, s{t1}, {OF_OFF + mat*16*2048}\n"
                 f"buffer_store_dwordx4 {vr(R,4)}, v{vL16}, {sr(SWS,4)}, s{t1} offen sc1")
        return o
    def oflag(sOdd, sTile, mat):
        a(f"s_lshl_b32 s{t1}, s{sTile}, 4\ns_add_u32 s{t1}, s{t1}, s{sH}\ns_lshl_b32 s{t1}, s{t1}, 1\ns_and_b32 s{t0}, s{sOdd}, 1\ns_add_u32 s{t1}, s{t1}, s{t0}")
        a(f"s_lshl_b32 s{t1}, s{t1}, 3\ns_add_u32 s{t1}, s{t1}, {FLO_OFF + mat*16384}")
        flag_store(f"s{t1}")
    sTP, sCB = pX, pX + 1
    def wo_setup():
        a(f"s_and_b32 s{t0}, s2, 7\ns_lshl_b32 s{t0}, s{t0}, 2\ns_bfe_u32 s{t1}, s2, 0x20003\ns_add_u32 s{sTP}, s{t0}, s{t1}\ns_lshr_b32 s{sCB}, s2, 5")
        srd(a, S1, pWOA, WO_BYTES); srd(a, S2, pWOB, WO_BYTES); srd(a, S3, pOUT, X_BYTES)
        a(f"v_lshrrev_b32 v{T}, 3, v0\ns_mul_i32 s{t0}, s{sWV}, 56\nv_add_u32 v{T}, s{t0}, v{T}\nv_mul_u32_u24 v{T}, 896, v{T}")
        a(f"v_bfe_u32 v{T+1}, v0, 4, 1\nv_lshlrev_b32 v{T+1}, 2, v{T+1}\nv_and_b32 v{T+2}, 7, v0\nv_xor_b32 v{T+1}, v{T+1}, v{T+2}")
        a(f"v_lshl_add_u32 v{T}, v{T+1}, 4, v{T}\ns_min_u32 s{t0}, s{sCB}, 6\ns_lshl_b32 s{t0}, s{t0}, 7\nv_add_u32 v{vDW}, s{t0}, v{T}")
        a(f"s_mul_i32 s{pWA}, s{sWV}, 7168")
    def dmaW(n, base, SR):
        return f"s_add_u32 m0, s{pWA}, {base + n*1024}\ns_mov_b32 s{t0}, {n*7168}\nbuffer_load_dwordx4 v{vDW}, {sr(SR,4)}, s{t0} offen lds"
    def V(x, tag):
        def f():
            a(x); vm.issue(tag)
        return f
    def Lg(x, tag):
        def f():
            a(x); lg.issue(tag)
        return f
    for s in range(16):
        ex0, ex1 = [], []
        if s >= 1: vm.wait(f"B{s+1}")
        if s == 2: lg.wait("wa")
        a("s_barrier")
        if s == 8: st(10)
        if s + 3 < 16:
            d = dmaB(s + 3)
            ex0 += [d[0], V(d[1], f"B{s+3}"), V(d[2], f"B{s+3}")]
        if s == 0:
            ex1 += [f"s_lshl_b32 s{t0}, s{sKQ}, 13\ns_lshl_b32 s{t1}, s{sQH}, 11\ns_add_u32 s{t1}, s{t1}, s{t0}",
                    f"v_add_u32 v{T+1}, s{t1}, v{vL16}",
                    f"s_lshl_b32 s{t1}, s{sQH}, 12\ns_add_u32 s{t1}, s{t1}, s{t0}",
                    f"v_add_u32 v{T+2}, s{t1}, v{vL16}",
                    f"s_add_u32 s{t0}, s{t0}, {4096 + 1536}",
                    f"v_lshl_add_u32 v{T+3}, v{vN}, 4, s{t0}"]
        if s == 1:
            ex1 += [Lg(f"ds_write_b128 v{T+1}, {vr(O['A']+8*o+4*k,4)} offset:{L_SCRA + o*4096 + k*1024}", "wa") for o in range(2) for k in range(2)]
        if s == 2:
            for src in range(2):
                ex1 += [Lg(f"ds_read_b128 {vr(RA+8*src+4*k,4)}, v{T+2} offset:{L_SCRA + src*2048 + k*1024}", "ra") for k in range(2)]
                ex1 += [Lg(f"ds_read_b32 v{LA+src}, v{T+3} offset:{L_SCRA + src*2048}", "ra")]
        if s == 3:
            ex0 += [lambda: lg.wait("ra")] + [f"v_add_f32 v{RA+r}, v{RA+r}, v{RA+8+r}" for r in range(8)] + [f"v_add_f32 v{LA}, v{LA}, v{LA+1}"]
            f = finalize("A", RA, LA, vGA, sQH, sTAt, 0)
            ex1 += f[:-1] + [V(f[-1], "oa")]
        if s == 4: ex1 += [wo_setup]
        if s == 6:
            def fl():
                vm.wait("oa"); oflag(sQH, sTAt, 0); vm.issue("fa")
            ex1 += [fl]
        if 5 <= s <= 11: ex1 += [V(dmaW(s - 5, L_WOA, S1), "woa")]
        slot(lg, tiles, 1 + 2*s, ex0)
        slot(lg, tiles, 2 + 2*s, ex1)
    a("s_nop 1")
    pv(lg, tiles, len(tiles) - 1, 1)
    assert not lg.q, lg.q
    st(11)
    RB, LB = RED, RED + 32
    a(f"s_lshl_b32 s{t0}, s{sQH}, 15\ns_lshl_b32 s{t1}, s{sKQ}, 11\ns_add_u32 s{t0}, s{t0}, s{t1}\ns_add_u32 s{t0}, s{t0}, {L_SCRB}")
    a(f"v_add_u32 v{T+1}, s{t0}, v{vL16}")
    a(f"s_lshl_b32 s{t0}, s{sWV}, 13\ns_add_u32 s{t1}, s{t0}, {L_SCRB}")
    a(f"v_add_u32 v{T+2}, s{t1}, v{vL16}")
    a(f"s_or_b32 s{t0}, s{t0}, 8192\ns_add_u32 s{t0}, s{t0}, {L_SCRB + 1536}")
    a(f"v_lshl_add_u32 v{T+3}, v{vN}, 4, s{t0}")
    vm.wait("woa")
    a("s_barrier")
    for o in range(4):
        for k in range(2):
            a(f"ds_write_b128 v{T+1}, {vr(O['B0']+8*o+4*k,4)} offset:{o*8192+k*1024}")
    a("s_waitcnt lgkmcnt(0)")
    a("s_barrier")
    for src in range(4):
        for k in range(2):
            a(f"ds_read_b128 {vr(RB+8*src+4*k,4)}, v{T+2} offset:{src*2048+k*1024}")
        a(f"ds_read_b32 v{LB+src}, v{T+3} offset:{src*2048}")
    a("s_waitcnt lgkmcnt(6)")
    for r in range(8): a(f"v_add_f32 v{RB+r}, v{RB+r}, v{RB+8+r}")
    a(f"v_add_f32 v{LB}, v{LB}, v{LB+1}")
    a("s_waitcnt lgkmcnt(0)")
    for r in range(8): a(f"v_add_f32 v{RB+16+r}, v{RB+16+r}, v{RB+24+r}")
    a(f"v_add_f32 v{LB+2}, v{LB+2}, v{LB+3}")
    for r in range(8): a(f"v_add_f32 v{RB+r}, v{RB+r}, v{RB+16+r}")
    a(f"v_add_f32 v{LB}, v{LB}, v{LB+2}")
    for x in finalize("B", RB, LB, vGB, sKQ, sTBt, 1):
        x() if callable(x) else a(x)
    a("s_barrier")
    a(f"s_cmp_eq_u32 s{sCB}, 7")
    a("s_cbranch_scc0 L_p3")
    a("s_waitcnt vmcnt(0)")
    oflag(sKQ, sTBt, 1)
    a("s_branch L_fini")
    a.label("L_p3")
    for n in range(7): a(dmaW(n, L_WOB, S2))
    a("s_waitcnt vmcnt(7)")
    oflag(sKQ, sTBt, 1)
    st(12)
    ACC3 = [16, 32]; OFR = 48; W3 = [[80, 84], [128, 132]]
    vT3 = [2, 3]; vT3b = [4, 5]; vFL = 8
    a(f"v_bfe_u32 v{T}, v0, 2, 2\nv_lshlrev_b32 v{T}, 7, v{T}")
    a(f"v_bfe_u32 v{T+1}, v0, 4, 1\nv_lshl_add_u32 v{T}, v{T+1}, 5, v{T}")
    a(f"v_and_b32 v{T+1}, 3, v0\nv_lshl_add_u32 v{T}, v{T+1}, 3, v{T}")
    a(f"v_bfe_u32 v{T+1}, v0, 3, 1\nv_lshl_add_u32 v{T}, v{T+1}, 6, v{T}")
    a(f"s_mul_i32 s{t0}, s{sKQ}, 14336")
    a(f"v_add_u32 v{vT3b[0]}, s{t0}, v{T}\nv_xor_b32 v{T}, 64, v{T}\nv_add_u32 v{vT3b[1]}, s{t0}, v{T}")
    a(f"v_lshrrev_b32 v{T+1}, 5, v0")
    for c in range(2): a(f"v_lshl_add_u32 v{vT3[c]}, v{T+1}, 9, v{vT3b[c]}")
    a(f"v_and_b32 v{vFL}, 7, v0\nv_lshlrev_b32 v{vFL}, 3, v{vFL}")
    sT3, sFO, sOO = pWA + 1, pWB, pWB + 1
    a(f"s_lshl_b32 s{sT3}, s{sTP}, 1\ns_add_u32 s{sT3}, s{sT3}, s{sQH}")
    a(f"s_lshl_b32 s{t0}, s{sT3}, 8\ns_lshl_b32 s{t1}, s{sKQ}, 6\ns_add_u32 s{t0}, s{t0}, s{t1}\ns_add_u32 s{sFO}, s{t0}, {FLO_OFF}")
    a(f"s_lshl_b32 s{t0}, s{sT3}, 16\ns_lshl_b32 s{t1}, s{sKQ}, 13\ns_add_u32 s{t0}, s{t0}, s{t1}\ns_add_u32 s{sOO}, s{t0}, {OF_OFF}")
    for mat in range(2):
        poll(vFL, f"s{sFO}", None, T)
        if mat == 1: st(13)
        a(f"s_add_u32 s{t0}, s{sOO}, 4096")
        for kk in range(8):
            a(f"buffer_load_dwordx4 {vr(OFR+4*kk,4)}, v{vL16}, {sr(SWS,4)}, s{sOO if kk < 4 else t0} offen offset:{(kk&3)*1024} sc1")
        if mat == 1:
            a("s_barrier")
            for r in vT3 + vT3b: a(f"v_add_u32 v{r}, {L_WOB}, v{r}")
        def reads3(kk):
            b = kk & 1; hd, j = kk >> 1, kk & 1
            return [f"ds_read_b64_tr_b16 {vr(W3[b][ct]+2*e,2)}, v{vT3b[ct] if (j == 1 and e == 1) else vT3[ct]} offset:{(28*hd+16*j+8*e)*128}"
                    for ct in range(2) for e in range(2)]
        for x in reads3(0): a(x)
        for kk in range(8):
            nxt = reads3(kk + 1) if kk < 7 else []
            for x in nxt: a(x)
            a(f"s_waitcnt vmcnt({7-kk}) lgkmcnt({len(nxt)})")
            for ct in range(2):
                D = vr(ACC3[ct], 16)
                a(f"v_mfma_f32_32x32x16_bf16 {D}, {vr(W3[kk&1][ct],4)}, {vr(OFR+4*kk,4)}, {'0' if (kk == 0 and mat == 0) else D}")
        if mat == 0:
            a(f"s_add_u32 s{sFO}, s{sFO}, 16384\ns_add_u32 s{sOO}, s{sOO}, 32768")
    st(14)
    a(f"s_lshl_b32 s{t0}, s{sQH}, 15\ns_lshl_b32 s{t1}, s{sKQ}, 11\ns_add_u32 s{t0}, s{t0}, s{t1}")
    a(f"v_add_u32 v{T+1}, s{t0}, v{vL16}")
    a(f"s_lshl_b32 s{t0}, s{sWV}, 13")
    a(f"v_add_u32 v{T+2}, s{t0}, v{vL16}")
    a(f"s_lshl_b32 s{t0}, s{sT3}, 5\nv_add_u32 v{T+3}, s{t0}, v{vN}\nv_mul_u32_u24 v{T+3}, 896, v{T+3}")
    a(f"v_lshrrev_b32 v{T}, 5, v0\nv_lshl_add_u32 v{T+3}, v{T}, 4, v{T+3}")
    a(f"s_lshl_b32 s{t0}, s{sCB}, 7\ns_lshl_b32 s{t1}, s{sKQ}, 5\ns_add_u32 s{t0}, s{t0}, s{t1}")
    a("s_barrier")
    for o in range(4):
        for k in range(2):
            a(f"ds_write_b128 v{T+1}, {vr(ACC3[0]+8*o+4*k,4)} offset:{L_SCR3 + o*8192+k*1024}")
    a("s_waitcnt lgkmcnt(0)")
    a("s_barrier")
    R = 48
    for src in range(4):
        for k in range(2):
            a(f"ds_read_b128 {vr(R+8*src+4*k,4)}, v{T+2} offset:{L_SCR3 + src*2048+k*1024}")
    a("s_waitcnt lgkmcnt(4)")
    for r in range(8): a(f"v_add_f32 v{R+r}, v{R+r}, v{R+8+r}")
    a("s_waitcnt lgkmcnt(0)")
    for r in range(8): a(f"v_add_f32 v{R+16+r}, v{R+16+r}, v{R+24+r}")
    for r in range(8): a(f"v_add_f32 v{R+r}, v{R+r}, v{R+16+r}")
    for r in range(4): a(f"v_cvt_pk_bf16_f32 v{R+8+r}, v{R+2*r}, v{R+2*r+1}")
    a("s_nop 1")
    a(f"v_permlane32_swap_b32 v{R+8}, v{R+10}\nv_permlane32_swap_b32 v{R+9}, v{R+11}")
    a(f"buffer_store_dwordx4 {vr(R+8,4)}, v{T+3}, {sr(S3,4)}, s{t0} offen")
    a.label("L_fini")
    st.dump()
    a.label("L_end")
    a("s_endpgm")

    def slow(tag, R, L, SK, sOdd, sTile, mat):
        SS, OO, KF, VF, Q, M, DL, NI = 128, 144, 192, 200, 240, 248, 249, 251
        sT, sT1, sKO, sT0 = t0, t1, u0, u1
        a.label(f"L_slow{tag}")
        if mat == 0:
            for r in range(8): a(f"v_mov_b32 v{Q+r}, v{QA+r}")
            a(f"s_sub_i32 s{sT0}, s{sTile}, 8\ns_max_i32 s{sT0}, s{sT0}, 0\ns_add_u32 s{sT1}, s{sTile}, 1")
        else:
            for r in range(8): a(f"v_mov_b32 v{Q+r}, v{QB[0]+r}")
            a(f"s_bitcmp1_b32 s{sKQ}, 1\ns_cbranch_scc0 L_slowB_q")
            for r in range(8): a(f"v_mov_b32 v{Q+r}, v{QB[1]+r}")
            a.label("L_slowB_q")
            a(f"s_mov_b32 s{sT0}, 0\ns_mov_b32 s{sT1}, 64")
        a(f"v_mov_b32 v{M}, 0xff800000\nv_mov_b32 v{NI}, 0xff800000")
        for r in range(16): a(f"v_mov_b32 v{OO+r}, 0")
        for p in range(2):
            a(f"s_mov_b32 s{sT}, s{sT0}")
            a.label(f"L_slow{tag}_p{p}")
            a(f"s_lshl_b32 s{sKO}, s{sT}, 12")
            for j in range(2):
                a(f"buffer_load_dwordx4 {vr(KF+4*j,4)}, v{vL16}, {sr(SK,4)}, s{sKO} offen offset:{j*1024} sc1")
            if p == 1:
                for j in range(2):
                    a(f"buffer_load_dwordx4 {vr(VF+4*j,4)}, v{vL16}, {sr(SK,4)}, s{sKO} offen offset:{2048+j*1024} sc1")
            if mat == 0:
                a(f"s_sub_u32 s{t2}, s{sTile}, s{sT}\ns_lshl_b32 s{t2}, s{t2}, 5")
                a(f"v_lshrrev_b32 v{DL}, 5, v0\nv_lshlrev_b32 v{DL}, 3, v{DL}\nv_sub_u32 v{DL}, v{vN}, v{DL}")
                a(f"v_add_u32 v{DL}, s{t2}, v{DL}")
            a("s_waitcnt vmcnt(0)")
            a(f"v_mfma_f32_32x32x16_bf16 {vr(SS,16)}, {vr(KF,4)}, {vr(Q,4)}, 0")
            a(f"v_mfma_f32_32x32x16_bf16 {vr(SS,16)}, {vr(KF+4,4)}, {vr(Q+4,4)}, {vr(SS,16)}")
            a("s_nop 15")
            if mat == 0:
                for r in range(16):
                    a(f"v_subrev_u32 v{DL+1}, {16*(r>>3)+(r&7)}, v{DL}")
                    a(f"v_cmp_gt_u32 vcc, 0x100, v{DL+1}")
                    a("s_nop 1")
                    a(f"v_cndmask_b32 v{SS+r}, v{NI}, v{SS+r}, vcc")
            if p == 0:
                for r in range(16): a(f"v_max_f32 v{M}, v{M}, v{SS+r}")
            else:
                for r in range(16): a(f"v_sub_f32 v{SS+r}, v{SS+r}, v{M}")
                for r in range(16): a(f"v_exp_f32 v{SS+r}, v{SS+r}")
                a("s_nop 1")
                for j in range(2):
                    a(f"v_smfmac_f32_32x32x32_bf16 {vr(OO,16)}, {vr(VF+4*j,4)}, {vr(SS+8*j,8)}, v{vIDX}")
            a(f"s_add_u32 s{sT}, s{sT}, 1\ns_cmp_lt_u32 s{sT}, s{sT1}")
            a(f"s_cbranch_scc1 L_slow{tag}_p{p}")
            if p == 0:
                a(f"v_mov_b32 v{DL}, v{M}\ns_nop 1\nv_permlane32_swap_b32 v{M}, v{DL}\ns_nop 1\nv_max_f32 v{M}, v{M}, v{DL}")
        a("s_nop 15")
        a(f"v_mov_b32 v{DL}, v{OO+12}\nv_mov_b32 v{L}, v{OO+12}\ns_nop 1")
        a(f"v_permlane32_swap_b32 v{DL}, v{L}\ns_nop 1")
        a(f"s_bitcmp1_b32 s{sOdd}, 0\ns_cbranch_scc1 L_slow{tag}_odd")
        for r in range(8): a(f"v_mov_b32 v{R+r}, v{OO+r}")
        a(f"s_branch L_fin{tag}")
        a.label(f"L_slow{tag}_odd")
        for r in range(8): a(f"v_mov_b32 v{R+r}, v{OO+8+r}")
        a(f"s_branch L_fin{tag}")
    slow("A", RA, LA, SKA, sQH, sTAt, 0)
    slow("B", RB, LB, SKB, sKQ, sTBt, 1)
    return K, 256

def main(out):
    a = Asm()
    hdr = open("cdna_kernels/" + NAME + ".s.ref").read().split("; Override launch")[0]
    a.raw(hdr.rstrip())
    a.raw(f"; @launch grid=(256,1,1) block=(512,1,1) lds={LDS}")
    a.raw('.amdgcn_target "amdgcn-amd-amdhsa--gfx950"')
    a.raw(".text")
    K, v = kernel(a)
    a.raw('.section .rodata,"a"')
    a.raw(".p2align 6")
    a.raw(descriptor(K, v))
    open(out, "w").write(a.text())

if __name__ == "__main__":
    pos = [x for x in sys.argv[1:] if not x.startswith("--")]
    main(pos[0] if pos else "f.s")
```

```python
import sys, struct, math
from asmlib import *

NAME = "gated_mix__sliding_block__softmax_full_mha__prompt"
KV_OFF = 0
OF_OFF = 8 << 20
FL1_OFF = 12 << 20
FLO_OFF = FL1_OFF + 8192
WS_SIZE = FLO_OFF + 32768
X_BYTES = 2048 * 896
W_BYTES = 448 * 2688
WO_BYTES = 448 * 896
def f32bits(x): return struct.unpack("<I", struct.pack("<f", x))[0]
QSCALE = f32bits(math.log2(math.e) / math.sqrt(28.0))
LOG2E = f32bits(math.log2(math.e))
SPIN_MAX = 200000

OPT = dict(a.lstrip("-").split("=") if "=" in a else (a.lstrip("-"), "1") for a in sys.argv[1:] if a.startswith("--"))
STAMPS = "stamps" in OPT
ST_OFF = 32 << 20

R_SLOT = 30720
L_AREG, L_QX = 0, 49152
L_S = [65536, 81920, 106496, 122880]
L_GW, L_G = 98304, 99328
L_WQ = 106496
L_WOA, L_WOB = 0, 57344
L_SCRA = 0
L_SCRB = 65536
L_SCR3 = 0
LDS = 163840

pX, pWA, pWOA, pWB, pWOB, pGW, pOUT, pDBG, pWS = 4, 6, 8, 12, 14, 16, 18, 20, 22
SWS, SKA, SKB, S1, S2, S3, S4 = 24, 28, 32, 36, 40, 44, 48
sH, sTB, sWV, sQH, sKQ, sG16, sNON, sM0, sOFF, sTBt, sTAt = 52, 53, 54, 55, 56, 57, 58, 60, 61, 62, 63
t0, t1, t2, t3 = 64, 65, 66, 67
u0, u1 = 10, 11
sCNT = 3

RT = "rt" in OPT
class Stamper:
    def __init__(self, a): self.a = a
    def start(self):
        if STAMPS:
            self.a("s_memrealtime s[100:101]"); self.a("s_memtime s[68:69]")
        if RT:
            for i in range(1, 16): self.a(f"s_mov_b32 s{68+2*i}, 0")
            self.a("s_memrealtime s[68:69]")
    def __call__(self, i):
        if STAMPS: self.a(f"s_memtime s[{68+2*i}:{69+2*i}]")
        if RT: self.a(f"s_memrealtime s[{68+2*i}:{69+2*i}]")
    def dump(self):
        a = self.a
        if RT:
            sel = [int(x) for x in OPT.get("sel", "0,2,5,6,7,8,9,11,12,13,14,15").split(",")]
            a("s_waitcnt vmcnt(0)")
            a("s_memrealtime s[98:99]")
            a("s_waitcnt lgkmcnt(0)")
            a("s_mov_b64 exec, -1")
            if OPT["rt"] in ("c", "l"):
                a(f"s_cmp_{'lt' if OPT['rt'] == 'c' else 'ge'}_u32 s{sWV}, 4\ns_cbranch_scc0 L_end")
            srd(a, S4, pDBG, 256)
            a("s_not_b32 s64, s68\nv_mov_b32 v2, 0\nv_writelane_b32 v2, s64, 2")
            for k, i in enumerate(sel): a(f"v_writelane_b32 v2, s{68+2*i}, {3+k}")
            a("v_lshlrev_b32 v1, 2, v0")
            a("s_mov_b64 exec, 0xfffc")
            a(f"buffer_atomic_umax v2, v1, {sr(S4,4)}, 0 offen sc1")
            return
        if not STAMPS: return
        a("s_waitcnt vmcnt(0)")
        a("s_memtime s[98:99]"); a("s_memrealtime s[66:67]")
        a("s_waitcnt lgkmcnt(0)")
        a("s_mov_b64 exec, -1")
        srd(a, S4, pWS, 0x100000, add=ST_OFF)
        a(f"s_lshl_b32 s64, s2, 4\ns_add_u32 s64, s64, s{sWV}\ns_lshl_b32 s64, s64, 7")
        a("v_mov_b32 v1, 0")
        for i in range(16):
            a(f"v_mov_b32 v2, s{68+2*i}")
            a(f"buffer_store_dword v2, v1, {sr(S4,4)}, s64 offen offset:{4*i}")
        a(f"v_mov_b32 v2, s100\nbuffer_store_dword v2, v1, {sr(S4,4)}, s64 offen offset:64")
        a(f"v_mov_b32 v2, s66\nbuffer_store_dword v2, v1, {sr(S4,4)}, s64 offen offset:68")
        a(f"s_getreg_b32 s65, hwreg(HW_REG_XCC_ID)\nv_mov_b32 v2, s65\nbuffer_store_dword v2, v1, {sr(S4,4)}, s64 offen offset:72")
        a(f"s_getreg_b32 s65, hwreg(HW_REG_HW_ID)\nv_mov_b32 v2, s65\nbuffer_store_dword v2, v1, {sr(S4,4)}, s64 offen offset:76")

def g16_table():
    two = [h for h in range(16) if (56 * h) % 128 > 64]
    one = [h for h in range(16) if h not in two]
    set1 = [0, 3, 4, 7, 8, 11, 12, 15]; set2 = [1, 2, 5, 6, 9, 10, 13, 14]
    order = two + one
    t = dict(zip(order, set1 + set2))
    v = 0
    for h in range(16): v |= t[h] << (4 * h)
    return v

def kernel(a):
    K = NAME + "_kernel"
    kernel_begin(a, K)
    st = Stamper(a)
    uid = [0]
    def lab(p):
        uid[0] += 1; return f"{p}_{uid[0]}"
    vL16 = 1
    a("s_cmp_ge_u32 s2, 256")
    a("s_cbranch_scc1 L_end")
    st.start()
    a("s_load_dwordx8 s[4:11], s[0:1], 0")
    a("s_load_dwordx8 s[12:19], s[0:1], 32")
    a("s_load_dwordx4 s[20:23], s[0:1], 64")
    a("v_lshrrev_b32 v1, 6, v0")
    a("v_and_b32 v0, 63, v0")
    a(f"v_readfirstlane_b32 s{sWV}, v1")
    a(f"v_lshlrev_b32 v{vL16}, 4, v0")
    a(f"s_and_b32 s{t0}, s2, 7\ns_lshl_b32 s{t0}, s{t0}, 1\ns_bfe_u32 s{t1}, s2, 0x10003")
    a(f"s_add_u32 s{sH}, s{t0}, s{t1}")
    a(f"s_lshr_b32 s{sTB}, s2, 4")
    tb = g16_table()
    a(f"s_mov_b32 s{t2}, 0x{tb & 0xffffffff:08x}\ns_mov_b32 s{t3}, 0x{tb >> 32:08x}")
    a(f"s_lshl_b32 s{t0}, s{sH}, 2\ns_lshr_b64 s[{t2}:{t3}], s[{t2}:{t3}], s{t0}\ns_and_b32 s{sG16}, s{t2}, 15")
    a(f"s_lshr_b32 s{sQH}, s{sWV}, 2")
    a(f"s_and_b32 s{sKQ}, s{sWV}, 3")
    a(f"s_lshl_b32 s{sM0}, s{sWV}, 11")
    a(f"s_lshl_b32 s{t1}, s{sTB}, 2")
    a(f"s_lshl_b32 s{t0}, s{sQH}, 1\ns_add_u32 s{t0}, s{t0}, s{t1}\ns_lshr_b32 s{t2}, s{sKQ}, 1")
    a(f"s_add_u32 s{sTBt}, s{t0}, s{t2}")
    a(f"s_add_u32 s{sTAt}, s{t1}, s{sKQ}")

    vDB, vBA0, vBA1, vAA, vIDX, vN, vGA, vGB = 2, 3, 4, 5, 6, 7, 8, 9
    T = 10
    QB = [16, 24]; QA = 32
    FR = {"K0": 40, "K1": 44, "V0": 48, "V1": 52}
    S = [56, 72]
    RED = 88
    O = {"B0": 160, "B1": 176, "A": 208}
    MASK = 224
    vNON = 252

    def common_srds():
        srd(a, SWS, pWS, WS_SIZE)
        a(f"s_lshl_b32 s{t0}, s{sH}, 18")
        srd(a, SKA, pWS, 262144, add=f"s{t0}")
        a(f"s_add_u32 s{t0}, s{t0}, {16 << 18}")
        srd(a, SKB, pWS, 262144, add=f"s{t0}")

    def phase2_setup():
        a(f"s_lshr_b32 s{t0}, s{sWV}, 1\ns_lshl_b32 s{t0}, s{t0}, 16\ns_and_b32 s{t1}, s{sWV}, 1\ns_lshl_b32 s{t1}, s{t1}, 11\ns_add_u32 s{t0}, s{t0}, s{t1}")
        a(f"v_add_u32 v{vDB}, s{t0}, v{vL16}")
        a(f"s_lshl_b32 s{t0}, s{sKQ}, 12\ns_add_u32 s{t0}, s{t0}, {L_S[0]}")
        a(f"v_add_u32 v{vBA0}, s{t0}, v{vL16}")
        a(f"v_add_u32 v{vBA1}, {L_S[2] - L_S[0]}, v{vBA0}")
        a(f"s_mul_i32 s{t0}, s{sQH}, 5\ns_add_u32 s{t0}, s{t0}, s{sKQ}\ns_lshl_b32 s{t0}, s{t0}, 12")
        a(f"v_add_u32 v{vAA}, s{t0}, v{vL16}")
        a(f"v_mov_b32 v{vIDX}, 0xdddddddd")
        a(f"v_and_b32 v{vN}, 31, v0")
        for k in ("B0", "B1", "A"):
            for r in range(16): a(f"v_mov_b32 v{O[k]+r}, 0")
        a(f"v_lshrrev_b32 v{T}, 5, v0\nv_lshlrev_b32 v{T}, 3, v{T}\nv_sub_u32 v{T}, v{vN}, v{T}")
        a(f"s_cmp_eq_u32 s{sQH}, 0")
        a(f"s_cselect_b32 s{t0}, 0, 0xff800000")
        a(f"s_cselect_b32 s{t1}, 0xff800000, 0")
        a(f"v_mov_b32 v{T+1}, s{t0}\nv_mov_b32 v{T+2}, s{t1}")
        for r in range(0, 16, 2):
            a(f"v_cmp_le_i32 s[{t2}:{t3}], {16*(r>>3) + (r&7)}, v{T}")
            a(f"v_cmp_le_i32 s[{u0}:{u1}], {16*(r>>3) + (r&7) + 1}, v{T}")
            a("s_nop 0")
            a(f"v_cndmask_b32 v{MASK+r}, v{T+1}, v{T+2}, s[{t2}:{t3}]")
            a(f"v_cndmask_b32 v{MASK+r+1}, v{T+1}, v{T+2}, s[{u0}:{u1}]")
        a(f"s_add_u32 s{sOFF}, s{sTB}, 1\ns_and_b32 s{sOFF}, s{sOFF}, 15\ns_lshl_b32 s{sOFF}, s{sOFF}, 12")

    def get_nonce(issued):
        L, D = lab("L_non"), lab("L_non_done")
        a(f"s_mov_b32 s{sCNT}, {SPIN_MAX}")
        if issued: a(f"s_branch {L}_chk")
        a.label(L)
        a(f"buffer_load_dwordx2 {vr(vNON,2)}, v{T+3}, {sr(S4,4)}, 0 offen sc1")
        a.label(L + "_chk")
        a("s_waitcnt vmcnt(0)")
        a(f"v_readfirstlane_b32 s{sNON}, v{vNON}\nv_readfirstlane_b32 s{sNON+1}, v{vNON+1}")
        a(f"s_sub_u32 s{sCNT}, s{sCNT}, 1\ns_cbranch_scc1 {D}")
        a(f"s_cmp_eq_u32 s{sNON}, 0\ns_cbranch_scc1 {L}")
        a.label(D)

    def poll(vaddr, soff, need, tmp):
        L, D = lab("L_poll"), lab("L_poll_done")
        a(f"s_mov_b32 s{sCNT}, {SPIN_MAX}")
        a.label(L)
        a(f"buffer_load_dwordx2 {vr(tmp,2)}, v{vaddr}, {sr(SWS,4)}, {soff} offen sc1")
        a("s_waitcnt vmcnt(0)")
        a(f"v_cmp_eq_u64 vcc, s[{sNON}:{sNON+1}], {vr(tmp,2)}")
        if need is not None: a(f"s_orn2_b64 vcc, vcc, s[{need}:{need+1}]")
        a(f"s_cmp_eq_u64 vcc, -1\ns_cbranch_scc1 {D}")
        a("s_sleep 1")
        a(f"s_sub_u32 s{sCNT}, s{sCNT}, 1\ns_cbranch_scc0 {L}")
        a.label(D)

    def flag_store(soff):
        a("s_mov_b64 exec, 1")
        a(f"buffer_store_dwordx2 {vr(vNON,2)}, v{vL16}, {sr(SWS,4)}, {soff} offen sc1")
        a("s_mov_b64 exec, -1")

    a(f"s_cmp_lt_u32 s{sWV}, 4")
    a("s_cbranch_scc1 L_compute")
    XA, WA, WQA = 16, 20, 24
    sLX, sLW, sOX, sOW = u0, u1, t2, t3
    a("v_lshrrev_b32 v2, 3, v0")
    a(f"s_lshl_b32 s{t0}, s{sTB}, 7\ns_lshl_b32 s{t1}, s{sKQ}, 5\ns_add_u32 s{t0}, s{t0}, s{t1}")
    a(f"v_add_u32 v2, s{t0}, v2")
    a("v_mul_u32_u24 v2, 896, v2")
    a("v_lshrrev_b32 v3, 4, v0\nv_and_b32 v4, 7, v0\nv_xor_b32 v3, v3, v4\nv_lshlrev_b32 v3, 4, v3\nv_xor_b32 v4, 64, v3")
    a(f"v_add_u32 v{XA}, v2, v3\nv_add_u32 v{XA+1}, v2, v4\nv_add_u32 v{XA+1}, 7168, v{XA+1}")
    a(f"v_add_u32 v{XA+2}, 14336, v{XA}\nv_add_u32 v{XA+3}, 14336, v{XA+1}")
    a(f"s_and_b32 s{t0}, s{sG16}, 7\ns_mul_i32 s{t0}, s{t0}, 224\ns_add_u32 s{t0}, s{t0}, 896")
    a(f"s_lshl_b32 s{t1}, s{sKQ}, 6")
    for n in range(4):
        a(f"v_add_u32 v2, s{t1}, v0")
        if n: a(f"v_add_u32 v2, {256*n}, v2")
        a("v_mul_u32_u24 v3, 4682, v2\nv_lshrrev_b32 v3, 16, v3")
        a("v_mul_u32_u24 v4, 14, v3\nv_sub_u32 v4, v2, v4")
        a("v_and_b32 v5, 1, v3\nv_lshlrev_b32 v5, 2, v5\nv_bfe_u32 v6, v3, 1, 2\nv_and_b32 v3, 0x78, v3\nv_or3_b32 v3, v3, v5, v6")
        a("v_mul_u32_u24 v3, 2688, v3\nv_lshl_add_u32 v3, v4, 4, v3")
        a(f"v_add_u32 v{WA+n}, s{t0}, v3")
    a("v_lshrrev_b32 v2, 2, v0\nv_mul_u32_u24 v2, 2688, v2\nv_and_b32 v3, 3, v0\nv_lshl_add_u32 v2, v3, 4, v2")
    a(f"s_mul_i32 s{t0}, s{sH}, 56\ns_and_b32 s{t1}, s{sKQ}, 1\ns_mul_i32 s{t1}, s{t1}, {14*43008}\ns_add_u32 s{t0}, s{t0}, s{t1}")
    a(f"v_add_u32 v{WQA}, s{t0}, v2")
    a(f"v_mov_b32 v{T+3}, 0")
    a("s_waitcnt lgkmcnt(0)")
    a(f"s_lshl_b32 s{sLX}, s{sKQ}, 12")
    a(f"s_lshl_b32 s{sLW}, s{sKQ}, 10")
    srd(a, S1, pX, X_BYTES)
    a(f"s_cmp_lt_u32 s{sG16}, 8")
    a(f"s_cselect_b32 s{S2}, s{pWA}, s{pWB}\ns_cselect_b32 s{S2+1}, s{pWA+1}, s{pWB+1}")
    a(f"s_mov_b32 s{S2+2}, {W_BYTES}\ns_mov_b32 s{S2+3}, 0x00020000")
    a(f"s_cmp_ge_u32 s{sKQ}, 2")
    a("s_cbranch_scc1 L_load3")
    def loader(nw):
        vm = Ctr(a, "vmcnt", 63)
        def issue(c):
            slot = (c % 3) * R_SLOT
            a(f"s_mov_b32 s{sOX}, {c*128}\ns_mov_b32 s{sOW}, {c*64*2688}")
            for n in range(4):
                a(f"s_add_u32 m0, s{sLX}, {slot + n*1024}\ns_nop 0")
                a(f"buffer_load_dwordx4 v{XA+n}, {sr(S1,4)}, s{sOX} offen lds"); vm.issue(c)
                if n < nw:
                    a(f"s_add_u32 m0, s{sLW}, {slot + 16384 + n*4096}\ns_nop 0")
                    a(f"buffer_load_dwordx4 v{WA+n}, {sr(S2,4)}, s{sOW} offen lds"); vm.issue(c)
        def wq(lo, hi):
            for n in range(lo, hi):
                a(f"s_add_u32 m0, s{t0}, {n*1024}\ns_mov_b32 s{t1}, {n*43008}")
                a(f"buffer_load_dwordx4 v{WQA}, {sr(S3,4)}, s{t1} offen lds"); vm.issue("q")
        st(1)
        issue(0); issue(1)
        p = pWA if nw == 4 else pWB
        srd(a, S3, p, W_BYTES)
        common_srds()
        if nw == 4:
            srd(a, S4, pDBG, 256)
            L = lab("L_notag")
            a(f"s_or_b32 s{t0}, s2, s{sKQ}\ns_cmp_lg_u32 s{t0}, 0\ns_cbranch_scc1 {L}")
            a(f"s_memrealtime s[{sNON}:{sNON+1}]\ns_waitcnt lgkmcnt(0)")
            a(f"s_or_b32 s{sNON}, s{sNON}, 1\ns_xor_b32 s{sNON+1}, s{sNON+1}, 0x5bd1e995")
            a(f"v_mov_b32 v{vNON}, s{sNON}\nv_mov_b32 v{vNON+1}, s{sNON+1}")
            a("s_mov_b64 exec, 1")
            a(f"buffer_store_dwordx2 {vr(vNON,2)}, v{T+3}, {sr(S4,4)}, 0 offen sc1")
            a("s_mov_b64 exec, -1")
            a("s_waitcnt vmcnt(0)")
            a.label(L)
        else:
            srd(a, S4, pGW, 896)
            a(f"s_mov_b32 m0, {L_GW}\ns_nop 0")
            a(f"buffer_load_dwordx4 v{vL16}, {sr(S4,4)}, 0 offen lds"); vm.issue("gw")
            srd(a, S4, pDBG, 256)
        for c in range(7):
            vm.wait(c)
            if c in (0, 3, 6): st(2 + c // 3)
            a("s_barrier")
            if c + 2 <= 6: issue(c + 2)
            if c == 5:
                a(f"s_mul_i32 s{t0}, s{sKQ}, 14336\ns_add_u32 s{t0}, s{t0}, {L_WQ}")
                wq(0, 7)
            if c == 6: wq(7, 14)
        a("s_branch L_load_join")
    loader(4)
    a.label("L_load3")
    loader(3)
    a.label("L_load_join")
    phase2_setup()
    get_nonce(False)
    st(5)
    a("s_barrier")
    a(f"s_lshl_b32 s{t0}, s{sKQ}, 2\ns_lshr_b32 s{t1}, s{sH}, 2\ns_add_u32 s{t0}, s{t0}, s{t1}\ns_lshl_b32 s{t0}, s{t0}, 9\ns_add_u32 s{t0}, s{t0}, {FL1_OFF}")
    a(f"v_lshlrev_b32 v{T}, 3, v0")
    a(f"s_and_b32 s{t1}, s{sKQ}, 1\ns_lshl_b32 s{t1}, s{t1}, 11")
    a(f"s_cmp_ge_u32 s{sKQ}, 2")
    a("s_cbranch_scc1 L_pollB")
    a(f"s_lshl_b32 s{u0}, s{sTB}, 2\ns_sub_u32 s{u0}, s{u0}, 8")
    a(f"v_subrev_u32 v{T+1}, s{u0}, v0")
    a(f"v_cmp_gt_u32 s[{t2}:{t3}], 12, v{T+1}")
    a(f"s_lshl_b32 s{u0}, s{u0}, 12\ns_add_u32 s{u0}, s{u0}, s{t1}")
    a(f"v_add_u32 v{T+1}, s{u0}, v{vL16}")
    poll(T, f"s{t0}", t2, RED)
    st(6)
    for i in range(12):
        a(f"s_add_u32 m0, s{t1}, {L_AREG + i*4096}\ns_nop 0")
        a(f"buffer_load_dwordx4 v{T+1}, {sr(SKA,4)}, 0 offen sc1 lds")
        a(f"buffer_load_dwordx4 v{T+1}, {sr(SKA,4)}, 0 offen offset:1024 sc1 lds")
        a(f"v_add_u32 v{T+1}, 4096, v{T+1}")
    a("s_waitcnt vmcnt(0)")
    a("s_branch L_phase2")
    a.label("L_pollB")
    a(f"v_add_u32 v{T+1}, s{t1}, v{vL16}")
    poll(T, f"s{t0}", None, RED)
    st(6)
    for s in range(2):
        if s == 0: a(f"s_lshl_b32 s{u0}, s{sTB}, 12")
        else: a(f"s_mov_b32 s{u0}, s{sOFF}")
        for kq in range(4):
            a(f"s_add_u32 m0, s{t1}, {L_S[s] + kq*4096}\ns_nop 0")
            a(f"buffer_load_dwordx4 v{T+1}, {sr(SKB,4)}, s{u0} offen sc1 lds")
            a(f"buffer_load_dwordx4 v{T+1}, {sr(SKB,4)}, s{u0} offen offset:1024 sc1 lds")
            a(f"s_add_u32 s{u0}, s{u0}, 65536")
    a("s_branch L_phase2")

    a.label("L_compute")
    vST, vVC, XAD, WAD, WQD, GWD = 2, 3, 4, 8, 14, 15
    XR = 16; ACC = [128 + 16*u for u in range(4)]
    WF = [[192 + 16*b + 4*u for u in range(4)] for b in range(2)]
    PK = 224; GWF = [240, 244]; DAC = 248
    a("v_and_b32 v9, 31, v0\nv_lshrrev_b32 v10, 5, v0\nv_bfe_u32 v11, v0, 1, 3")
    a(f"s_lshl_b32 s{t0}, s{sKQ}, 12")
    a(f"v_lshlrev_b32 v12, 7, v9\nv_add_u32 v12, s{t0}, v12")
    for ks in range(4):
        a(f"v_or_b32 v13, {2*ks}, v10\nv_xor_b32 v13, v13, v11\nv_lshl_add_u32 v{XAD+ks}, v13, 4, v12")
    a("v_bfe_u32 v12, v0, 4, 1\nv_lshlrev_b32 v12, 5, v12\nv_and_b32 v13, 3, v0\nv_lshl_add_u32 v12, v13, 3, v12")
    a("v_bfe_u32 v13, v0, 2, 2")
    a("v_lshl_add_u32 v11, v10, 2, v13")
    a(f"v_mul_u32_u24 v11, 448, v11\nv_add_u32 v{WAD}, v11, v12")
    a("v_lshl_add_u32 v11, v10, 3, v13")
    a(f"v_lshl_add_u32 v11, v11, 6, v12\nv_add_u32 v{WQD}, {L_WQ}, v11")
    a(f"v_lshlrev_b32 v{GWD}, 4, v10\nv_add_u32 v{GWD}, {L_GW}, v{GWD}")
    a(f"v_mov_b32 v{vVC}, 0")
    a("s_mov_b32 exec_lo, 0x10000000\ns_mov_b32 exec_hi, 0x10000000")
    a(f"v_mov_b32 v{vVC}, 0x3f803f80")
    a("s_mov_b64 exec, -1")
    a("v_and_b32 v11, 0x33, v0\nv_bfe_u32 v12, v0, 2, 1\nv_lshl_or_b32 v11, v12, 3, v11\nv_bfe_u32 v12, v0, 3, 1\nv_lshl_or_b32 v11, v12, 2, v11")
    a(f"v_lshlrev_b32 v{vST}, 4, v11")
    a(f"v_mov_b32 v{T+3}, 0")
    for r in range(4): a(f"v_mov_b32 v{DAC+r}, 0")
    a("s_waitcnt lgkmcnt(0)")
    common_srds()
    srd(a, S4, pDBG, 256)
    a(f"s_lshr_b32 s{t0}, s{sG16}, 3\ns_lshl_b32 s{t0}, s{t0}, 2\ns_and_b32 s{t1}, s{sG16}, 3\ns_add_u32 s{t0}, s{t0}, s{t1}")
    a(f"s_lshl_b32 s{t0}, s{t0}, 8\ns_add_u32 s{t0}, s{t0}, s{sTAt}\ns_lshl_b32 s{u0}, s{t0}, 12")
    a(f"s_lshl_b32 s{u1}, s{sG16}, 6\ns_add_u32 s{u1}, s{u1}, s{sTAt}\ns_lshl_b32 s{u1}, s{u1}, 3\ns_add_u32 s{u1}, s{u1}, {FL1_OFF}")
    a(f"s_bitcmp1_b32 s{sG16}, 2")
    a("s_cbranch_scc1 L_1a_V")
    def reads1a(g):
        b, ks = g & 1, g & 3
        r = [f"ds_read_b128 {vr(XR+4*g,4)}, v{XAD+ks}"]
        for u in range(4):
            for e in range(2):
                r.append(f"ds_read_b64_tr_b16 {vr(WF[b][u]+2*e,2)}, v{WAD} offset:{16384 + ks*3584 + e*224 + u*56}")
        return r
    for ty in "KV":
        a.label("L_1a_" + ty)
        st(1)
        a("s_barrier")
        st(2)
        for x in reads1a(0): a(x)
        for g in range(28):
            b = g & 1
            a("s_waitcnt lgkmcnt(0)")
            nxt = []
            if g + 1 < 28:
                if (g + 1) & 3 == 0:
                    a("s_barrier")
                    c = (g + 1) >> 2
                    if c in (3, 6): st(2 + c // 3)
                    d = R_SLOT if c % 3 else -2 * R_SLOT
                    for r in range(5): a(f"v_add_u32 v{XAD+r}, {d & 0xffffffff}, v{XAD+r}")
                    if c == 5: a(f"buffer_load_dwordx2 {vr(vNON,2)}, v{T+3}, {sr(S4,4)}, 0 offen sc1")
                nxt = reads1a(g + 1)
            cut = [0, 3, 6, 9, 9]
            for u in range(4):
                D = vr(ACC[u], 16); C = "0" if g == 0 else D
                X, W = vr(XR + 4*g, 4), vr(WF[b][u], 4)
                a(f"v_mfma_f32_32x32x16_bf16 {D}, {X}, {W}, {C}" if ty == "V" else f"v_mfma_f32_32x32x16_bf16 {D}, {W}, {X}, {C}")
                for x in nxt[cut[u]:cut[u+1]]: a(x)
        st(5)
        get_nonce(True)
        a("s_nop 3")
        if ty == "V": a(f"s_add_u32 s{u0}, s{u0}, 2048")
        for u in range(4):
            D = ACC[u]; P = PK + 8 * (u & 1)
            for r in range(8): a(f"v_cvt_pk_bf16_f32 v{P+r}, v{D+2*r}, v{D+2*r+1}")
            if ty == "V":
                a("s_mov_b32 exec_lo, 0xf0000000\ns_mov_b32 exec_hi, 0xf0000000")
                for r in range(8): a(f"v_mov_b32 v{P+r}, v{vVC}")
            else:
                a(f"s_mov_b32 exec_lo, 0\nv_mov_b32 v{P+6}, 0\nv_mov_b32 v{P+7}, 0")
            a("s_mov_b64 exec, -1")
            va = vST if ty == "K" else vL16
            a(f"buffer_store_dwordx4 {vr(P,4)}, v{va}, {sr(SWS,4)}, s{u0} offen sc1")
            a(f"buffer_store_dwordx4 {vr(P+4,4)}, v{va}, {sr(SWS,4)}, s{u0} offen offset:1024 sc1")
            if u < 3: a(f"s_add_u32 s{u0}, s{u0}, 262144")
        if ty == "K": a("s_branch L_1a_join")
    a.label("L_1a_join")
    st(6)
    a(f"s_mov_b32 s{pX}, s{u1}")
    phase2_setup()
    a("s_waitcnt vmcnt(0)")
    flag_store(f"s{pX}")
    st(7)
    a("s_barrier")
    WQF = [[192 + 8*b + 4*m for m in range(2)] for b in range(2)]
    def reads1b(g):
        b = g & 1
        r = []
        for m in range(2):
            for e in range(2):
                r.append(f"ds_read_b64_tr_b16 {vr(WQF[b][m]+2*e,2)}, v{WQD} offset:{m*28672 + g*1024 + e*256}")
        r.append(f"ds_read_b128 {vr(GWF[b],4)}, v{GWD} offset:{g*32}")
        return r
    for x in reads1b(0): a(x)
    for g in range(28):
        b = g & 1
        nxt = reads1b(g + 1) if g + 1 < 28 else []
        for x in nxt: a(x)
        a(f"s_waitcnt lgkmcnt({len(nxt)})")
        for m in range(2):
            D = vr(ACC[m], 16)
            a(f"v_mfma_f32_32x32x16_bf16 {D}, {vr(WQF[b][m],4)}, {vr(XR+4*g,4)}, {'0' if g == 0 else D}")
            for r in (2*m, 2*m+1): a(f"v_dot2c_f32_bf16 v{DAC+r}, v{XR+4*g+r}, v{GWF[b]+r}")
    a("s_nop 2")
    a(f"v_add_f32 v{DAC}, v{DAC}, v{DAC+1}\nv_add_f32 v{DAC+2}, v{DAC+2}, v{DAC+3}\nv_add_f32 v{DAC}, v{DAC}, v{DAC+2}")
    a(f"v_mov_b32 v{DAC+1}, v{DAC}\ns_nop 1\nv_permlane32_swap_b32 v{DAC}, v{DAC+1}\ns_nop 1\nv_add_f32 v{DAC}, v{DAC}, v{DAC+1}")
    a(f"v_cvt_pk_bf16_f32 v{DAC}, v{DAC}, v{DAC}\nv_lshlrev_b32 v{DAC}, 16, v{DAC}")
    a(f"v_mul_f32 v{DAC}, 0x{LOG2E ^ 0x80000000:08x}, v{DAC}\nv_exp_f32 v{DAC}, v{DAC}\ns_nop 0")
    a(f"v_add_f32 v{DAC}, 1.0, v{DAC}\nv_rcp_f32 v{DAC}, v{DAC}\ns_nop 0")
    a(f"v_cvt_pk_bf16_f32 v{DAC}, v{DAC}, v{DAC}\nv_lshlrev_b32 v{DAC}, 16, v{DAC}")
    a(f"v_sub_f32 v{DAC+1}, 1.0, v{DAC}\nv_cvt_pk_bf16_f32 v{DAC+1}, v{DAC+1}, v{DAC+1}\nv_lshlrev_b32 v{DAC+1}, 16, v{DAC+1}")
    a(f"s_lshl_b32 s{t0}, s{sKQ}, 8\ns_add_u32 s{t0}, s{t0}, {L_G}")
    a(f"v_lshl_add_u32 v{T}, v{vN}, 3, s{t0}")
    a(f"ds_write_b64 v{T}, {vr(DAC,2)}")
    a(f"s_lshl_b32 s{t0}, s{sKQ}, 11\ns_add_u32 s{t0}, s{t0}, {L_QX}")
    a(f"v_add_u32 v{T+1}, s{t0}, v{vL16}")
    a(f"v_mov_b32 v{T+2}, 0x{QSCALE:08x}")
    for m in range(2):
        D = ACC[m]; P = 192 + 8*m
        for r in range(16): a(f"v_mul_f32 v{D+r}, v{T+2}, v{D+r}")
        for r in range(8): a(f"v_cvt_pk_bf16_f32 v{P+r}, v{D+2*r}, v{D+2*r+1}")
        a(f"s_mov_b32 exec_lo, 0\nv_mov_b32 v{P+6}, 0\nv_mov_b32 v{P+7}, 0\ns_mov_b64 exec, -1")
        a(f"ds_write_b128 v{T+1}, {vr(P,4)} offset:{m*8192}")
        a(f"ds_write_b128 v{T+1}, {vr(P+4,4)} offset:{m*8192+1024}")
    a("s_waitcnt lgkmcnt(0)")

    a.label("L_phase2")
    st(8)
    a("s_barrier")
    lg = Ctr(a, "lgkmcnt", 15)
    def btile(s, q): return dict(key=("B", s), Q=QB[q], O=O[f"B{q}"], mask=False, addr=[vBA0, vBA1][(s % 4) >> 1], off=(s & 1) * 16384)
    def atile(i, m): return dict(key=("A", i), Q=QA, O=O["A"], mask=m, addr=vAA, off=i * 4096)
    Btiles = [btile(s, q) for s in range(16) for q in range(2)]
    FOFF = {"K0": 0, "K1": 1024, "V0": 2048, "V1": 3072}
    def load(lg, f, t):
        a(f"ds_read_b128 {vr(FR[f],4)}, v{t['addr']} offset:{t['off'] + FOFF[f]}"); lg.issue(f)
    def reload_after(lg, f, tiles, i):
        if i + 1 < len(tiles) and tiles[i+1]["key"] != tiles[i]["key"]: load(lg, f, tiles[i+1])
    a(f"s_lshl_b32 s{t0}, s{sKQ}, 11\ns_add_u32 s{t0}, s{t0}, {L_QX}")
    a(f"v_add_u32 v{T}, s{t0}, v{vL16}")
    a(f"s_lshl_b32 s{t0}, s{sQH}, 12\ns_add_u32 s{t0}, s{t0}, {L_QX + 8192}")
    a(f"v_add_u32 v{T+1}, s{t0}, v{vL16}")
    at0 = atile(0, False)
    for j in range(2):
        a(f"ds_read_b128 {vr(QA+4*j,4)}, v{T} offset:{j*1024}"); lg.issue(f"K{j}")
        load(lg, f"K{j}", at0)
    for f in ("V0", "V1"): load(lg, f, at0)
    for q in range(2):
        for j in range(2):
            a(f"ds_read_b128 {vr(QB[q]+4*j,4)}, v{T+1} offset:{q*2048+j*1024}"); lg.issue("QB")
    a(f"s_lshl_b32 s{t0}, s{sKQ}, 8\ns_add_u32 s{t0}, s{t0}, {L_G}")
    a(f"v_lshl_add_u32 v{T+2}, v{vN}, 3, s{t0}")
    a(f"ds_read_b32 v{vGA}, v{T+2}"); lg.issue("QB")
    a(f"s_and_b32 s{t0}, s{sTBt}, 3\ns_lshl_b32 s{t0}, s{t0}, 8\ns_add_u32 s{t0}, s{t0}, {L_G + 4}")
    a(f"v_lshl_add_u32 v{T+2}, v{vN}, 3, s{t0}")
    a(f"ds_read_b32 v{vGB}, v{T+2}"); lg.issue("QB")

    def dmaB(s):
        return [f"s_add_u32 m0, s{sM0}, {L_S[s % 4]}\ns_add_u32 s{sOFF}, s{sOFF}, 4096\ns_and_b32 s{sOFF}, s{sOFF}, 0xffff",
                f"buffer_load_dwordx4 v{vDB}, {sr(SKB,4)}, s{sOFF} offen sc1 lds",
                f"buffer_load_dwordx4 v{vDB}, {sr(SKB,4)}, s{sOFF} offen offset:1024 sc1 lds"]
    def sbuf(tiles, i): return S[(len(tiles) - i) & 1]
    def qk(lg, tiles, i, j):
        t = tiles[i]; D = vr(sbuf(tiles, i), 16)
        lg.wait(f"K{j}")
        C = D if j == 1 else (vr(MASK, 16) if t["mask"] else "0")
        a(f"v_mfma_f32_32x32x16_bf16 {D}, {vr(FR[f'K{j}'],4)}, {vr(t['Q']+4*j,4)}, {C}")
        reload_after(lg, f"K{j}", tiles, i)
    def pv(lg, tiles, i, j, merge=()):
        t = tiles[i]
        lg.wait([f"V{j}"] + list(merge))
        a(f"v_smfmac_f32_32x32x32_bf16 {vr(t['O'],16)}, {vr(FR[f'V{j}'],4)}, {vr(sbuf(tiles,i)+8*j,8)}, v{vIDX}")
        reload_after(lg, f"V{j}", tiles, i)
    def slot(lg, tiles, i, extra=()):
        s0 = sbuf(tiles, i)
        extra = list(extra)
        xp = [3, 4, 6, 7, 9, 10, 11, 13, 14, 15]
        per = -(-len(extra) // len(xp)) if extra else 0
        isB1 = tiles[i]["key"][0] == "B" and tiles[i]["Q"] == QB[1]
        for r in range(16):
            if r == 2 and i > 0: pv(lg, tiles, i - 1, 1, merge=("K0", "K1") if isB1 else ())
            if r == 5 and i + 1 < len(tiles): qk(lg, tiles, i + 1, 0)
            if r == 8 and i + 1 < len(tiles): qk(lg, tiles, i + 1, 1)
            if r == 12: pv(lg, tiles, i, 0)
            if r in xp:
                for _ in range(per):
                    if extra:
                        x = extra.pop(0)
                        x() if callable(x) else a(x)
            a(f"v_exp_f32 v{s0+r}, v{s0+r}")
        assert not extra
    a(f"s_cmp_lg_u32 s{sQH}, 0")
    a("s_cbranch_scc1 L_A1")
    states = []
    for hf in range(2):
        if hf: a.label("L_A1")
        nA = 5 - hf
        tiles = [atile(i, i == (0 if hf == 0 else 3)) for i in range(nA)] + Btiles
        l2 = lg.clone(a); vm = Ctr(a, "vmcnt", 63)
        qk(l2, tiles, 0, 0); qk(l2, tiles, 0, 1)
        a("s_nop 11")
        for i in range(nA):
            ex = []
            if i == nA - 2:
                l2.wait("QB")
                if hf: a("s_waitcnt vmcnt(2)")
                a("s_barrier")
            if i == 0:
                ex = dmaB(2)
            slot(l2, tiles, i, ex)
        states.append(list(l2.q))
        if hf == 0: a("s_branch L_B")
    assert states[0] == states[1], states
    a.label("L_B")
    st(9)
    lg.q = states[0]
    vm = Ctr(a, "vmcnt", 63); vm.issue("B2"); vm.issue("B2")
    tiles = [atile(3, True)] + Btiles
    RA, LA = RED, RED + 16
    vDW = 14
    def finalize(tag, R, L, G, sOdd, sTile, mat):
        o = []
        o.append(f"v_mov_b32 v{T}, v{L}")
        o += [f"v_fma_f32 v{T}, v{R+r}, 0, v{T}" for r in range(8)]
        o.append(f"v_cmp_lt_f32 vcc, 0x{f32bits(2.0**-40):08x}, v{T}\ns_mov_b64 s[{t2}:{t3}], vcc\n"
                 f"v_cmp_gt_f32 vcc, 0x{f32bits(2.0**60):08x}, v{T}\ns_and_b64 vcc, vcc, s[{t2}:{t3}]\n"
                 f"s_cmp_eq_u64 vcc, -1\ns_cbranch_scc0 L_slow{tag}")
        o.append(lambda: a.label(f"L_fin{tag}"))
        o.append(f"v_rcp_f32 v{L}, v{L}\ns_and_b32 s{t0}, s{sOdd}, 1")
        o.append(f"v_mul_f32 v{L}, v{L}, v{G}")
        o += [f"v_mul_f32 v{R+r}, v{R+r}, v{L}" for r in range(8)]
        o += [f"v_cvt_pk_bf16_f32 v{R+r}, v{R+2*r}, v{R+2*r+1}" for r in range(4)]
        o.append(f"s_cmp_lg_u32 s{t0}, 0\ns_cselect_b32 exec_hi, -1, 0\ns_mov_b32 exec_lo, 0\nv_mov_b32 v{R+2}, 0\nv_mov_b32 v{R+3}, 0\ns_mov_b64 exec, -1")
        o.append(f"s_lshl_b32 s{t1}, s{sTile}, 5\ns_add_u32 s{t1}, s{t1}, s{sH}\ns_lshl_b32 s{t1}, s{t1}, 1\ns_add_u32 s{t1}, s{t1}, s{t0}\n"
                 f"s_lshl_b32 s{t1}, s{t1}, 10\ns_add_u32 s{t1}, s{t1}, {OF_OFF + mat*16*2048}\n"
                 f"buffer_store_dwordx4 {vr(R,4)}, v{vL16}, {sr(SWS,4)}, s{t1} offen sc1")
        return o
    def oflag(sOdd, sTile, mat):
        a(f"s_lshl_b32 s{t1}, s{sTile}, 4\ns_add_u32 s{t1}, s{t1}, s{sH}\ns_lshl_b32 s{t1}, s{t1}, 1\ns_and_b32 s{t0}, s{sOdd}, 1\ns_add_u32 s{t1}, s{t1}, s{t0}")
        a(f"s_lshl_b32 s{t1}, s{t1}, 3\ns_add_u32 s{t1}, s{t1}, {FLO_OFF + mat*16384}")
        flag_store(f"s{t1}")
    sTP, sCB = pX, pX + 1
    def wo_setup():
        a(f"s_and_b32 s{t0}, s2, 7\ns_lshl_b32 s{t0}, s{t0}, 2\ns_bfe_u32 s{t1}, s2, 0x20003\ns_add_u32 s{sTP}, s{t0}, s{t1}\ns_lshr_b32 s{sCB}, s2, 5")
        srd(a, S1, pWOA, WO_BYTES); srd(a, S2, pWOB, WO_BYTES); srd(a, S3, pOUT, X_BYTES)
        a(f"v_lshrrev_b32 v{T}, 3, v0\ns_mul_i32 s{t0}, s{sWV}, 56\nv_add_u32 v{T}, s{t0}, v{T}\nv_mul_u32_u24 v{T}, 896, v{T}")
        a(f"v_bfe_u32 v{T+1}, v0, 4, 1\nv_lshlrev_b32 v{T+1}, 2, v{T+1}\nv_and_b32 v{T+2}, 7, v0\nv_xor_b32 v{T+1}, v{T+1}, v{T+2}")
        a(f"v_lshl_add_u32 v{T}, v{T+1}, 4, v{T}\ns_min_u32 s{t0}, s{sCB}, 6\ns_lshl_b32 s{t0}, s{t0}, 7\nv_add_u32 v{vDW}, s{t0}, v{T}")
        a(f"s_mul_i32 s{pWA}, s{sWV}, 7168")
    def dmaW(n, base, SR):
        return f"s_add_u32 m0, s{pWA}, {base + n*1024}\ns_mov_b32 s{t0}, {n*7168}\nbuffer_load_dwordx4 v{vDW}, {sr(SR,4)}, s{t0} offen lds"
    def V(x, tag):
        def f():
            a(x); vm.issue(tag)
        return f
    def Lg(x, tag):
        def f():
            a(x); lg.issue(tag)
        return f
    for s in range(16):
        ex0, ex1 = [], []
        if s >= 1: vm.wait(f"B{s+1}")
        if s == 2: lg.wait("wa")
        a("s_barrier")
        if s == 8: st(10)
        if s + 3 < 16:
            d = dmaB(s + 3)
            ex0 += [d[0], V(d[1], f"B{s+3}"), V(d[2], f"B{s+3}")]
        if s == 0:
            ex1 += [f"s_lshl_b32 s{t0}, s{sKQ}, 13\ns_lshl_b32 s{t1}, s{sQH}, 11\ns_add_u32 s{t1}, s{t1}, s{t0}",
                    f"v_add_u32 v{T+1}, s{t1}, v{vL16}",
                    f"s_lshl_b32 s{t1}, s{sQH}, 12\ns_add_u32 s{t1}, s{t1}, s{t0}",
                    f"v_add_u32 v{T+2}, s{t1}, v{vL16}",
                    f"s_add_u32 s{t0}, s{t0}, {4096 + 1536}",
                    f"v_lshl_add_u32 v{T+3}, v{vN}, 4, s{t0}"]
        if s == 1:
            ex1 += [Lg(f"ds_write_b128 v{T+1}, {vr(O['A']+8*o+4*k,4)} offset:{L_SCRA + o*4096 + k*1024}", "wa") for o in range(2) for k in range(2)]
        if s == 2:
            for src in range(2):
                ex1 += [Lg(f"ds_read_b128 {vr(RA+8*src+4*k,4)}, v{T+2} offset:{L_SCRA + src*2048 + k*1024}", "ra") for k in range(2)]
                ex1 += [Lg(f"ds_read_b32 v{LA+src}, v{T+3} offset:{L_SCRA + src*2048}", "ra")]
        if s == 3:
            ex0 += [lambda: lg.wait("ra")] + [f"v_add_f32 v{RA+r}, v{RA+r}, v{RA+8+r}" for r in range(8)] + [f"v_add_f32 v{LA}, v{LA}, v{LA+1}"]
            f = finalize("A", RA, LA, vGA, sQH, sTAt, 0)
            ex1 += f[:-1] + [V(f[-1], "oa")]
        if s == 4: ex1 += [wo_setup]
        if s == 6:
            def fl():
                vm.wait("oa"); oflag(sQH, sTAt, 0); vm.issue("fa")
            ex1 += [fl]
        if 5 <= s <= 11: ex1 += [V(dmaW(s - 5, L_WOA, S1), "woa")]
        slot(lg, tiles, 1 + 2*s, ex0)
        slot(lg, tiles, 2 + 2*s, ex1)
    a("s_nop 1")
    pv(lg, tiles, len(tiles) - 1, 1)
    assert not lg.q, lg.q
    st(11)
    RB, LB = RED, RED + 32
    a(f"s_lshl_b32 s{t0}, s{sQH}, 15\ns_lshl_b32 s{t1}, s{sKQ}, 11\ns_add_u32 s{t0}, s{t0}, s{t1}\ns_add_u32 s{t0}, s{t0}, {L_SCRB}")
    a(f"v_add_u32 v{T+1}, s{t0}, v{vL16}")
    a(f"s_lshl_b32 s{t0}, s{sWV}, 13\ns_add_u32 s{t1}, s{t0}, {L_SCRB}")
    a(f"v_add_u32 v{T+2}, s{t1}, v{vL16}")
    a(f"s_or_b32 s{t0}, s{t0}, 8192\ns_add_u32 s{t0}, s{t0}, {L_SCRB + 1536}")
    a(f"v_lshl_add_u32 v{T+3}, v{vN}, 4, s{t0}")
    vm.wait("woa")
    a("s_barrier")
    for o in range(4):
        for k in range(2):
            a(f"ds_write_b128 v{T+1}, {vr(O['B0']+8*o+4*k,4)} offset:{o*8192+k*1024}")
    a("s_waitcnt lgkmcnt(0)")
    a("s_barrier")
    for src in range(4):
        for k in range(2):
            a(f"ds_read_b128 {vr(RB+8*src+4*k,4)}, v{T+2} offset:{src*2048+k*1024}")
        a(f"ds_read_b32 v{LB+src}, v{T+3} offset:{src*2048}")
    a("s_waitcnt lgkmcnt(6)")
    for r in range(8): a(f"v_add_f32 v{RB+r}, v{RB+r}, v{RB+8+r}")
    a(f"v_add_f32 v{LB}, v{LB}, v{LB+1}")
    a("s_waitcnt lgkmcnt(0)")
    for r in range(8): a(f"v_add_f32 v{RB+16+r}, v{RB+16+r}, v{RB+24+r}")
    a(f"v_add_f32 v{LB+2}, v{LB+2}, v{LB+3}")
    for r in range(8): a(f"v_add_f32 v{RB+r}, v{RB+r}, v{RB+16+r}")
    a(f"v_add_f32 v{LB}, v{LB}, v{LB+2}")
    for x in finalize("B", RB, LB, vGB, sKQ, sTBt, 1):
        x() if callable(x) else a(x)
    a("s_barrier")
    a(f"s_cmp_eq_u32 s{sCB}, 7")
    a("s_cbranch_scc0 L_p3")
    a("s_waitcnt vmcnt(0)")
    oflag(sKQ, sTBt, 1)
    a("s_branch L_fini")
    a.label("L_p3")
    for n in range(7): a(dmaW(n, L_WOB, S2))
    a("s_waitcnt vmcnt(7)")
    oflag(sKQ, sTBt, 1)
    st(12)
    ACC3 = [16, 32]; OFR = 48; W3 = [[80, 84], [128, 132]]
    vT3 = [2, 3]; vT3b = [4, 5]; vFL = 8
    a(f"v_bfe_u32 v{T}, v0, 2, 2\nv_lshlrev_b32 v{T}, 7, v{T}")
    a(f"v_bfe_u32 v{T+1}, v0, 4, 1\nv_lshl_add_u32 v{T}, v{T+1}, 5, v{T}")
    a(f"v_and_b32 v{T+1}, 3, v0\nv_lshl_add_u32 v{T}, v{T+1}, 3, v{T}")
    a(f"v_bfe_u32 v{T+1}, v0, 3, 1\nv_lshl_add_u32 v{T}, v{T+1}, 6, v{T}")
    a(f"s_mul_i32 s{t0}, s{sKQ}, 14336")
    a(f"v_add_u32 v{vT3b[0]}, s{t0}, v{T}\nv_xor_b32 v{T}, 64, v{T}\nv_add_u32 v{vT3b[1]}, s{t0}, v{T}")
    a(f"v_lshrrev_b32 v{T+1}, 5, v0")
    for c in range(2): a(f"v_lshl_add_u32 v{vT3[c]}, v{T+1}, 9, v{vT3b[c]}")
    a(f"v_and_b32 v{vFL}, 7, v0\nv_lshlrev_b32 v{vFL}, 3, v{vFL}")
    sT3, sFO, sOO = pWA + 1, pWB, pWB + 1
    a(f"s_lshl_b32 s{sT3}, s{sTP}, 1\ns_add_u32 s{sT3}, s{sT3}, s{sQH}")
    a(f"s_lshl_b32 s{t0}, s{sT3}, 8\ns_lshl_b32 s{t1}, s{sKQ}, 6\ns_add_u32 s{t0}, s{t0}, s{t1}\ns_add_u32 s{sFO}, s{t0}, {FLO_OFF}")
    a(f"s_lshl_b32 s{t0}, s{sT3}, 16\ns_lshl_b32 s{t1}, s{sKQ}, 13\ns_add_u32 s{t0}, s{t0}, s{t1}\ns_add_u32 s{sOO}, s{t0}, {OF_OFF}")
    for mat in range(2):
        poll(vFL, f"s{sFO}", None, T)
        if mat == 1: st(13)
        a(f"s_add_u32 s{t0}, s{sOO}, 4096")
        for kk in range(8):
            a(f"buffer_load_dwordx4 {vr(OFR+4*kk,4)}, v{vL16}, {sr(SWS,4)}, s{sOO if kk < 4 else t0} offen offset:{(kk&3)*1024} sc1")
        if mat == 1:
            a("s_barrier")
            for r in vT3 + vT3b: a(f"v_add_u32 v{r}, {L_WOB}, v{r}")
        def reads3(kk):
            b = kk & 1; hd, j = kk >> 1, kk & 1
            return [f"ds_read_b64_tr_b16 {vr(W3[b][ct]+2*e,2)}, v{vT3b[ct] if (j == 1 and e == 1) else vT3[ct]} offset:{(28*hd+16*j+8*e)*128}"
                    for ct in range(2) for e in range(2)]
        for x in reads3(0): a(x)
        for kk in range(8):
            nxt = reads3(kk + 1) if kk < 7 else []
            for x in nxt: a(x)
            a(f"s_waitcnt vmcnt({7-kk}) lgkmcnt({len(nxt)})")
            for ct in range(2):
                D = vr(ACC3[ct], 16)
                a(f"v_mfma_f32_32x32x16_bf16 {D}, {vr(W3[kk&1][ct],4)}, {vr(OFR+4*kk,4)}, {'0' if (kk == 0 and mat == 0) else D}")
        if mat == 0:
            a(f"s_add_u32 s{sFO}, s{sFO}, 16384\ns_add_u32 s{sOO}, s{sOO}, 32768")
    st(14)
    a(f"s_lshl_b32 s{t0}, s{sQH}, 15\ns_lshl_b32 s{t1}, s{sKQ}, 11\ns_add_u32 s{t0}, s{t0}, s{t1}")
    a(f"v_add_u32 v{T+1}, s{t0}, v{vL16}")
    a(f"s_lshl_b32 s{t0}, s{sWV}, 13")
    a(f"v_add_u32 v{T+2}, s{t0}, v{vL16}")
    a(f"s_lshl_b32 s{t0}, s{sT3}, 5\nv_add_u32 v{T+3}, s{t0}, v{vN}\nv_mul_u32_u24 v{T+3}, 896, v{T+3}")
    a(f"v_lshrrev_b32 v{T}, 5, v0\nv_lshl_add_u32 v{T+3}, v{T}, 4, v{T+3}")
    a(f"s_lshl_b32 s{t0}, s{sCB}, 7\ns_lshl_b32 s{t1}, s{sKQ}, 5\ns_add_u32 s{t0}, s{t0}, s{t1}")
    a("s_barrier")
    for o in range(4):
        for k in range(2):
            a(f"ds_write_b128 v{T+1}, {vr(ACC3[0]+8*o+4*k,4)} offset:{L_SCR3 + o*8192+k*1024}")
    a("s_waitcnt lgkmcnt(0)")
    a("s_barrier")
    R = 48
    for src in range(4):
        for k in range(2):
            a(f"ds_read_b128 {vr(R+8*src+4*k,4)}, v{T+2} offset:{L_SCR3 + src*2048+k*1024}")
    a("s_waitcnt lgkmcnt(4)")
    for r in range(8): a(f"v_add_f32 v{R+r}, v{R+r}, v{R+8+r}")
    a("s_waitcnt lgkmcnt(0)")
    for r in range(8): a(f"v_add_f32 v{R+16+r}, v{R+16+r}, v{R+24+r}")
    for r in range(8): a(f"v_add_f32 v{R+r}, v{R+r}, v{R+16+r}")
    for r in range(4): a(f"v_cvt_pk_bf16_f32 v{R+8+r}, v{R+2*r}, v{R+2*r+1}")
    a("s_nop 1")
    a(f"v_permlane32_swap_b32 v{R+8}, v{R+10}\nv_permlane32_swap_b32 v{R+9}, v{R+11}")
    a(f"buffer_store_dwordx4 {vr(R+8,4)}, v{T+3}, {sr(S3,4)}, s{t0} offen")
    a.label("L_fini")
    st.dump()
    a.label("L_end")
    a("s_endpgm")

    def slow(tag, R, L, SK, sOdd, sTile, mat):
        SS, OO, KF, VF, Q, M, DL, NI = 128, 144, 192, 200, 240, 248, 249, 251
        sT, sT1, sKO, sT0 = t0, t1, u0, u1
        a.label(f"L_slow{tag}")
        if mat == 0:
            for r in range(8): a(f"v_mov_b32 v{Q+r}, v{QA+r}")
            a(f"s_sub_i32 s{sT0}, s{sTile}, 8\ns_max_i32 s{sT0}, s{sT0}, 0\ns_add_u32 s{sT1}, s{sTile}, 1")
        else:
            for r in range(8): a(f"v_mov_b32 v{Q+r}, v{QB[0]+r}")
            a(f"s_bitcmp1_b32 s{sKQ}, 1\ns_cbranch_scc0 L_slowB_q")
            for r in range(8): a(f"v_mov_b32 v{Q+r}, v{QB[1]+r}")
            a.label("L_slowB_q")
            a(f"s_mov_b32 s{sT0}, 0\ns_mov_b32 s{sT1}, 64")
        a(f"v_mov_b32 v{M}, 0xff800000\nv_mov_b32 v{NI}, 0xff800000")
        for r in range(16): a(f"v_mov_b32 v{OO+r}, 0")
        for p in range(2):
            a(f"s_mov_b32 s{sT}, s{sT0}")
            a.label(f"L_slow{tag}_p{p}")
            a(f"s_lshl_b32 s{sKO}, s{sT}, 12")
            for j in range(2):
                a(f"buffer_load_dwordx4 {vr(KF+4*j,4)}, v{vL16}, {sr(SK,4)}, s{sKO} offen offset:{j*1024} sc1")
            if p == 1:
                for j in range(2):
                    a(f"buffer_load_dwordx4 {vr(VF+4*j,4)}, v{vL16}, {sr(SK,4)}, s{sKO} offen offset:{2048+j*1024} sc1")
            if mat == 0:
                a(f"s_sub_u32 s{t2}, s{sTile}, s{sT}\ns_lshl_b32 s{t2}, s{t2}, 5")
                a(f"v_lshrrev_b32 v{DL}, 5, v0\nv_lshlrev_b32 v{DL}, 3, v{DL}\nv_sub_u32 v{DL}, v{vN}, v{DL}")
                a(f"v_add_u32 v{DL}, s{t2}, v{DL}")
            a("s_waitcnt vmcnt(0)")
            a(f"v_mfma_f32_32x32x16_bf16 {vr(SS,16)}, {vr(KF,4)}, {vr(Q,4)}, 0")
            a(f"v_mfma_f32_32x32x16_bf16 {vr(SS,16)}, {vr(KF+4,4)}, {vr(Q+4,4)}, {vr(SS,16)}")
            a("s_nop 15")
            if mat == 0:
                for r in range(16):
                    a(f"v_subrev_u32 v{DL+1}, {16*(r>>3)+(r&7)}, v{DL}")
                    a(f"v_cmp_gt_u32 vcc, 0x100, v{DL+1}")
                    a("s_nop 1")
                    a(f"v_cndmask_b32 v{SS+r}, v{NI}, v{SS+r}, vcc")
            if p == 0:
                for r in range(16): a(f"v_max_f32 v{M}, v{M}, v{SS+r}")
            else:
                for r in range(16): a(f"v_sub_f32 v{SS+r}, v{SS+r}, v{M}")
                for r in range(16): a(f"v_exp_f32 v{SS+r}, v{SS+r}")
                a("s_nop 1")
                for j in range(2):
                    a(f"v_smfmac_f32_32x32x32_bf16 {vr(OO,16)}, {vr(VF+4*j,4)}, {vr(SS+8*j,8)}, v{vIDX}")
            a(f"s_add_u32 s{sT}, s{sT}, 1\ns_cmp_lt_u32 s{sT}, s{sT1}")
            a(f"s_cbranch_scc1 L_slow{tag}_p{p}")
            if p == 0:
                a(f"v_mov_b32 v{DL}, v{M}\ns_nop 1\nv_permlane32_swap_b32 v{M}, v{DL}\ns_nop 1\nv_max_f32 v{M}, v{M}, v{DL}")
        a("s_nop 15")
        a(f"v_mov_b32 v{DL}, v{OO+12}\nv_mov_b32 v{L}, v{OO+12}\ns_nop 1")
        a(f"v_permlane32_swap_b32 v{DL}, v{L}\ns_nop 1")
        a(f"s_bitcmp1_b32 s{sOdd}, 0\ns_cbranch_scc1 L_slow{tag}_odd")
        for r in range(8): a(f"v_mov_b32 v{R+r}, v{OO+r}")
        a(f"s_branch L_fin{tag}")
        a.label(f"L_slow{tag}_odd")
        for r in range(8): a(f"v_mov_b32 v{R+r}, v{OO+8+r}")
        a(f"s_branch L_fin{tag}")
    slow("A", RA, LA, SKA, sQH, sTAt, 0)
    slow("B", RB, LB, SKB, sKQ, sTBt, 1)
    return K, 256

def main(out):
    a = Asm()
    hdr = open("cdna_kernels/" + NAME + ".s.ref").read().split("; Override launch")[0]
    a.raw(hdr.rstrip())
    a.raw(f"; @launch grid=(256,1,1) block=(512,1,1) lds={LDS}")
    a.raw('.amdgcn_target "amdgcn-amd-amdhsa--gfx950"')
    a.raw(".text")
    K, v = kernel(a)
    a.raw('.section .rodata,"a"')
    a.raw(".p2align 6")
    a.raw(descriptor(K, v))
    open(out, "w").write(a.text())

if __name__ == "__main__":
    pos = [x for x in sys.argv[1:] if not x.startswith("--")]
    main(pos[0] if pos else "f.s")
```

```python
import sys, struct, math
from asmlib import *

NAME = "gated_mix__sliding_block__softmax_full_mha__prompt"
KV_OFF = 0
OF_OFF = 8 << 20
FL1_OFF = 12 << 20
FLO_OFF = FL1_OFF + 8192
WS_SIZE = FLO_OFF + 32768
X_BYTES = 2048 * 896
W_BYTES = 448 * 2688
WO_BYTES = 448 * 896
def f32bits(x): return struct.unpack("<I", struct.pack("<f", x))[0]
QSCALE = f32bits(math.log2(math.e) / math.sqrt(28.0))
LOG2E = f32bits(math.log2(math.e))
SPIN_MAX = 200000

OPT = dict(a.lstrip("-").split("=") if "=" in a else (a.lstrip("-"), "1") for a in sys.argv[1:] if a.startswith("--"))
STAMPS = "stamps" in OPT
ST_OFF = 32 << 20

R_SLOT = 30720
L_AREG, L_QX = 0, 49152
L_S = [65536, 81920, 106496, 122880]
L_GW, L_G = 98304, 99328
L_WQ = 106496
L_WOA, L_WOB = 0, 57344
L_SCRA = 0
L_SCRB = 65536
L_SCR3 = 0
LDS = 163840

pX, pWA, pWOA, pWB, pWOB, pGW, pOUT, pDBG, pWS = 4, 6, 8, 12, 14, 16, 18, 20, 22
SWS, SKA, SKB, S1, S2, S3, S4 = 24, 28, 32, 36, 40, 44, 48
sH, sTB, sWV, sQH, sKQ, sG16, sNON, sM0, sOFF, sTBt, sTAt = 52, 53, 54, 55, 56, 57, 58, 60, 61, 62, 63
t0, t1, t2, t3 = 64, 65, 66, 67
u0, u1 = 10, 11
sCNT = 3

RT = "rt" in OPT
class Stamper:
    def __init__(self, a): self.a = a
    def start(self):
        if STAMPS:
            self.a("s_memrealtime s[100:101]"); self.a("s_memtime s[68:69]")
        if RT:
            for i in range(1, 16): self.a(f"s_mov_b32 s{68+2*i}, 0")
            self.a("s_memrealtime s[68:69]")
    def __call__(self, i):
        if STAMPS: self.a(f"s_memtime s[{68+2*i}:{69+2*i}]")
        if RT: self.a(f"s_memrealtime s[{68+2*i}:{69+2*i}]")
    def dump(self):
        a = self.a
        if RT and "echo" in OPT:
            i = int(OPT["echo"])
            a("s_waitcnt vmcnt(0)")
            a("s_memrealtime s[98:99]")
            a("s_waitcnt lgkmcnt(0)")
            a(f"s_cmp_lt_u32 s{sWV}, 4\ns_cbranch_scc0 L_end")
            a(f"s_sub_u32 s64, s{68+2*i}, s68\ns_lshl_b32 s64, s64, 2\ns_min_u32 s64, s64, 100000")
            a.label("L_echo")
            a("s_memrealtime s[66:67]\ns_waitcnt lgkmcnt(0)\ns_sub_u32 s65, s66, s98\ns_cmp_lt_u32 s65, s64\ns_cbranch_scc1 L_echo")
            return
        if RT:
            sel = [int(x) for x in OPT.get("sel", "0,2,5,6,7,8,9,11,12,13,14,15").split(",")]
            a("s_waitcnt vmcnt(0)")
            a("s_memrealtime s[98:99]")
            a("s_waitcnt lgkmcnt(0)")
            a("s_mov_b64 exec, -1")
            if OPT["rt"] in ("c", "l"):
                a(f"s_cmp_{'lt' if OPT['rt'] == 'c' else 'ge'}_u32 s{sWV}, 4\ns_cbranch_scc0 L_end")
            srd(a, S4, pDBG, 256)
            a("s_not_b32 s64, s68\nv_mov_b32 v2, 0\nv_writelane_b32 v2, s64, 2")
            for k, i in enumerate(sel): a(f"v_writelane_b32 v2, s{68+2*i}, {3+k}")
            a("v_lshlrev_b32 v1, 2, v0")
            a("s_mov_b64 exec, 0xfffc")
            a(f"buffer_atomic_umax v2, v1, {sr(S4,4)}, 0 offen sc1")
            return
        if not STAMPS: return
        a("s_waitcnt vmcnt(0)")
        a("s_memtime s[98:99]"); a("s_memrealtime s[66:67]")
        a("s_waitcnt lgkmcnt(0)")
        a("s_mov_b64 exec, -1")
        srd(a, S4, pWS, 0x100000, add=ST_OFF)
        a(f"s_lshl_b32 s64, s2, 4\ns_add_u32 s64, s64, s{sWV}\ns_lshl_b32 s64, s64, 7")
        a("v_mov_b32 v1, 0")
        for i in range(16):
            a(f"v_mov_b32 v2, s{68+2*i}")
            a(f"buffer_store_dword v2, v1, {sr(S4,4)}, s64 offen offset:{4*i}")
        a(f"v_mov_b32 v2, s100\nbuffer_store_dword v2, v1, {sr(S4,4)}, s64 offen offset:64")
        a(f"v_mov_b32 v2, s66\nbuffer_store_dword v2, v1, {sr(S4,4)}, s64 offen offset:68")
        a(f"s_getreg_b32 s65, hwreg(HW_REG_XCC_ID)\nv_mov_b32 v2, s65\nbuffer_store_dword v2, v1, {sr(S4,4)}, s64 offen offset:72")
        a(f"s_getreg_b32 s65, hwreg(HW_REG_HW_ID)\nv_mov_b32 v2, s65\nbuffer_store_dword v2, v1, {sr(S4,4)}, s64 offen offset:76")

def g16_table():
    two = [h for h in range(16) if (56 * h) % 128 > 64]
    one = [h for h in range(16) if h not in two]
    set1 = [0, 3, 4, 7, 8, 11, 12, 15]; set2 = [1, 2, 5, 6, 9, 10, 13, 14]
    order = two + one
    t = dict(zip(order, set1 + set2))
    v = 0
    for h in range(16): v |= t[h] << (4 * h)
    return v

def kernel(a):
    K = NAME + "_kernel"
    kernel_begin(a, K)
    st = Stamper(a)
    uid = [0]
    def lab(p):
        uid[0] += 1; return f"{p}_{uid[0]}"
    vL16 = 1
    a("s_cmp_ge_u32 s2, 256")
    a("s_cbranch_scc1 L_end")
    st.start()
    a("s_load_dwordx8 s[4:11], s[0:1], 0")
    a("s_load_dwordx8 s[12:19], s[0:1], 32")
    a("s_load_dwordx4 s[20:23], s[0:1], 64")
    a("v_lshrrev_b32 v1, 6, v0")
    a("v_and_b32 v0, 63, v0")
    a(f"v_readfirstlane_b32 s{sWV}, v1")
    a(f"v_lshlrev_b32 v{vL16}, 4, v0")
    a(f"s_and_b32 s{t0}, s2, 7\ns_lshl_b32 s{t0}, s{t0}, 1\ns_bfe_u32 s{t1}, s2, 0x10003")
    a(f"s_add_u32 s{sH}, s{t0}, s{t1}")
    a(f"s_lshr_b32 s{sTB}, s2, 4")
    tb = g16_table()
    a(f"s_mov_b32 s{t2}, 0x{tb & 0xffffffff:08x}\ns_mov_b32 s{t3}, 0x{tb >> 32:08x}")
    a(f"s_lshl_b32 s{t0}, s{sH}, 2\ns_lshr_b64 s[{t2}:{t3}], s[{t2}:{t3}], s{t0}\ns_and_b32 s{sG16}, s{t2}, 15")
    a(f"s_lshr_b32 s{sQH}, s{sWV}, 2")
    a(f"s_and_b32 s{sKQ}, s{sWV}, 3")
    a(f"s_lshl_b32 s{sM0}, s{sWV}, 11")
    a(f"s_lshl_b32 s{t1}, s{sTB}, 2")
    a(f"s_lshl_b32 s{t0}, s{sQH}, 1\ns_add_u32 s{t0}, s{t0}, s{t1}\ns_lshr_b32 s{t2}, s{sKQ}, 1")
    a(f"s_add_u32 s{sTBt}, s{t0}, s{t2}")
    a(f"s_add_u32 s{sTAt}, s{t1}, s{sKQ}")

    vDB, vBA0, vBA1, vAA, vIDX, vN, vGA, vGB = 2, 3, 4, 5, 6, 7, 8, 9
    T = 10
    QB = [16, 24]; QA = 32
    FR = {"K0": 40, "K1": 44, "V0": 48, "V1": 52}
    S = [56, 72]
    RED = 88
    O = {"B0": 160, "B1": 176, "A": 208}
    MASK = 224
    vNON = 252

    def common_srds():
        srd(a, SWS, pWS, WS_SIZE)
        a(f"s_lshl_b32 s{t0}, s{sH}, 18")
        srd(a, SKA, pWS, 262144, add=f"s{t0}")
        a(f"s_add_u32 s{t0}, s{t0}, {16 << 18}")
        srd(a, SKB, pWS, 262144, add=f"s{t0}")

    def phase2_setup():
        a(f"s_lshr_b32 s{t0}, s{sWV}, 1\ns_lshl_b32 s{t0}, s{t0}, 16\ns_and_b32 s{t1}, s{sWV}, 1\ns_lshl_b32 s{t1}, s{t1}, 11\ns_add_u32 s{t0}, s{t0}, s{t1}")
        a(f"v_add_u32 v{vDB}, s{t0}, v{vL16}")
        a(f"s_lshl_b32 s{t0}, s{sKQ}, 12\ns_add_u32 s{t0}, s{t0}, {L_S[0]}")
        a(f"v_add_u32 v{vBA0}, s{t0}, v{vL16}")
        a(f"v_add_u32 v{vBA1}, {L_S[2] - L_S[0]}, v{vBA0}")
        a(f"s_mul_i32 s{t0}, s{sQH}, 5\ns_add_u32 s{t0}, s{t0}, s{sKQ}\ns_lshl_b32 s{t0}, s{t0}, 12")
        a(f"v_add_u32 v{vAA}, s{t0}, v{vL16}")
        a(f"v_mov_b32 v{vIDX}, 0xdddddddd")
        a(f"v_and_b32 v{vN}, 31, v0")
        for k in ("B0", "B1", "A"):
            for r in range(16): a(f"v_mov_b32 v{O[k]+r}, 0")
        a(f"v_lshrrev_b32 v{T}, 5, v0\nv_lshlrev_b32 v{T}, 3, v{T}\nv_sub_u32 v{T}, v{vN}, v{T}")
        a(f"s_cmp_eq_u32 s{sQH}, 0")
        a(f"s_cselect_b32 s{t0}, 0, 0xff800000")
        a(f"s_cselect_b32 s{t1}, 0xff800000, 0")
        a(f"v_mov_b32 v{T+1}, s{t0}\nv_mov_b32 v{T+2}, s{t1}")
        for r in range(0, 16, 2):
            a(f"v_cmp_le_i32 s[{t2}:{t3}], {16*(r>>3) + (r&7)}, v{T}")
            a(f"v_cmp_le_i32 s[{u0}:{u1}], {16*(r>>3) + (r&7) + 1}, v{T}")
            a("s_nop 0")
            a(f"v_cndmask_b32 v{MASK+r}, v{T+1}, v{T+2}, s[{t2}:{t3}]")
            a(f"v_cndmask_b32 v{MASK+r+1}, v{T+1}, v{T+2}, s[{u0}:{u1}]")
        a(f"s_add_u32 s{sOFF}, s{sTB}, 1\ns_and_b32 s{sOFF}, s{sOFF}, 15\ns_lshl_b32 s{sOFF}, s{sOFF}, 12")

    def get_nonce(issued):
        L, D = lab("L_non"), lab("L_non_done")
        a(f"s_mov_b32 s{sCNT}, {SPIN_MAX}")
        if issued: a(f"s_branch {L}_chk")
        a.label(L)
        a(f"buffer_load_dwordx2 {vr(vNON,2)}, v{T+3}, {sr(S4,4)}, 0 offen sc1")
        a.label(L + "_chk")
        a("s_waitcnt vmcnt(0)")
        a(f"v_readfirstlane_b32 s{sNON}, v{vNON}\nv_readfirstlane_b32 s{sNON+1}, v{vNON+1}")
        a(f"s_sub_u32 s{sCNT}, s{sCNT}, 1\ns_cbranch_scc1 {D}")
        a(f"s_cmp_eq_u32 s{sNON}, 0\ns_cbranch_scc1 {L}")
        a.label(D)

    def poll(vaddr, soff, need, tmp):
        L, D = lab("L_poll"), lab("L_poll_done")
        a(f"s_mov_b32 s{sCNT}, {SPIN_MAX}")
        a.label(L)
        a(f"buffer_load_dwordx2 {vr(tmp,2)}, v{vaddr}, {sr(SWS,4)}, {soff} offen sc1")
        a("s_waitcnt vmcnt(0)")
        a(f"v_cmp_eq_u64 vcc, s[{sNON}:{sNON+1}], {vr(tmp,2)}")
        if need is not None: a(f"s_orn2_b64 vcc, vcc, s[{need}:{need+1}]")
        a(f"s_cmp_eq_u64 vcc, -1\ns_cbranch_scc1 {D}")
        a("s_sleep 1")
        a(f"s_sub_u32 s{sCNT}, s{sCNT}, 1\ns_cbranch_scc0 {L}")
        a.label(D)

    def flag_store(soff):
        a("s_mov_b64 exec, 1")
        a(f"buffer_store_dwordx2 {vr(vNON,2)}, v{vL16}, {sr(SWS,4)}, {soff} offen sc1")
        a("s_mov_b64 exec, -1")

    a(f"s_cmp_lt_u32 s{sWV}, 4")
    a("s_cbranch_scc1 L_compute")
    XA, WA, WQA = 16, 20, 24
    sLX, sLW, sOX, sOW = u0, u1, t2, t3
    a("v_lshrrev_b32 v2, 3, v0")
    a(f"s_lshl_b32 s{t0}, s{sTB}, 7\ns_lshl_b32 s{t1}, s{sKQ}, 5\ns_add_u32 s{t0}, s{t0}, s{t1}")
    a(f"v_add_u32 v2, s{t0}, v2")
    a("v_mul_u32_u24 v2, 896, v2")
    a("v_lshrrev_b32 v3, 4, v0\nv_and_b32 v4, 7, v0\nv_xor_b32 v3, v3, v4\nv_lshlrev_b32 v3, 4, v3\nv_xor_b32 v4, 64, v3")
    a(f"v_add_u32 v{XA}, v2, v3\nv_add_u32 v{XA+1}, v2, v4\nv_add_u32 v{XA+1}, 7168, v{XA+1}")
    a(f"v_add_u32 v{XA+2}, 14336, v{XA}\nv_add_u32 v{XA+3}, 14336, v{XA+1}")
    a(f"s_and_b32 s{t0}, s{sG16}, 7\ns_mul_i32 s{t0}, s{t0}, 224\ns_add_u32 s{t0}, s{t0}, 896")
    a(f"s_lshl_b32 s{t1}, s{sKQ}, 6")
    for n in range(4):
        a(f"v_add_u32 v2, s{t1}, v0")
        if n: a(f"v_add_u32 v2, {256*n}, v2")
        a("v_mul_u32_u24 v3, 4682, v2\nv_lshrrev_b32 v3, 16, v3")
        a("v_mul_u32_u24 v4, 14, v3\nv_sub_u32 v4, v2, v4")
        a("v_and_b32 v5, 1, v3\nv_lshlrev_b32 v5, 2, v5\nv_bfe_u32 v6, v3, 1, 2\nv_and_b32 v3, 0x78, v3\nv_or3_b32 v3, v3, v5, v6")
        a("v_mul_u32_u24 v3, 2688, v3\nv_lshl_add_u32 v3, v4, 4, v3")
        a(f"v_add_u32 v{WA+n}, s{t0}, v3")
    a("v_lshrrev_b32 v2, 2, v0\nv_mul_u32_u24 v2, 2688, v2\nv_and_b32 v3, 3, v0\nv_lshl_add_u32 v2, v3, 4, v2")
    a(f"s_mul_i32 s{t0}, s{sH}, 56\ns_and_b32 s{t1}, s{sKQ}, 1\ns_mul_i32 s{t1}, s{t1}, {14*43008}\ns_add_u32 s{t0}, s{t0}, s{t1}")
    a(f"v_add_u32 v{WQA}, s{t0}, v2")
    a(f"v_mov_b32 v{T+3}, 0")
    a("s_waitcnt lgkmcnt(0)")
    a(f"s_lshl_b32 s{sLX}, s{sKQ}, 12")
    a(f"s_lshl_b32 s{sLW}, s{sKQ}, 10")
    srd(a, S1, pX, X_BYTES)
    a(f"s_cmp_lt_u32 s{sG16}, 8")
    a(f"s_cselect_b32 s{S2}, s{pWA}, s{pWB}\ns_cselect_b32 s{S2+1}, s{pWA+1}, s{pWB+1}")
    a(f"s_mov_b32 s{S2+2}, {W_BYTES}\ns_mov_b32 s{S2+3}, 0x00020000")
    a(f"s_cmp_ge_u32 s{sKQ}, 2")
    a("s_cbranch_scc1 L_load3")
    def loader(nw):
        vm = Ctr(a, "vmcnt", 63)
        def issue(c):
            slot = (c % 3) * R_SLOT
            a(f"s_mov_b32 s{sOX}, {c*128}\ns_mov_b32 s{sOW}, {c*64*2688}")
            for n in range(4):
                a(f"s_add_u32 m0, s{sLX}, {slot + n*1024}\ns_nop 0")
                a(f"buffer_load_dwordx4 v{XA+n}, {sr(S1,4)}, s{sOX} offen lds"); vm.issue(c)
                if n < nw:
                    a(f"s_add_u32 m0, s{sLW}, {slot + 16384 + n*4096}\ns_nop 0")
                    a(f"buffer_load_dwordx4 v{WA+n}, {sr(S2,4)}, s{sOW} offen lds"); vm.issue(c)
        def wq(lo, hi):
            for n in range(lo, hi):
                a(f"s_add_u32 m0, s{t0}, {n*1024}\ns_mov_b32 s{t1}, {n*43008}")
                a(f"buffer_load_dwordx4 v{WQA}, {sr(S3,4)}, s{t1} offen lds"); vm.issue("q")
        st(1)
        issue(0); issue(1)
        p = pWA if nw == 4 else pWB
        srd(a, S3, p, W_BYTES)
        common_srds()
        if nw == 4:
            srd(a, S4, pDBG, 256)
            L = lab("L_notag")
            a(f"s_or_b32 s{t0}, s2, s{sKQ}\ns_cmp_lg_u32 s{t0}, 0\ns_cbranch_scc1 {L}")
            a(f"s_memrealtime s[{sNON}:{sNON+1}]\ns_waitcnt lgkmcnt(0)")
            a(f"s_or_b32 s{sNON}, s{sNON}, 1\ns_xor_b32 s{sNON+1}, s{sNON+1}, 0x5bd1e995")
            a(f"v_mov_b32 v{vNON}, s{sNON}\nv_mov_b32 v{vNON+1}, s{sNON+1}")
            a("s_mov_b64 exec, 1")
            a(f"buffer_store_dwordx2 {vr(vNON,2)}, v{T+3}, {sr(S4,4)}, 0 offen sc1")
            a("s_mov_b64 exec, -1")
            a("s_waitcnt vmcnt(0)")
            a.label(L)
        else:
            srd(a, S4, pGW, 896)
            a(f"s_mov_b32 m0, {L_GW}\ns_nop 0")
            a(f"buffer_load_dwordx4 v{vL16}, {sr(S4,4)}, 0 offen lds"); vm.issue("gw")
            srd(a, S4, pDBG, 256)
        for c in range(7):
            vm.wait(c)
            if c in (0, 3, 6): st(2 + c // 3)
            a("s_barrier")
            if c + 2 <= 6: issue(c + 2)
            if c == 5:
                a(f"s_mul_i32 s{t0}, s{sKQ}, 14336\ns_add_u32 s{t0}, s{t0}, {L_WQ}")
                wq(0, 7)
            if c == 6: wq(7, 14)
        a("s_branch L_load_join")
    loader(4)
    a.label("L_load3")
    loader(3)
    a.label("L_load_join")
    phase2_setup()
    get_nonce(False)
    st(5)
    a("s_barrier")
    a(f"s_lshl_b32 s{t0}, s{sKQ}, 2\ns_lshr_b32 s{t1}, s{sH}, 2\ns_add_u32 s{t0}, s{t0}, s{t1}\ns_lshl_b32 s{t0}, s{t0}, 9\ns_add_u32 s{t0}, s{t0}, {FL1_OFF}")
    a(f"v_lshlrev_b32 v{T}, 3, v0")
    a(f"s_and_b32 s{t1}, s{sKQ}, 1\ns_lshl_b32 s{t1}, s{t1}, 11")
    a(f"s_cmp_ge_u32 s{sKQ}, 2")
    a("s_cbranch_scc1 L_pollB")
    a(f"s_lshl_b32 s{u0}, s{sTB}, 2\ns_sub_u32 s{u0}, s{u0}, 8")
    a(f"v_subrev_u32 v{T+1}, s{u0}, v0")
    a(f"v_cmp_gt_u32 s[{t2}:{t3}], 12, v{T+1}")
    a(f"s_lshl_b32 s{u0}, s{u0}, 12\ns_add_u32 s{u0}, s{u0}, s{t1}")
    a(f"v_add_u32 v{T+1}, s{u0}, v{vL16}")
    poll(T, f"s{t0}", t2, RED)
    st(6)
    for i in range(12):
        a(f"s_add_u32 m0, s{t1}, {L_AREG + i*4096}\ns_nop 0")
        a(f"buffer_load_dwordx4 v{T+1}, {sr(SKA,4)}, 0 offen sc1 lds")
        a(f"buffer_load_dwordx4 v{T+1}, {sr(SKA,4)}, 0 offen offset:1024 sc1 lds")
        a(f"v_add_u32 v{T+1}, 4096, v{T+1}")
    a("s_waitcnt vmcnt(0)")
    a("s_branch L_phase2")
    a.label("L_pollB")
    a(f"v_add_u32 v{T+1}, s{t1}, v{vL16}")
    poll(T, f"s{t0}", None, RED)
    st(6)
    for s in range(2):
        if s == 0: a(f"s_lshl_b32 s{u0}, s{sTB}, 12")
        else: a(f"s_mov_b32 s{u0}, s{sOFF}")
        for kq in range(4):
            a(f"s_add_u32 m0, s{t1}, {L_S[s] + kq*4096}\ns_nop 0")
            a(f"buffer_load_dwordx4 v{T+1}, {sr(SKB,4)}, s{u0} offen sc1 lds")
            a(f"buffer_load_dwordx4 v{T+1}, {sr(SKB,4)}, s{u0} offen offset:1024 sc1 lds")
            a(f"s_add_u32 s{u0}, s{u0}, 65536")
    a("s_branch L_phase2")

    a.label("L_compute")
    vST, vVC, XAD, WAD, WQD, GWD = 2, 3, 4, 8, 14, 15
    XR = 16; ACC = [128 + 16*u for u in range(4)]
    WF = [[192 + 16*b + 4*u for u in range(4)] for b in range(2)]
    PK = 224; GWF = [240, 244]; DAC = 248
    a("v_and_b32 v9, 31, v0\nv_lshrrev_b32 v10, 5, v0\nv_bfe_u32 v11, v0, 1, 3")
    a(f"s_lshl_b32 s{t0}, s{sKQ}, 12")
    a(f"v_lshlrev_b32 v12, 7, v9\nv_add_u32 v12, s{t0}, v12")
    for ks in range(4):
        a(f"v_or_b32 v13, {2*ks}, v10\nv_xor_b32 v13, v13, v11\nv_lshl_add_u32 v{XAD+ks}, v13, 4, v12")
    a("v_bfe_u32 v12, v0, 4, 1\nv_lshlrev_b32 v12, 5, v12\nv_and_b32 v13, 3, v0\nv_lshl_add_u32 v12, v13, 3, v12")
    a("v_bfe_u32 v13, v0, 2, 2")
    a("v_lshl_add_u32 v11, v10, 2, v13")
    a(f"v_mul_u32_u24 v11, 448, v11\nv_add_u32 v{WAD}, v11, v12")
    a("v_lshl_add_u32 v11, v10, 3, v13")
    a(f"v_lshl_add_u32 v11, v11, 6, v12\nv_add_u32 v{WQD}, {L_WQ}, v11")
    a(f"v_lshlrev_b32 v{GWD}, 4, v10\nv_add_u32 v{GWD}, {L_GW}, v{GWD}")
    a(f"v_mov_b32 v{vVC}, 0")
    a("s_mov_b32 exec_lo, 0x10000000\ns_mov_b32 exec_hi, 0x10000000")
    a(f"v_mov_b32 v{vVC}, 0x3f803f80")
    a("s_mov_b64 exec, -1")
    a("v_and_b32 v11, 0x33, v0\nv_bfe_u32 v12, v0, 2, 1\nv_lshl_or_b32 v11, v12, 3, v11\nv_bfe_u32 v12, v0, 3, 1\nv_lshl_or_b32 v11, v12, 2, v11")
    a(f"v_lshlrev_b32 v{vST}, 4, v11")
    a(f"v_mov_b32 v{T+3}, 0")
    for r in range(4): a(f"v_mov_b32 v{DAC+r}, 0")
    a("s_waitcnt lgkmcnt(0)")
    common_srds()
    srd(a, S4, pDBG, 256)
    a(f"s_lshr_b32 s{t0}, s{sG16}, 3\ns_lshl_b32 s{t0}, s{t0}, 2\ns_and_b32 s{t1}, s{sG16}, 3\ns_add_u32 s{t0}, s{t0}, s{t1}")
    a(f"s_lshl_b32 s{t0}, s{t0}, 8\ns_add_u32 s{t0}, s{t0}, s{sTAt}\ns_lshl_b32 s{u0}, s{t0}, 12")
    a(f"s_lshl_b32 s{u1}, s{sG16}, 6\ns_add_u32 s{u1}, s{u1}, s{sTAt}\ns_lshl_b32 s{u1}, s{u1}, 3\ns_add_u32 s{u1}, s{u1}, {FL1_OFF}")
    a(f"s_bitcmp1_b32 s{sG16}, 2")
    a("s_cbranch_scc1 L_1a_V")
    def reads1a(g):
        b, ks = g & 1, g & 3
        r = [f"ds_read_b128 {vr(XR+4*g,4)}, v{XAD+ks}"]
        for u in range(4):
            for e in range(2):
                r.append(f"ds_read_b64_tr_b16 {vr(WF[b][u]+2*e,2)}, v{WAD} offset:{16384 + ks*3584 + e*224 + u*56}")
        return r
    for ty in "KV":
        a.label("L_1a_" + ty)
        st(1)
        a("s_barrier")
        st(2)
        for x in reads1a(0): a(x)
        for g in range(28):
            b = g & 1
            a("s_waitcnt lgkmcnt(0)")
            nxt = []
            if g + 1 < 28:
                if (g + 1) & 3 == 0:
                    a("s_barrier")
                    c = (g + 1) >> 2
                    if c in (3, 6): st(2 + c // 3)
                    d = R_SLOT if c % 3 else -2 * R_SLOT
                    for r in range(5): a(f"v_add_u32 v{XAD+r}, {d & 0xffffffff}, v{XAD+r}")
                    if c == 5: a(f"buffer_load_dwordx2 {vr(vNON,2)}, v{T+3}, {sr(S4,4)}, 0 offen sc1")
                nxt = reads1a(g + 1)
            cut = [0, 3, 6, 9, 9]
            for u in range(4):
                D = vr(ACC[u], 16); C = "0" if g == 0 else D
                X, W = vr(XR + 4*g, 4), vr(WF[b][u], 4)
                a(f"v_mfma_f32_32x32x16_bf16 {D}, {X}, {W}, {C}" if ty == "V" else f"v_mfma_f32_32x32x16_bf16 {D}, {W}, {X}, {C}")
                for x in nxt[cut[u]:cut[u+1]]: a(x)
        st(5)
        get_nonce(True)
        a("s_nop 3")
        if ty == "V": a(f"s_add_u32 s{u0}, s{u0}, 2048")
        for u in range(4):
            D = ACC[u]; P = PK + 8 * (u & 1)
            for r in range(8): a(f"v_cvt_pk_bf16_f32 v{P+r}, v{D+2*r}, v{D+2*r+1}")
            if ty == "V":
                a("s_mov_b32 exec_lo, 0xf0000000\ns_mov_b32 exec_hi, 0xf0000000")
                for r in range(8): a(f"v_mov_b32 v{P+r}, v{vVC}")
            else:
                a(f"s_mov_b32 exec_lo, 0\nv_mov_b32 v{P+6}, 0\nv_mov_b32 v{P+7}, 0")
            a("s_mov_b64 exec, -1")
            va = vST if ty == "K" else vL16
            a(f"buffer_store_dwordx4 {vr(P,4)}, v{va}, {sr(SWS,4)}, s{u0} offen sc1")
            a(f"buffer_store_dwordx4 {vr(P+4,4)}, v{va}, {sr(SWS,4)}, s{u0} offen offset:1024 sc1")
            if u < 3: a(f"s_add_u32 s{u0}, s{u0}, 262144")
        if ty == "K": a("s_branch L_1a_join")
    a.label("L_1a_join")
    st(6)
    a(f"s_mov_b32 s{pX}, s{u1}")
    phase2_setup()
    a("s_waitcnt vmcnt(0)")
    flag_store(f"s{pX}")
    st(7)
    a("s_barrier")
    WQF = [[192 + 8*b + 4*m for m in range(2)] for b in range(2)]
    def reads1b(g):
        b = g & 1
        r = []
        for m in range(2):
            for e in range(2):
                r.append(f"ds_read_b64_tr_b16 {vr(WQF[b][m]+2*e,2)}, v{WQD} offset:{m*28672 + g*1024 + e*256}")
        r.append(f"ds_read_b128 {vr(GWF[b],4)}, v{GWD} offset:{g*32}")
        return r
    for x in reads1b(0): a(x)
    for g in range(28):
        b = g & 1
        nxt = reads1b(g + 1) if g + 1 < 28 else []
        for x in nxt: a(x)
        a(f"s_waitcnt lgkmcnt({len(nxt)})")
        for m in range(2):
            D = vr(ACC[m], 16)
            a(f"v_mfma_f32_32x32x16_bf16 {D}, {vr(WQF[b][m],4)}, {vr(XR+4*g,4)}, {'0' if g == 0 else D}")
            for r in (2*m, 2*m+1): a(f"v_dot2c_f32_bf16 v{DAC+r}, v{XR+4*g+r}, v{GWF[b]+r}")
    a("s_nop 2")
    a(f"v_add_f32 v{DAC}, v{DAC}, v{DAC+1}\nv_add_f32 v{DAC+2}, v{DAC+2}, v{DAC+3}\nv_add_f32 v{DAC}, v{DAC}, v{DAC+2}")
    a(f"v_mov_b32 v{DAC+1}, v{DAC}\ns_nop 1\nv_permlane32_swap_b32 v{DAC}, v{DAC+1}\ns_nop 1\nv_add_f32 v{DAC}, v{DAC}, v{DAC+1}")
    a(f"v_cvt_pk_bf16_f32 v{DAC}, v{DAC}, v{DAC}\nv_lshlrev_b32 v{DAC}, 16, v{DAC}")
    a(f"v_mul_f32 v{DAC}, 0x{LOG2E ^ 0x80000000:08x}, v{DAC}\nv_exp_f32 v{DAC}, v{DAC}\ns_nop 0")
    a(f"v_add_f32 v{DAC}, 1.0, v{DAC}\nv_rcp_f32 v{DAC}, v{DAC}\ns_nop 0")
    a(f"v_cvt_pk_bf16_f32 v{DAC}, v{DAC}, v{DAC}\nv_lshlrev_b32 v{DAC}, 16, v{DAC}")
    a(f"v_sub_f32 v{DAC+1}, 1.0, v{DAC}\nv_cvt_pk_bf16_f32 v{DAC+1}, v{DAC+1}, v{DAC+1}\nv_lshlrev_b32 v{DAC+1}, 16, v{DAC+1}")
    a(f"s_lshl_b32 s{t0}, s{sKQ}, 8\ns_add_u32 s{t0}, s{t0}, {L_G}")
    a(f"v_lshl_add_u32 v{T}, v{vN}, 3, s{t0}")
    a(f"ds_write_b64 v{T}, {vr(DAC,2)}")
    a(f"s_lshl_b32 s{t0}, s{sKQ}, 11\ns_add_u32 s{t0}, s{t0}, {L_QX}")
    a(f"v_add_u32 v{T+1}, s{t0}, v{vL16}")
    a(f"v_mov_b32 v{T+2}, 0x{QSCALE:08x}")
    for m in range(2):
        D = ACC[m]; P = 192 + 8*m
        for r in range(16): a(f"v_mul_f32 v{D+r}, v{T+2}, v{D+r}")
        for r in range(8): a(f"v_cvt_pk_bf16_f32 v{P+r}, v{D+2*r}, v{D+2*r+1}")
        a(f"s_mov_b32 exec_lo, 0\nv_mov_b32 v{P+6}, 0\nv_mov_b32 v{P+7}, 0\ns_mov_b64 exec, -1")
        a(f"ds_write_b128 v{T+1}, {vr(P,4)} offset:{m*8192}")
        a(f"ds_write_b128 v{T+1}, {vr(P+4,4)} offset:{m*8192+1024}")
    a("s_waitcnt lgkmcnt(0)")

    a.label("L_phase2")
    st(8)
    a("s_barrier")
    lg = Ctr(a, "lgkmcnt", 15)
    def btile(s, q): return dict(key=("B", s), Q=QB[q], O=O[f"B{q}"], mask=False, addr=[vBA0, vBA1][(s % 4) >> 1], off=(s & 1) * 16384)
    def atile(i, m): return dict(key=("A", i), Q=QA, O=O["A"], mask=m, addr=vAA, off=i * 4096)
    Btiles = [btile(s, q) for s in range(16) for q in range(2)]
    FOFF = {"K0": 0, "K1": 1024, "V0": 2048, "V1": 3072}
    def load(lg, f, t):
        a(f"ds_read_b128 {vr(FR[f],4)}, v{t['addr']} offset:{t['off'] + FOFF[f]}"); lg.issue(f)
    def reload_after(lg, f, tiles, i):
        if i + 1 < len(tiles) and tiles[i+1]["key"] != tiles[i]["key"]: load(lg, f, tiles[i+1])
    a(f"s_lshl_b32 s{t0}, s{sKQ}, 11\ns_add_u32 s{t0}, s{t0}, {L_QX}")
    a(f"v_add_u32 v{T}, s{t0}, v{vL16}")
    a(f"s_lshl_b32 s{t0}, s{sQH}, 12\ns_add_u32 s{t0}, s{t0}, {L_QX + 8192}")
    a(f"v_add_u32 v{T+1}, s{t0}, v{vL16}")
    at0 = atile(0, False)
    for j in range(2):
        a(f"ds_read_b128 {vr(QA+4*j,4)}, v{T} offset:{j*1024}"); lg.issue(f"K{j}")
        load(lg, f"K{j}", at0)
    for f in ("V0", "V1"): load(lg, f, at0)
    for q in range(2):
        for j in range(2):
            a(f"ds_read_b128 {vr(QB[q]+4*j,4)}, v{T+1} offset:{q*2048+j*1024}"); lg.issue("QB")
    a(f"s_lshl_b32 s{t0}, s{sKQ}, 8\ns_add_u32 s{t0}, s{t0}, {L_G}")
    a(f"v_lshl_add_u32 v{T+2}, v{vN}, 3, s{t0}")
    a(f"ds_read_b32 v{vGA}, v{T+2}"); lg.issue("QB")
    a(f"s_and_b32 s{t0}, s{sTBt}, 3\ns_lshl_b32 s{t0}, s{t0}, 8\ns_add_u32 s{t0}, s{t0}, {L_G + 4}")
    a(f"v_lshl_add_u32 v{T+2}, v{vN}, 3, s{t0}")
    a(f"ds_read_b32 v{vGB}, v{T+2}"); lg.issue("QB")

    def dmaB(s):
        return [f"s_add_u32 m0, s{sM0}, {L_S[s % 4]}\ns_add_u32 s{sOFF}, s{sOFF}, 4096\ns_and_b32 s{sOFF}, s{sOFF}, 0xffff",
                f"buffer_load_dwordx4 v{vDB}, {sr(SKB,4)}, s{sOFF} offen sc1 lds",
                f"buffer_load_dwordx4 v{vDB}, {sr(SKB,4)}, s{sOFF} offen offset:1024 sc1 lds"]
    def sbuf(tiles, i): return S[(len(tiles) - i) & 1]
    def qk(lg, tiles, i, j):
        t = tiles[i]; D = vr(sbuf(tiles, i), 16)
        lg.wait(f"K{j}")
        C = D if j == 1 else (vr(MASK, 16) if t["mask"] else "0")
        a(f"v_mfma_f32_32x32x16_bf16 {D}, {vr(FR[f'K{j}'],4)}, {vr(t['Q']+4*j,4)}, {C}")
        reload_after(lg, f"K{j}", tiles, i)
    def pv(lg, tiles, i, j, merge=()):
        t = tiles[i]
        lg.wait([f"V{j}"] + list(merge))
        a(f"v_smfmac_f32_32x32x32_bf16 {vr(t['O'],16)}, {vr(FR[f'V{j}'],4)}, {vr(sbuf(tiles,i)+8*j,8)}, v{vIDX}")
        reload_after(lg, f"V{j}", tiles, i)
    def slot(lg, tiles, i, extra=()):
        s0 = sbuf(tiles, i)
        extra = list(extra)
        xp = [3, 4, 6, 7, 9, 10, 11, 13, 14, 15]
        per = -(-len(extra) // len(xp)) if extra else 0
        isB1 = tiles[i]["key"][0] == "B" and tiles[i]["Q"] == QB[1]
        for r in range(16):
            if r == 2 and i > 0: pv(lg, tiles, i - 1, 1, merge=("K0", "K1") if isB1 else ())
            if r == 5 and i + 1 < len(tiles): qk(lg, tiles, i + 1, 0)
            if r == 8 and i + 1 < len(tiles): qk(lg, tiles, i + 1, 1)
            if r == 12: pv(lg, tiles, i, 0)
            if r in xp:
                for _ in range(per):
                    if extra:
                        x = extra.pop(0)
                        x() if callable(x) else a(x)
            a(f"v_exp_f32 v{s0+r}, v{s0+r}")
        assert not extra
    a(f"s_cmp_lg_u32 s{sQH}, 0")
    a("s_cbranch_scc1 L_A1")
    states = []
    for hf in range(2):
        if hf: a.label("L_A1")
        nA = 5 - hf
        tiles = [atile(i, i == (0 if hf == 0 else 3)) for i in range(nA)] + Btiles
        l2 = lg.clone(a); vm = Ctr(a, "vmcnt", 63)
        qk(l2, tiles, 0, 0); qk(l2, tiles, 0, 1)
        a("s_nop 11")
        for i in range(nA):
            ex = []
            if i == nA - 2:
                l2.wait("QB")
                if hf: a("s_waitcnt vmcnt(2)")
                a("s_barrier")
            if i == 0:
                ex = dmaB(2)
            slot(l2, tiles, i, ex)
        states.append(list(l2.q))
        if hf == 0: a("s_branch L_B")
    assert states[0] == states[1], states
    a.label("L_B")
    st(9)
    lg.q = states[0]
    vm = Ctr(a, "vmcnt", 63); vm.issue("B2"); vm.issue("B2")
    tiles = [atile(3, True)] + Btiles
    RA, LA = RED, RED + 16
    vDW = 14
    def finalize(tag, R, L, G, sOdd, sTile, mat):
        o = []
        o.append(f"v_mov_b32 v{T}, v{L}")
        o += [f"v_fma_f32 v{T}, v{R+r}, 0, v{T}" for r in range(8)]
        o.append(f"v_cmp_lt_f32 vcc, 0x{f32bits(2.0**-40):08x}, v{T}\ns_mov_b64 s[{t2}:{t3}], vcc\n"
                 f"v_cmp_gt_f32 vcc, 0x{f32bits(2.0**60):08x}, v{T}\ns_and_b64 vcc, vcc, s[{t2}:{t3}]\n"
                 f"s_cmp_eq_u64 vcc, -1\ns_cbranch_scc0 L_slow{tag}")
        o.append(lambda: a.label(f"L_fin{tag}"))
        o.append(f"v_rcp_f32 v{L}, v{L}\ns_and_b32 s{t0}, s{sOdd}, 1")
        o.append(f"v_mul_f32 v{L}, v{L}, v{G}")
        o += [f"v_mul_f32 v{R+r}, v{R+r}, v{L}" for r in range(8)]
        o += [f"v_cvt_pk_bf16_f32 v{R+r}, v{R+2*r}, v{R+2*r+1}" for r in range(4)]
        o.append(f"s_cmp_lg_u32 s{t0}, 0\ns_cselect_b32 exec_hi, -1, 0\ns_mov_b32 exec_lo, 0\nv_mov_b32 v{R+2}, 0\nv_mov_b32 v{R+3}, 0\ns_mov_b64 exec, -1")
        o.append(f"s_lshl_b32 s{t1}, s{sTile}, 5\ns_add_u32 s{t1}, s{t1}, s{sH}\ns_lshl_b32 s{t1}, s{t1}, 1\ns_add_u32 s{t1}, s{t1}, s{t0}\n"
                 f"s_lshl_b32 s{t1}, s{t1}, 10\ns_add_u32 s{t1}, s{t1}, {OF_OFF + mat*16*2048}\n"
                 f"buffer_store_dwordx4 {vr(R,4)}, v{vL16}, {sr(SWS,4)}, s{t1} offen sc1")
        return o
    def oflag(sOdd, sTile, mat):
        a(f"s_lshl_b32 s{t1}, s{sTile}, 4\ns_add_u32 s{t1}, s{t1}, s{sH}\ns_lshl_b32 s{t1}, s{t1}, 1\ns_and_b32 s{t0}, s{sOdd}, 1\ns_add_u32 s{t1}, s{t1}, s{t0}")
        a(f"s_lshl_b32 s{t1}, s{t1}, 3\ns_add_u32 s{t1}, s{t1}, {FLO_OFF + mat*16384}")
        flag_store(f"s{t1}")
    sTP, sCB = pX, pX + 1
    def wo_setup():
        a(f"s_and_b32 s{t0}, s2, 7\ns_lshl_b32 s{t0}, s{t0}, 2\ns_bfe_u32 s{t1}, s2, 0x20003\ns_add_u32 s{sTP}, s{t0}, s{t1}\ns_lshr_b32 s{sCB}, s2, 5")
        srd(a, S1, pWOA, WO_BYTES); srd(a, S2, pWOB, WO_BYTES); srd(a, S3, pOUT, X_BYTES)
        a(f"v_lshrrev_b32 v{T}, 3, v0\ns_mul_i32 s{t0}, s{sWV}, 56\nv_add_u32 v{T}, s{t0}, v{T}\nv_mul_u32_u24 v{T}, 896, v{T}")
        a(f"v_bfe_u32 v{T+1}, v0, 4, 1\nv_lshlrev_b32 v{T+1}, 2, v{T+1}\nv_and_b32 v{T+2}, 7, v0\nv_xor_b32 v{T+1}, v{T+1}, v{T+2}")
        a(f"v_lshl_add_u32 v{T}, v{T+1}, 4, v{T}\ns_min_u32 s{t0}, s{sCB}, 6\ns_lshl_b32 s{t0}, s{t0}, 7\nv_add_u32 v{vDW}, s{t0}, v{T}")
        a(f"s_mul_i32 s{pWA}, s{sWV}, 7168")
    def dmaW(n, base, SR):
        return f"s_add_u32 m0, s{pWA}, {base + n*1024}\ns_mov_b32 s{t0}, {n*7168}\nbuffer_load_dwordx4 v{vDW}, {sr(SR,4)}, s{t0} offen lds"
    def V(x, tag):
        def f():
            a(x); vm.issue(tag)
        return f
    def Lg(x, tag):
        def f():
            a(x); lg.issue(tag)
        return f
    for s in range(16):
        ex0, ex1 = [], []
        if s >= 1: vm.wait(f"B{s+1}")
        if s == 2: lg.wait("wa")
        a("s_barrier")
        if s == 8: st(10)
        if s + 3 < 16:
            d = dmaB(s + 3)
            ex0 += [d[0], V(d[1], f"B{s+3}"), V(d[2], f"B{s+3}")]
        if s == 0:
            ex1 += [f"s_lshl_b32 s{t0}, s{sKQ}, 13\ns_lshl_b32 s{t1}, s{sQH}, 11\ns_add_u32 s{t1}, s{t1}, s{t0}",
                    f"v_add_u32 v{T+1}, s{t1}, v{vL16}",
                    f"s_lshl_b32 s{t1}, s{sQH}, 12\ns_add_u32 s{t1}, s{t1}, s{t0}",
                    f"v_add_u32 v{T+2}, s{t1}, v{vL16}",
                    f"s_add_u32 s{t0}, s{t0}, {4096 + 1536}",
                    f"v_lshl_add_u32 v{T+3}, v{vN}, 4, s{t0}"]
        if s == 1:
            ex1 += [Lg(f"ds_write_b128 v{T+1}, {vr(O['A']+8*o+4*k,4)} offset:{L_SCRA + o*4096 + k*1024}", "wa") for o in range(2) for k in range(2)]
        if s == 2:
            for src in range(2):
                ex1 += [Lg(f"ds_read_b128 {vr(RA+8*src+4*k,4)}, v{T+2} offset:{L_SCRA + src*2048 + k*1024}", "ra") for k in range(2)]
                ex1 += [Lg(f"ds_read_b32 v{LA+src}, v{T+3} offset:{L_SCRA + src*2048}", "ra")]
        if s == 3:
            ex0 += [lambda: lg.wait("ra")] + [f"v_add_f32 v{RA+r}, v{RA+r}, v{RA+8+r}" for r in range(8)] + [f"v_add_f32 v{LA}, v{LA}, v{LA+1}"]
            f = finalize("A", RA, LA, vGA, sQH, sTAt, 0)
            ex1 += f[:-1] + [V(f[-1], "oa")]
        if s == 4: ex1 += [wo_setup]
        if s == 6:
            def fl():
                vm.wait("oa"); oflag(sQH, sTAt, 0); vm.issue("fa")
            ex1 += [fl]
        if 5 <= s <= 11: ex1 += [V(dmaW(s - 5, L_WOA, S1), "woa")]
        slot(lg, tiles, 1 + 2*s, ex0)
        slot(lg, tiles, 2 + 2*s, ex1)
    a("s_nop 1")
    pv(lg, tiles, len(tiles) - 1, 1)
    assert not lg.q, lg.q
    st(11)
    RB, LB = RED, RED + 32
    a(f"s_lshl_b32 s{t0}, s{sQH}, 15\ns_lshl_b32 s{t1}, s{sKQ}, 11\ns_add_u32 s{t0}, s{t0}, s{t1}\ns_add_u32 s{t0}, s{t0}, {L_SCRB}")
    a(f"v_add_u32 v{T+1}, s{t0}, v{vL16}")
    a(f"s_lshl_b32 s{t0}, s{sWV}, 13\ns_add_u32 s{t1}, s{t0}, {L_SCRB}")
    a(f"v_add_u32 v{T+2}, s{t1}, v{vL16}")
    a(f"s_or_b32 s{t0}, s{t0}, 8192\ns_add_u32 s{t0}, s{t0}, {L_SCRB + 1536}")
    a(f"v_lshl_add_u32 v{T+3}, v{vN}, 4, s{t0}")
    vm.wait("woa")
    a("s_barrier")
    for o in range(4):
        for k in range(2):
            a(f"ds_write_b128 v{T+1}, {vr(O['B0']+8*o+4*k,4)} offset:{o*8192+k*1024}")
    a("s_waitcnt lgkmcnt(0)")
    a("s_barrier")
    for src in range(4):
        for k in range(2):
            a(f"ds_read_b128 {vr(RB+8*src+4*k,4)}, v{T+2} offset:{src*2048+k*1024}")
        a(f"ds_read_b32 v{LB+src}, v{T+3} offset:{src*2048}")
    a("s_waitcnt lgkmcnt(6)")
    for r in range(8): a(f"v_add_f32 v{RB+r}, v{RB+r}, v{RB+8+r}")
    a(f"v_add_f32 v{LB}, v{LB}, v{LB+1}")
    a("s_waitcnt lgkmcnt(0)")
    for r in range(8): a(f"v_add_f32 v{RB+16+r}, v{RB+16+r}, v{RB+24+r}")
    a(f"v_add_f32 v{LB+2}, v{LB+2}, v{LB+3}")
    for r in range(8): a(f"v_add_f32 v{RB+r}, v{RB+r}, v{RB+16+r}")
    a(f"v_add_f32 v{LB}, v{LB}, v{LB+2}")
    for x in finalize("B", RB, LB, vGB, sKQ, sTBt, 1):
        x() if callable(x) else a(x)
    a("s_barrier")
    a(f"s_cmp_eq_u32 s{sCB}, 7")
    a("s_cbranch_scc0 L_p3")
    a("s_waitcnt vmcnt(0)")
    oflag(sKQ, sTBt, 1)
    a("s_branch L_fini")
    a.label("L_p3")
    for n in range(7): a(dmaW(n, L_WOB, S2))
    a("s_waitcnt vmcnt(7)")
    oflag(sKQ, sTBt, 1)
    st(12)
    ACC3 = [16, 32]; OFR = 48; W3 = [[80, 84], [128, 132]]
    vT3 = [2, 3]; vT3b = [4, 5]; vFL = 8
    a(f"v_bfe_u32 v{T}, v0, 2, 2\nv_lshlrev_b32 v{T}, 7, v{T}")
    a(f"v_bfe_u32 v{T+1}, v0, 4, 1\nv_lshl_add_u32 v{T}, v{T+1}, 5, v{T}")
    a(f"v_and_b32 v{T+1}, 3, v0\nv_lshl_add_u32 v{T}, v{T+1}, 3, v{T}")
    a(f"v_bfe_u32 v{T+1}, v0, 3, 1\nv_lshl_add_u32 v{T}, v{T+1}, 6, v{T}")
    a(f"s_mul_i32 s{t0}, s{sKQ}, 14336")
    a(f"v_add_u32 v{vT3b[0]}, s{t0}, v{T}\nv_xor_b32 v{T}, 64, v{T}\nv_add_u32 v{vT3b[1]}, s{t0}, v{T}")
    a(f"v_lshrrev_b32 v{T+1}, 5, v0")
    for c in range(2): a(f"v_lshl_add_u32 v{vT3[c]}, v{T+1}, 9, v{vT3b[c]}")
    a(f"v_and_b32 v{vFL}, 7, v0\nv_lshlrev_b32 v{vFL}, 3, v{vFL}")
    sT3, sFO, sOO = pWA + 1, pWB, pWB + 1
    a(f"s_lshl_b32 s{sT3}, s{sTP}, 1\ns_add_u32 s{sT3}, s{sT3}, s{sQH}")
    a(f"s_lshl_b32 s{t0}, s{sT3}, 8\ns_lshl_b32 s{t1}, s{sKQ}, 6\ns_add_u32 s{t0}, s{t0}, s{t1}\ns_add_u32 s{sFO}, s{t0}, {FLO_OFF}")
    a(f"s_lshl_b32 s{t0}, s{sT3}, 16\ns_lshl_b32 s{t1}, s{sKQ}, 13\ns_add_u32 s{t0}, s{t0}, s{t1}\ns_add_u32 s{sOO}, s{t0}, {OF_OFF}")
    for mat in range(2):
        poll(vFL, f"s{sFO}", None, T)
        if mat == 1: st(13)
        a(f"s_add_u32 s{t0}, s{sOO}, 4096")
        for kk in range(8):
            a(f"buffer_load_dwordx4 {vr(OFR+4*kk,4)}, v{vL16}, {sr(SWS,4)}, s{sOO if kk < 4 else t0} offen offset:{(kk&3)*1024} sc1")
        if mat == 1:
            a("s_barrier")
            for r in vT3 + vT3b: a(f"v_add_u32 v{r}, {L_WOB}, v{r}")
        def reads3(kk):
            b = kk & 1; hd, j = kk >> 1, kk & 1
            return [f"ds_read_b64_tr_b16 {vr(W3[b][ct]+2*e,2)}, v{vT3b[ct] if (j == 1 and e == 1) else vT3[ct]} offset:{(28*hd+16*j+8*e)*128}"
                    for ct in range(2) for e in range(2)]
        for x in reads3(0): a(x)
        for kk in range(8):
            nxt = reads3(kk + 1) if kk < 7 else []
            for x in nxt: a(x)
            a(f"s_waitcnt vmcnt({7-kk}) lgkmcnt({len(nxt)})")
            for ct in range(2):
                D = vr(ACC3[ct], 16)
                a(f"v_mfma_f32_32x32x16_bf16 {D}, {vr(W3[kk&1][ct],4)}, {vr(OFR+4*kk,4)}, {'0' if (kk == 0 and mat == 0) else D}")
        if mat == 0:
            a(f"s_add_u32 s{sFO}, s{sFO}, 16384\ns_add_u32 s{sOO}, s{sOO}, 32768")
    st(14)
    a(f"s_lshl_b32 s{t0}, s{sQH}, 15\ns_lshl_b32 s{t1}, s{sKQ}, 11\ns_add_u32 s{t0}, s{t0}, s{t1}")
    a(f"v_add_u32 v{T+1}, s{t0}, v{vL16}")
    a(f"s_lshl_b32 s{t0}, s{sWV}, 13")
    a(f"v_add_u32 v{T+2}, s{t0}, v{vL16}")
    a(f"s_lshl_b32 s{t0}, s{sT3}, 5\nv_add_u32 v{T+3}, s{t0}, v{vN}\nv_mul_u32_u24 v{T+3}, 896, v{T+3}")
    a(f"v_lshrrev_b32 v{T}, 5, v0\nv_lshl_add_u32 v{T+3}, v{T}, 4, v{T+3}")
    a(f"s_lshl_b32 s{t0}, s{sCB}, 7\ns_lshl_b32 s{t1}, s{sKQ}, 5\ns_add_u32 s{t0}, s{t0}, s{t1}")
    a("s_barrier")
    for o in range(4):
        for k in range(2):
            a(f"ds_write_b128 v{T+1}, {vr(ACC3[0]+8*o+4*k,4)} offset:{L_SCR3 + o*8192+k*1024}")
    a("s_waitcnt lgkmcnt(0)")
    a("s_barrier")
    R = 48
    for src in range(4):
        for k in range(2):
            a(f"ds_read_b128 {vr(R+8*src+4*k,4)}, v{T+2} offset:{L_SCR3 + src*2048+k*1024}")
    a("s_waitcnt lgkmcnt(4)")
    for r in range(8): a(f"v_add_f32 v{R+r}, v{R+r}, v{R+8+r}")
    a("s_waitcnt lgkmcnt(0)")
    for r in range(8): a(f"v_add_f32 v{R+16+r}, v{R+16+r}, v{R+24+r}")
    for r in range(8): a(f"v_add_f32 v{R+r}, v{R+r}, v{R+16+r}")
    for r in range(4): a(f"v_cvt_pk_bf16_f32 v{R+8+r}, v{R+2*r}, v{R+2*r+1}")
    a("s_nop 1")
    a(f"v_permlane32_swap_b32 v{R+8}, v{R+10}\nv_permlane32_swap_b32 v{R+9}, v{R+11}")
    a(f"buffer_store_dwordx4 {vr(R+8,4)}, v{T+3}, {sr(S3,4)}, s{t0} offen")
    a.label("L_fini")
    st.dump()
    a.label("L_end")
    a("s_endpgm")

    def slow(tag, R, L, SK, sOdd, sTile, mat):
        SS, OO, KF, VF, Q, M, DL, NI = 128, 144, 192, 200, 240, 248, 249, 251
        sT, sT1, sKO, sT0 = t0, t1, u0, u1
        a.label(f"L_slow{tag}")
        if mat == 0:
            for r in range(8): a(f"v_mov_b32 v{Q+r}, v{QA+r}")
            a(f"s_sub_i32 s{sT0}, s{sTile}, 8\ns_max_i32 s{sT0}, s{sT0}, 0\ns_add_u32 s{sT1}, s{sTile}, 1")
        else:
            for r in range(8): a(f"v_mov_b32 v{Q+r}, v{QB[0]+r}")
            a(f"s_bitcmp1_b32 s{sKQ}, 1\ns_cbranch_scc0 L_slowB_q")
            for r in range(8): a(f"v_mov_b32 v{Q+r}, v{QB[1]+r}")
            a.label("L_slowB_q")
            a(f"s_mov_b32 s{sT0}, 0\ns_mov_b32 s{sT1}, 64")
        a(f"v_mov_b32 v{M}, 0xff800000\nv_mov_b32 v{NI}, 0xff800000")
        for r in range(16): a(f"v_mov_b32 v{OO+r}, 0")
        for p in range(2):
            a(f"s_mov_b32 s{sT}, s{sT0}")
            a.label(f"L_slow{tag}_p{p}")
            a(f"s_lshl_b32 s{sKO}, s{sT}, 12")
            for j in range(2):
                a(f"buffer_load_dwordx4 {vr(KF+4*j,4)}, v{vL16}, {sr(SK,4)}, s{sKO} offen offset:{j*1024} sc1")
            if p == 1:
                for j in range(2):
                    a(f"buffer_load_dwordx4 {vr(VF+4*j,4)}, v{vL16}, {sr(SK,4)}, s{sKO} offen offset:{2048+j*1024} sc1")
            if mat == 0:
                a(f"s_sub_u32 s{t2}, s{sTile}, s{sT}\ns_lshl_b32 s{t2}, s{t2}, 5")
                a(f"v_lshrrev_b32 v{DL}, 5, v0\nv_lshlrev_b32 v{DL}, 3, v{DL}\nv_sub_u32 v{DL}, v{vN}, v{DL}")
                a(f"v_add_u32 v{DL}, s{t2}, v{DL}")
            a("s_waitcnt vmcnt(0)")
            a(f"v_mfma_f32_32x32x16_bf16 {vr(SS,16)}, {vr(KF,4)}, {vr(Q,4)}, 0")
            a(f"v_mfma_f32_32x32x16_bf16 {vr(SS,16)}, {vr(KF+4,4)}, {vr(Q+4,4)}, {vr(SS,16)}")
            a("s_nop 15")
            if mat == 0:
                for r in range(16):
                    a(f"v_subrev_u32 v{DL+1}, {16*(r>>3)+(r&7)}, v{DL}")
                    a(f"v_cmp_gt_u32 vcc, 0x100, v{DL+1}")
                    a("s_nop 1")
                    a(f"v_cndmask_b32 v{SS+r}, v{NI}, v{SS+r}, vcc")
            if p == 0:
                for r in range(16): a(f"v_max_f32 v{M}, v{M}, v{SS+r}")
            else:
                for r in range(16): a(f"v_sub_f32 v{SS+r}, v{SS+r}, v{M}")
                for r in range(16): a(f"v_exp_f32 v{SS+r}, v{SS+r}")
                a("s_nop 1")
                for j in range(2):
                    a(f"v_smfmac_f32_32x32x32_bf16 {vr(OO,16)}, {vr(VF+4*j,4)}, {vr(SS+8*j,8)}, v{vIDX}")
            a(f"s_add_u32 s{sT}, s{sT}, 1\ns_cmp_lt_u32 s{sT}, s{sT1}")
            a(f"s_cbranch_scc1 L_slow{tag}_p{p}")
            if p == 0:
                a(f"v_mov_b32 v{DL}, v{M}\ns_nop 1\nv_permlane32_swap_b32 v{M}, v{DL}\ns_nop 1\nv_max_f32 v{M}, v{M}, v{DL}")
        a("s_nop 15")
        a(f"v_mov_b32 v{DL}, v{OO+12}\nv_mov_b32 v{L}, v{OO+12}\ns_nop 1")
        a(f"v_permlane32_swap_b32 v{DL}, v{L}\ns_nop 1")
        a(f"s_bitcmp1_b32 s{sOdd}, 0\ns_cbranch_scc1 L_slow{tag}_odd")
        for r in range(8): a(f"v_mov_b32 v{R+r}, v{OO+r}")
        a(f"s_branch L_fin{tag}")
        a.label(f"L_slow{tag}_odd")
        for r in range(8): a(f"v_mov_b32 v{R+r}, v{OO+8+r}")
        a(f"s_branch L_fin{tag}")
    slow("A", RA, LA, SKA, sQH, sTAt, 0)
    slow("B", RB, LB, SKB, sKQ, sTBt, 1)
    return K, 256

def main(out):
    a = Asm()
    hdr = open("cdna_kernels/" + NAME + ".s.ref").read().split("; Override launch")[0]
    a.raw(hdr.rstrip())
    a.raw(f"; @launch grid=(256,1,1) block=(512,1,1) lds={LDS}")
    a.raw('.amdgcn_target "amdgcn-amd-amdhsa--gfx950"')
    a.raw(".text")
    K, v = kernel(a)
    a.raw('.section .rodata,"a"')
    a.raw(".p2align 6")
    a.raw(descriptor(K, v))
    open(out, "w").write(a.text())

if __name__ == "__main__":
    pos = [x for x in sys.argv[1:] if not x.startswith("--")]
    main(pos[0] if pos else "f.s")
```

```python
import sys, struct, math
from asmlib import *

NAME = "gated_mix__sliding_block__softmax_full_mha__prompt"
KV_OFF = 0
OF_OFF = 8 << 20
FL1_OFF = 12 << 20
FLO_OFF = FL1_OFF + 32768
WS_SIZE = FLO_OFF + 16384
X_BYTES = 2048 * 896
W_BYTES = 448 * 2688
WO_BYTES = 448 * 896
def f32bits(x): return struct.unpack("<I", struct.pack("<f", x))[0]
QSCALE = f32bits(math.log2(math.e) / math.sqrt(28.0))
LOG2E = f32bits(math.log2(math.e))
SPIN_MAX = 200000

OPT = dict(a.lstrip("-").split("=") if "=" in a else (a.lstrip("-"), "1") for a in sys.argv[1:] if a.startswith("--"))
STAMPS = "stamps" in OPT
RT = "rt" in OPT
ROT = int(OPT.get("rot", 1))
FLAGAT = int(OPT.get("flagat", 28))
SPF = int(OPT.get("spf", 1))
UP = int(OPT.get("up", 2))
ST_OFF = 32 << 20

R_SLOT = 30720
L_S = [0, 16384, 32768, 49152]
L_QX = 65536
L_GW, L_G, L_CNT = 98304, 99328, 100352
L_WQ = 106496
L_AREG = 106496
L_WOA, L_WOB = 106496, 49152
L_SCRA = 65536
L_SCRB = 0
L_SCR3 = 106496
LDS = 163840
APOS = int(OPT.get("apos", 4))
WQAT = [int(x) for x in OPT.get("wqat", "2,2,2,2,2,2,2,0").split(",")]

pX, pWA, pWOA, pWB, pWOB, pGW, pOUT, pDBG, pWS = 4, 6, 8, 12, 14, 16, 18, 20, 22
SWS, SKA, S1, S2, S3, S4 = 24, 28, 32, 36, 40, 44
sH, sTB, sWV, sQH, sKQ, sG16, sNON, sM0, sOFF, sTBt, sTAt, sOA, sOB, sFA, sCB = 48, 49, 50, 51, 52, 53, 54, 56, 57, 58, 59, 60, 61, 62, 63
t0, t1, t2, t3 = 64, 65, 66, 67
u0, u1 = 10, 11
sCNT = 3
sC0, sKVB = 0, 1
sFO, sOO, sOUT, sWM0 = 4, 5, 6, 7

class Stamper:
    def __init__(self, a): self.a = a
    def start(self):
        if STAMPS:
            self.a("s_memrealtime s[100:101]"); self.a("s_memtime s[68:69]")
        if RT:
            for i in range(1, 16): self.a(f"s_mov_b32 s{68+2*i}, 0")
            self.a("s_memrealtime s[68:69]")
    def step(self, s):
        if "steps" in OPT and 1 <= s <= 14: self.a(f"s_mem{'real' if OPT['stamps'] == 'r' else ''}time s[{68+2*s}:{69+2*s}]")
    def __call__(self, i):
        if "steps" in OPT: return
        if STAMPS: self.a(f"s_mem{'real' if OPT['stamps'] == 'r' else ''}time s[{68+2*i}:{69+2*i}]")
        if RT: self.a(f"s_memrealtime s[{68+2*i}:{69+2*i}]")
    def dump(self):
        a = self.a
        if RT and "echo" in OPT:
            i = int(OPT["echo"])
            a("s_waitcnt vmcnt(0)\ns_memrealtime s[98:99]\ns_waitcnt lgkmcnt(0)")
            a(f"s_cmp_lt_u32 s{sWV}, 4\ns_cbranch_scc0 L_end")
            a(f"s_sub_u32 s64, s{68+2*i}, s68\ns_lshl_b32 s64, s64, 2\ns_min_u32 s64, s64, 100000")
            a.label("L_echo")
            a("s_memrealtime s[66:67]\ns_waitcnt lgkmcnt(0)\ns_sub_u32 s65, s66, s98\ns_cmp_lt_u32 s65, s64\ns_cbranch_scc1 L_echo")
            return
        if not STAMPS: return
        a("s_waitcnt vmcnt(0)")
        a("s_memtime s[98:99]"); a("s_memrealtime s[66:67]")
        a("s_waitcnt lgkmcnt(0)")
        a("s_mov_b64 exec, -1")
        srd(a, S4, pWS, 0x100000, add=ST_OFF)
        a(f"s_lshl_b32 s64, s2, 4\ns_add_u32 s64, s64, s{sWV}\ns_lshl_b32 s64, s64, 7")
        a("v_mov_b32 v1, 0")
        for i in range(16):
            a(f"v_mov_b32 v2, s{68+2*i}")
            a(f"buffer_store_dword v2, v1, {sr(S4,4)}, s64 offen offset:{4*i}")
        a(f"v_mov_b32 v2, s100\nbuffer_store_dword v2, v1, {sr(S4,4)}, s64 offen offset:64")
        a(f"v_mov_b32 v2, s66\nbuffer_store_dword v2, v1, {sr(S4,4)}, s64 offen offset:68")
        a(f"s_getreg_b32 s65, hwreg(HW_REG_XCC_ID)\nv_mov_b32 v2, s65\nbuffer_store_dword v2, v1, {sr(S4,4)}, s64 offen offset:72")

def g16_table():
    v = 0
    for hq in range(4):
        hs = sorted(range(4*hq, 4*hq+4), key=lambda h: 0 if (56*h) % 128 > 64 else 1)
        for h, q in zip(hs, (0, 3, 1, 2)): v |= (4*hq + q) << (4*h)
    return v

def kernel(a):
    K = NAME + "_kernel"
    kernel_begin(a, K)
    st = Stamper(a)
    uid = [0]
    def lab(p):
        uid[0] += 1; return f"{p}_{uid[0]}"
    vL16 = 1
    a("s_cmp_ge_u32 s2, 256")
    a("s_cbranch_scc1 L_end")
    st.start()
    a("s_load_dwordx8 s[4:11], s[0:1], 0")
    a("s_load_dwordx8 s[12:19], s[0:1], 32")
    a("s_load_dwordx4 s[20:23], s[0:1], 64")
    a("v_lshrrev_b32 v1, 6, v0")
    a("v_and_b32 v0, 63, v0")
    a(f"v_readfirstlane_b32 s{sWV}, v1")
    a(f"v_lshlrev_b32 v{vL16}, 4, v0")
    a(f"s_and_b32 s{t0}, s2, 6\ns_lshl_b32 s{t0}, s{t0}, 1\ns_lshr_b32 s{t1}, s2, 6\ns_add_u32 s{sH}, s{t0}, s{t1}")
    a(f"s_and_b32 s{t0}, s2, 1\ns_lshl_b32 s{t0}, s{t0}, 3\ns_bfe_u32 s{t2}, s2, 0x30003\ns_add_u32 s{sTB}, s{t0}, s{t2}")
    a(f"s_lshl_b32 s{t1}, s{t1}, 1\ns_add_u32 s{sCB}, s{t1}, s{t2}")
    a(f"s_cmp_ge_u32 s{sCB}, 7\ns_cselect_b32 s{t1}, 7, 0\ns_sub_u32 s{sCB}, s{sCB}, s{t1}")
    if not ROT: a(f"s_mov_b32 s{sCB}, 0")
    tb = g16_table()
    a(f"s_mov_b32 s{t2}, 0x{tb & 0xffffffff:08x}\ns_mov_b32 s{t3}, 0x{tb >> 32:08x}")
    a(f"s_lshl_b32 s{t0}, s{sH}, 2\ns_lshr_b64 s[{t2}:{t3}], s[{t2}:{t3}], s{t0}\ns_and_b32 s{sG16}, s{t2}, 15")
    a(f"s_lshr_b32 s{sQH}, s{sWV}, 2")
    a(f"s_and_b32 s{sKQ}, s{sWV}, 3")

    vDB, vBA0, vDA, vAA, vIDX, vN, vGA, vGB = 2, 3, 4, 5, 6, 7, 8, 9
    T = 10
    vDW = 254; vZ = 255
    QB = [16, 24]; QA = 32
    FR = {"K0": 40, "K1": 44, "V0": 48, "V1": 52}
    S = [56, 72]
    RED = 88
    O = {"B0": 160, "B1": 176, "A": 208}
    MASK = 224
    vNON = 252
    vAW, vAR, vAL = 120, 121, 122

    def scalar_setup():
        srd(a, SWS, pWS, WS_SIZE)
        a(f"s_lshl_b32 s{t0}, s{sH}, 18")
        srd(a, SKA, pWS, 262144, add=f"s{t0}")
        a(f"s_add_u32 s{sKVB}, s{t0}, {16 << 18}")
        a(f"s_lshl_b32 s{sM0}, s{sWV}, 11")
        a(f"s_lshl_b32 s{t1}, s{sTB}, 2")
        a(f"s_lshl_b32 s{t0}, s{sQH}, 1\ns_add_u32 s{t0}, s{t0}, s{t1}\ns_lshr_b32 s{t2}, s{sKQ}, 1")
        a(f"s_add_u32 s{sTBt}, s{t0}, s{t2}")
        a(f"s_add_u32 s{sTAt}, s{t1}, s{sKQ}")
        a(f"s_lshl_b32 s{t0}, s{sTAt}, 5\ns_add_u32 s{t0}, s{t0}, s{sH}\ns_lshl_b32 s{t0}, s{t0}, 1\ns_add_u32 s{t0}, s{t0}, s{sQH}")
        a(f"s_lshl_b32 s{t0}, s{t0}, 10\ns_add_u32 s{sOA}, s{t0}, {OF_OFF}")
        a(f"s_lshl_b32 s{t0}, s{sTAt}, 4\ns_add_u32 s{t0}, s{t0}, s{sH}\ns_lshl_b32 s{t0}, s{t0}, 1\ns_add_u32 s{t0}, s{t0}, s{sQH}")
        a(f"s_lshl_b32 s{t0}, s{t0}, 3\ns_add_u32 s{sFA}, s{t0}, {FLO_OFF}")
        a(f"s_lshl_b32 s{t0}, s{sTBt}, 5\ns_add_u32 s{t0}, s{t0}, s{sH}\ns_lshl_b32 s{t0}, s{t0}, 1\ns_and_b32 s{t1}, s{sKQ}, 1\ns_add_u32 s{t0}, s{t0}, s{t1}")
        a(f"s_lshl_b32 s{t0}, s{t0}, 10\ns_add_u32 s{sOB}, s{t0}, {OF_OFF + 32768}")
        a(f"s_mov_b32 s{sOFF}, 8192")

    def late_setup():
        srd(a, S1, pWOA, WO_BYTES); srd(a, S2, pWOB, WO_BYTES); srd(a, S3, pOUT, X_BYTES)
        a(f"s_and_b32 s{t0}, s2, 7\ns_lshl_b32 s{t0}, s{t0}, 2\ns_bfe_u32 s{t1}, s2, 0x20003\ns_add_u32 s{t0}, s{t0}, s{t1}\ns_lshr_b32 s{sCB}, s2, 5")
        a(f"s_lshl_b32 s{t0}, s{t0}, 1\ns_add_u32 s{t2}, s{t0}, s{sQH}")
        a(f"s_lshl_b32 s{t0}, s{t2}, 8\ns_lshl_b32 s{t1}, s{sKQ}, 6\ns_add_u32 s{t0}, s{t0}, s{t1}\ns_add_u32 s{sFO}, s{t0}, {FLO_OFF}")
        a(f"s_lshl_b32 s{t0}, s{t2}, 16\ns_lshl_b32 s{t1}, s{sKQ}, 13\ns_add_u32 s{t0}, s{t0}, s{t1}\ns_add_u32 s{sOO}, s{t0}, {OF_OFF}")
        a(f"s_mul_i32 s{t0}, s{t2}, {32*896}\ns_lshl_b32 s{t1}, s{sCB}, 7\ns_add_u32 s{t0}, s{t0}, s{t1}\ns_lshl_b32 s{t1}, s{sKQ}, 5\ns_add_u32 s{sOUT}, s{t0}, s{t1}")
        a(f"s_lshl_b32 s{sWM0}, s{sWV}, 10")
        a(f"v_lshrrev_b32 v{T}, 3, v0\ns_lshl_b32 s{t0}, s{sWV}, 3\nv_add_u32 v{T}, s{t0}, v{T}\nv_mul_u32_u24 v{T}, 896, v{T}")
        a(f"v_bfe_u32 v{T+1}, v0, 4, 1\nv_lshlrev_b32 v{T+1}, 2, v{T+1}\nv_and_b32 v{T+2}, 7, v0\nv_xor_b32 v{T+1}, v{T+1}, v{T+2}")
        a(f"v_lshl_add_u32 v{T}, v{T+1}, 4, v{T}\ns_min_u32 s{t0}, s{sCB}, 6\ns_lshl_b32 s{t0}, s{t0}, 7\nv_add_u32 v{vDW}, s{t0}, v{T}")

    def phase2_setup():
        a(f"s_lshr_b32 s{t0}, s{sWV}, 1\ns_lshl_b32 s{t0}, s{t0}, 16\ns_and_b32 s{t1}, s{sWV}, 1\ns_lshl_b32 s{t1}, s{t1}, 11\ns_add_u32 s{t0}, s{t0}, s{t1}\ns_add_u32 s{t0}, s{t0}, s{sKVB}")
        a(f"v_add_u32 v{vDB}, s{t0}, v{vL16}")
        a(f"s_lshl_b32 s{t0}, s{sKQ}, 12\ns_add_u32 s{t0}, s{t0}, {L_S[0]}")
        a(f"v_add_u32 v{vBA0}, s{t0}, v{vL16}")
        a(f"s_lshl_b32 s{t0}, s{sTB}, 14\ns_sub_u32 s{t0}, s{t0}, 32768\ns_add_u32 s{t0}, s{t0}, s{sM0}")
        a(f"v_add_u32 v{vDA}, s{t0}, v{vL16}")
        a(f"s_mul_i32 s{t0}, s{sQH}, 5\ns_add_u32 s{t0}, s{t0}, s{sKQ}\ns_lshl_b32 s{t0}, s{t0}, 12\ns_add_u32 s{t0}, s{t0}, {L_AREG}")
        a(f"v_add_u32 v{vAA}, s{t0}, v{vL16}")
        a(f"v_mov_b32 v{vIDX}, 0xdddddddd")
        a(f"v_and_b32 v{vN}, 31, v0")
        a(f"v_lshrrev_b32 v{T}, 5, v0\nv_lshlrev_b32 v{T}, 3, v{T}\nv_sub_u32 v{T}, v{vN}, v{T}")
        a(f"s_cmp_eq_u32 s{sQH}, 0")
        a(f"s_cselect_b32 s{t0}, 0, 0xff800000")
        a(f"s_cselect_b32 s{t1}, 0xff800000, 0")
        a(f"v_mov_b32 v{T+1}, s{t0}\nv_mov_b32 v{T+2}, s{t1}")
        for r in range(0, 16, 2):
            a(f"v_cmp_le_i32 s[{t2}:{t3}], {16*(r>>3) + (r&7)}, v{T}")
            a(f"v_cmp_le_i32 vcc, {16*(r>>3) + (r&7) + 1}, v{T}")
            a("s_nop 0")
            a(f"v_cndmask_b32 v{MASK+r}, v{T+1}, v{T+2}, s[{t2}:{t3}]")
            a(f"v_cndmask_b32_e64 v{MASK+r+1}, v{T+1}, v{T+2}, vcc")

    def get_nonce(issued):
        L, D = lab("L_non"), lab("L_non_done")
        a(f"s_mov_b32 s{sCNT}, {SPIN_MAX}")
        if issued: a(f"s_branch {L}_chk")
        a.label(L)
        a(f"buffer_load_dwordx2 {vr(vNON,2)}, v{vZ}, {sr(S4,4)}, 0 offen sc1")
        a.label(L + "_chk")
        a("s_waitcnt vmcnt(0)")
        a(f"v_readfirstlane_b32 s{sNON}, v{vNON}\nv_readfirstlane_b32 s{sNON+1}, v{vNON+1}")
        a(f"s_sub_u32 s{sCNT}, s{sCNT}, 1\ns_cbranch_scc1 {D}")
        a(f"s_cmp_eq_u32 s{sNON}, 0\ns_cbranch_scc1 {L}")
        a.label(D)

    def poll(vaddr, soff, need, tmp):
        L, D = lab("L_poll"), lab("L_poll_done")
        a(f"s_mov_b32 s{sCNT}, {SPIN_MAX}")
        a.label(L)
        a(f"buffer_load_dwordx2 {vr(tmp,2)}, v{vaddr}, {sr(SWS,4)}, {soff} offen sc1")
        a("s_waitcnt vmcnt(0)")
        a(f"v_cmp_eq_u64 vcc, s[{sNON}:{sNON+1}], {vr(tmp,2)}")
        if need is not None: a(f"s_orn2_b64 vcc, vcc, s[{need}:{need+1}]")
        a(f"s_cmp_eq_u64 vcc, -1\ns_cbranch_scc1 {D}")
        a(f"s_sleep {OPT.get('sleep', 1)}")
        a(f"s_sub_u32 s{sCNT}, s{sCNT}, 1\ns_cbranch_scc0 {L}")
        a.label(D)

    def flag_store(soff):
        return f"s_mov_b64 exec, 1\nbuffer_store_dwordx2 {vr(vNON,2)}, v{vZ}, {sr(SWS,4)}, {soff} offen sc1\ns_mov_b64 exec, -1"

    a(f"v_mov_b32 v{vZ}, 0")
    a(f"s_cmp_lt_u32 s{sWV}, 4")
    a("s_cbranch_scc1 L_compute")
    XA, WA, WQA, GWR = 16, 20, 24, 26
    sLX, sLW, sOX, sOW = u0, u1, sOA, sOB
    a("v_lshrrev_b32 v2, 3, v0")
    a(f"s_lshl_b32 s{t0}, s{sTB}, 7\ns_lshl_b32 s{t1}, s{sKQ}, 5\ns_add_u32 s{t0}, s{t0}, s{t1}")
    a(f"v_add_u32 v2, s{t0}, v2")
    a("v_mul_u32_u24 v2, 896, v2")
    a("v_lshrrev_b32 v3, 4, v0\nv_and_b32 v4, 7, v0\nv_xor_b32 v3, v3, v4\nv_lshlrev_b32 v3, 4, v3\nv_xor_b32 v4, 64, v3")
    a(f"v_add_u32 v{XA}, v2, v3\nv_add_u32 v{XA+1}, v2, v4\nv_add_u32 v{XA+1}, 7168, v{XA+1}")
    a(f"v_add_u32 v{XA+2}, 14336, v{XA}\nv_add_u32 v{XA+3}, 14336, v{XA+1}")
    a(f"s_and_b32 s{t0}, s{sG16}, 7\ns_mul_i32 s{t0}, s{t0}, 224\ns_add_u32 s{t0}, s{t0}, 896")
    a(f"s_lshl_b32 s{t1}, s{sKQ}, 6")
    for n in range(4):
        a(f"v_add_u32 v2, s{t1}, v0")
        if n: a(f"v_add_u32 v2, {256*n}, v2")
        a("v_mul_u32_u24 v3, 4682, v2\nv_lshrrev_b32 v3, 16, v3")
        a("v_mul_u32_u24 v4, 14, v3\nv_sub_u32 v4, v2, v4")
        a("v_and_b32 v5, 1, v3\nv_lshlrev_b32 v5, 2, v5\nv_bfe_u32 v6, v3, 1, 2\nv_and_b32 v3, 0x78, v3\nv_or3_b32 v3, v3, v5, v6")
        a("v_mul_u32_u24 v3, 2688, v3\nv_lshl_add_u32 v3, v4, 4, v3")
        a(f"v_add_u32 v{WA+n}, s{t0}, v3")
    a(f"s_lshl_b32 s{sOX}, s{sCB}, 7\ns_mul_i32 s{sOW}, s{sCB}, {64*2688}")
    a("s_waitcnt lgkmcnt(0)")
    a(f"s_lshl_b32 s{sLX}, s{sKQ}, 12")
    a(f"s_lshl_b32 s{sLW}, s{sKQ}, 10")
    srd(a, S1, pX, X_BYTES)
    a(f"s_cmp_lt_u32 s{sG16}, 8")
    a(f"s_cselect_b32 s{S2}, s{pWA}, s{pWB}\ns_cselect_b32 s{S2+1}, s{pWA+1}, s{pWB+1}")
    a(f"s_mov_b32 s{S2+2}, {W_BYTES}\ns_mov_b32 s{S2+3}, 0x00020000")
    a(f"s_cmp_ge_u32 s{sKQ}, 2")
    a("s_cbranch_scc1 L_load3")
    def loader(nw):
        vm = Ctr(a, "vmcnt", 63)
        sOQ, sLQ = sFA, sTBt
        nq = [0]
        def issue(c):
            slot = (c % 3) * R_SLOT
            for n in range(4):
                a(f"s_add_u32 m0, s{sLX}, {slot + n*1024}\ns_nop 0")
                a(f"buffer_load_dwordx4 v{XA+n}, {sr(S1,4)}, s{sOX} offen lds"); vm.issue(c)
                if n < nw:
                    a(f"s_add_u32 m0, s{sLW}, {slot + 16384 + n*4096}\ns_nop 0")
                    a(f"buffer_load_dwordx4 v{WA+n}, {sr(S2,4)}, s{sOW} offen lds"); vm.issue(c)
            a(f"s_add_u32 s{sOX}, s{sOX}, 128\ns_add_u32 s{sOW}, s{sOW}, {64*2688}\ns_cmp_eq_u32 s{sOX}, 896")
            a(f"s_cselect_b32 s{sOX}, 0, s{sOX}\ns_cselect_b32 s{sOW}, 0, s{sOW}")
        def wq(k):
            for _ in range(k):
                a(f"s_add_u32 m0, s{sLQ}, {nq[0]*1024}\ns_nop 0")
                a(f"buffer_load_dwordx4 v{WQA}, {sr(S3,4)}, s{sOQ} offen lds"); vm.issue("q")
                a(f"s_add_u32 s{sOQ}, s{sOQ}, 43008\ns_cmp_eq_u32 s{sOQ}, {28*43008}\ns_cselect_b32 s{sOQ}, 0, s{sOQ}")
                nq[0] += 1
        st(1)
        for c in range(UP): issue(c)
        srd(a, S3, pWA if nw == 4 else pWB, W_BYTES)
        a("v_lshrrev_b32 v2, 2, v0\nv_mul_u32_u24 v2, 2688, v2\nv_and_b32 v3, 3, v0\nv_lshl_add_u32 v2, v3, 4, v2")
        a(f"s_mul_i32 s{t0}, s{sH}, 56\nv_add_u32 v{WQA}, s{t0}, v2")
        a(f"s_mul_i32 s{sLQ}, s{sKQ}, 14336\ns_add_u32 s{sLQ}, s{sLQ}, {L_WQ}")
        a(f"s_and_b32 s{t0}, s{sKQ}, 1\ns_mul_i32 s{t0}, s{t0}, 14\ns_lshl_b32 s{t1}, s{sCB}, 2\ns_add_u32 s{t0}, s{t0}, s{t1}")
        a(f"s_cmp_ge_u32 s{t0}, 28\ns_cselect_b32 s{t1}, 28, 0\ns_sub_u32 s{t0}, s{t0}, s{t1}\ns_mul_i32 s{sOQ}, s{t0}, 43008")
        wq(WQAT[0])
        if nw == 4:
            srd(a, S4, pDBG, 256)
            L = lab("L_notag")
            a(f"s_or_b32 s{t0}, s2, s{sKQ}\ns_cmp_lg_u32 s{t0}, 0\ns_cbranch_scc1 {L}")
            a(f"s_memrealtime s[{sNON}:{sNON+1}]\ns_waitcnt lgkmcnt(0)")
            a(f"s_or_b32 s{sNON}, s{sNON}, 1\ns_xor_b32 s{sNON+1}, s{sNON+1}, 0x5bd1e995")
            a(f"v_mov_b32 v{vNON}, s{sNON}\nv_mov_b32 v{vNON+1}, s{sNON+1}")
            a("s_mov_b64 exec, 1")
            a(f"buffer_store_dwordx2 {vr(vNON,2)}, v{vZ}, {sr(S4,4)}, 0 offen sc1")
            a("s_mov_b64 exec, -1")
            a("s_waitcnt vmcnt(0)")
            a.label(L)
            srd(a, S4, pGW, 896)
            a(f"s_mul_i32 s{t0}, s{sKQ}, 224\ns_lshl_b32 s{t1}, s{sCB}, 6\ns_add_u32 s{t1}, s{t1}, s{t0}")
            a(f"v_min_u32 v2, 55, v0\nv_add_u32 v3, s{t1}, v2")
            a(f"v_add_u32 v2, s{t0}, v2\nv_lshlrev_b32 v2, 6, v2\nv_add_u32 v{GWR+4}, {L_WQ + 56}, v2")
            for i in range(4):
                a(f"v_add_u32 v4, {56*i}, v3\nv_subrev_u32 v5, 448, v4\nv_min_u32 v4, v4, v5\nv_lshlrev_b32 v4, 1, v4")
                a(f"buffer_load_ushort v{GWR+i}, v4, {sr(S4,4)}, 0 offen"); vm.issue("gw")
            srd(a, S4, pDBG, 256)
        else:
            a(f"v_mov_b32 v2, {L_CNT}\nds_write_b32 v2, v{vZ}\ns_waitcnt lgkmcnt(0)")
            srd(a, S4, pDBG, 256)
        pw = pWOA if nw == 4 else pWOB
        a(f"s_lshr_b32 s{t0}, s2, 3\ns_lshl_b32 s{t0}, s{t0}, 1\ns_and_b32 s{t1}, s{sKQ}, 1\ns_add_u32 s{t0}, s{t0}, s{t1}\ns_mul_i32 s{t0}, s{t0}, {49*128}")
        a(f"s_add_u32 s{t2}, s{pw}, s{t0}\ns_addc_u32 s{t3}, s{pw+1}, 0")
        for c in range(7):
            vm.wait(c)
            if c in (0, 3, 6): st(2 + c // 3)
            a("s_barrier")
            nx = c + 2 if UP == 2 else (c + 2 if c >= 1 else None)
            if nx is not None and nx <= 6: issue(nx)
            wq(WQAT[c + 1])
            if SPF and 1 <= c <= 5:
                for k in range(10*(c-1), min(49, 10*c)): a(f"s_load_dword s{sM0}, s[{t2}:{t3}], {k*128}")
            if c == 5: a(f"buffer_load_dwordx2 {vr(vNON,2)}, v{vZ}, {sr(S4,4)}, 0 offen sc1"); vm.issue("n")
        assert nq[0] == 14
        a("s_waitcnt lgkmcnt(0)")
        scalar_setup()
        phase2_setup()
        late_setup()
        get_nonce(True)
        if nw == 4:
            for i in range(4): a(f"ds_write_b16 v{GWR+4}, v{GWR+i} offset:{56*64*i}")
            a("s_waitcnt lgkmcnt(0)")
        a(f"v_and_b32 v{T+2}, 15, v0\nv_lshlrev_b32 v{T}, 7, v{T+2}")
        a(f"s_and_b32 s{t1}, s{sKQ}, 1\ns_lshl_b32 s{u1}, s{t1}, 11\ns_lshl_b32 s{t1}, s{t1}, 2")
        if nw == 4: a(f"s_add_u32 s{t1}, s{t1}, 8")
        a(f"s_lshr_b32 s{t0}, s{sH}, 2\ns_add_u32 s{t0}, s{t0}, s{t1}\ns_lshl_b32 s{t0}, s{t0}, 11\ns_add_u32 s{t0}, s{t0}, {FL1_OFF}")
        if nw == 3:
            a(f"s_sub_i32 s{u0}, s{sTB}, 2\ns_max_i32 s{u0}, s{u0}, 0")
            a(f"v_max_u32 v{T+2}, s{u0}, v{T+2}\nv_min_u32 v{T+2}, s{sTB}, v{T+2}\nv_lshlrev_b32 v{T}, 7, v{T+2}")
        else:
            a(f"s_add_u32 s{t1}, s{u1}, s{sKVB}\nv_add_u32 v{T+1}, s{t1}, v{vL16}")
        st(5)
        a("s_barrier")
        if "psleep" in OPT: a(f"s_sleep {OPT['psleep']}")
        poll(T, f"s{t0}", None, RED)
        st(6)
        if nw == 4:
            for s in range(3):
                a(f"s_mov_b32 s{u0}, {s*4096}")
                for kq in range(4):
                    a(f"s_add_u32 m0, s{u1}, {L_S[s] + kq*4096}\ns_nop 0")
                    a(f"buffer_load_dwordx4 v{T+1}, {sr(SWS,4)}, s{u0} offen sc1 lds")
                    a(f"buffer_load_dwordx4 v{T+1}, {sr(SWS,4)}, s{u0} offen offset:1024 sc1 lds")
                    a(f"s_add_u32 s{u0}, s{u0}, 65536")
            a("s_waitcnt vmcnt(16)")
        a("s_branch L_phase2")
    loader(4)
    a.label("L_load3")
    loader(3)

    a.label("L_compute")
    vST, vVC, XAD, WAD, WQD, GWD = 240, 241, 242, 246, 14, 15
    XR = 16; ACC = [128 + 16*u for u in range(4)]
    WF = [[192 + 16*b + 4*u for u in range(4)] for b in range(2)]
    PK = 192; DAC = 248
    a("v_and_b32 v9, 31, v0\nv_lshrrev_b32 v10, 5, v0\nv_bfe_u32 v11, v0, 1, 3")
    a(f"s_lshl_b32 s{t0}, s{sKQ}, 12")
    a(f"v_lshlrev_b32 v12, 7, v9\nv_add_u32 v12, s{t0}, v12")
    for ks in range(4):
        a(f"v_or_b32 v13, {2*ks}, v10\nv_xor_b32 v13, v13, v11\nv_lshl_add_u32 v{XAD+ks}, v13, 4, v12")
    a("v_bfe_u32 v12, v0, 4, 1\nv_lshlrev_b32 v12, 5, v12\nv_and_b32 v13, 3, v0\nv_lshl_add_u32 v12, v13, 3, v12")
    a("v_bfe_u32 v13, v0, 2, 2")
    a("v_lshl_add_u32 v11, v10, 2, v13")
    a(f"v_mul_u32_u24 v11, 448, v11\nv_add_u32 v{WAD}, v11, v12")
    a("v_lshl_add_u32 v11, v10, 3, v13")
    a(f"v_lshl_add_u32 v11, v11, 6, v12\nv_add_u32 v{WQD}, {L_WQ}, v11")
    a(f"v_mov_b32 v{vVC}, 0")
    a("s_mov_b32 exec_lo, 0x10000000\ns_mov_b32 exec_hi, 0x10000000")
    a(f"v_mov_b32 v{vVC}, 0x3f803f80")
    a("s_mov_b64 exec, -1")
    a("v_and_b32 v11, 0x33, v0\nv_bfe_u32 v12, v0, 2, 1\nv_lshl_or_b32 v11, v12, 3, v11\nv_bfe_u32 v12, v0, 3, 1\nv_lshl_or_b32 v11, v12, 2, v11")
    a(f"v_lshlrev_b32 v{vST}, 4, v11")
    a("s_waitcnt lgkmcnt(0)")
    scalar_setup()
    phase2_setup()
    late_setup()
    srd(a, S4, pDBG, 256)
    a(f"s_lshr_b32 s{t0}, s{sG16}, 3\ns_lshl_b32 s{t0}, s{t0}, 2\ns_and_b32 s{t1}, s{sG16}, 3\ns_add_u32 s{t0}, s{t0}, s{t1}")
    a(f"s_lshl_b32 s{t0}, s{t0}, 8\ns_add_u32 s{t0}, s{t0}, s{sTAt}\ns_lshl_b32 s{u0}, s{t0}, 12")
    a(f"s_lshl_b32 s{u1}, s{sG16}, 4\ns_add_u32 s{u1}, s{u1}, s{sTB}\ns_lshl_b32 s{u1}, s{u1}, 7\ns_add_u32 s{u1}, s{u1}, {FL1_OFF}")
    a(f"s_bitcmp1_b32 s{sG16}, 2")
    a("s_cbranch_scc1 L_1a_V")
    def reads1a(g):
        b, ks = g & 1, g & 3
        r = [f"ds_read_b128 {vr(XR+4*g,4)}, v{XAD+ks}"]
        for u in range(4):
            for e in range(2):
                r.append(f"ds_read_b64_tr_b16 {vr(WF[b][u]+2*e,2)}, v{WAD} offset:{16384 + ks*3584 + e*224 + u*56}")
        return r
    for ty in "KV":
        a.label("L_1a_" + ty)
        if ty == "V": a(f"s_add_u32 s{u0}, s{u0}, 2048")
        st(1)
        a("s_barrier")
        st(2)
        lg = Ctr(a, "lgkmcnt", 15)
        def rd1a(g, lo, hi):
            for k, x in list(enumerate(reads1a(g)))[lo:hi]:
                a(x); lg.issue((g, 0 if k == 0 else (k - 1) // 2))
        rd1a(0, 0, 9)
        for g in range(28):
            b = g & 1
            edge = g + 1 < 28 and (g + 1) & 3 == 0
            cut = [0, 0, 0, 5, 9] if edge else [0, 4, 8, 9, 9]
            for u in range(4):
                if edge and u == 2:
                    c = (g + 1) >> 2
                    lg.wait_all()
                    if c == 6: get_nonce(True)
                    a("s_barrier")
                    if c in (3, 6): st(2 + c // 3)
                    d = R_SLOT if c % 3 else -2 * R_SLOT
                    for r in (0, 4): a(f"v_add_u32 v{XAD+r}, {d & 0xffffffff}, v{XAD+r}")
                lg.wait([(g, u)])
                D = vr(ACC[u], 16); C = "0" if g == 0 else D
                X, W = vr(XR + 4*g, 4), vr(WF[b][u], 4)
                a(f"v_mfma_f32_32x32x16_bf16 {D}, {X}, {W}, {C}" if ty == "V" else f"v_mfma_f32_32x32x16_bf16 {D}, {W}, {X}, {C}")
                if g + 1 < 28: rd1a(g + 1, cut[u], cut[u+1])
                if edge and u == 3:
                    for r in (1, 2, 3): a(f"v_add_u32 v{XAD+r}, {d & 0xffffffff}, v{XAD+r}")
                    if c == 4: a(f"buffer_load_dwordx2 {vr(vNON,2)}, v{vZ}, {sr(S4,4)}, 0 offen sc1")
        st(5)
        a("s_nop 8")
        for u in range(4):
            D = ACC[u]; P = PK + 8 * (u & 1)
            for r in range(8): a(f"v_cvt_pk_bf16_f32 v{P+r}, v{D+2*r}, v{D+2*r+1}")
            if ty == "V":
                a("s_mov_b32 exec_lo, 0xf0000000\ns_mov_b32 exec_hi, 0xf0000000")
                for r in range(8): a(f"v_mov_b32 v{P+r}, v{vVC}")
            else:
                a(f"s_mov_b32 exec_lo, 0\nv_mov_b32 v{P+6}, 0\nv_mov_b32 v{P+7}, 0")
            a("s_mov_b64 exec, -1")
            va = vST if ty == "K" else vL16
            a(f"buffer_store_dwordx4 {vr(P,4)}, v{va}, {sr(SWS,4)}, s{u0} offen sc1")
            a(f"buffer_store_dwordx4 {vr(P+4,4)}, v{va}, {sr(SWS,4)}, s{u0} offen offset:1024 sc1")
            if u < 3: a(f"s_add_u32 s{u0}, s{u0}, 262144")
        if ty == "K": a("s_branch L_1a_join")
    a.label("L_1a_join")
    lg = Ctr(a, "lgkmcnt", 15)
    def sendflag():
        a(f"v_mov_b32 v{T}, {L_CNT}\nv_mov_b32 v{T+1}, 1")
        a("s_waitcnt vmcnt(0)")
        a(f"s_mov_b64 exec, 1\nds_add_rtn_u32 v{T+1}, v{T}, v{T+1}\ns_waitcnt lgkmcnt(0)")
        lg.q = []
        a(f"v_cmp_eq_u32 vcc, 3, v{T+1}\ns_cbranch_vccz L_noflag")
        a(f"buffer_store_dwordx2 {vr(vNON,2)}, v{vZ}, {sr(SWS,4)}, s{u1} offen sc1")
        a.label("L_noflag")
        a("s_mov_b64 exec, -1")
        st(7)
    if FLAGAT < 0:
        if "fine" in OPT: st(4)
        sendflag()
    a("s_barrier")
    st(6)
    NB = 4
    QBUF = [160, 168, 176, 184]
    def reads1b(g):
        b = QBUF[g % NB]
        r = []
        for m in range(2):
            for e in range(2):
                r.append(f"ds_read_b64_tr_b16 {vr(b+4*m+2*e,2)}, v{WQD} offset:{m*28672 + g*1024 + e*256}")
        return r
    LOOK = 3
    def rd(g):
        for x in reads1b(g):
            a(x); lg.issue(g)
    for g in range(LOOK): rd(g)
    for g in range(28):
        b = QBUF[g % NB]
        if g == FLAGAT: sendflag()
        lg.wait(g)
        for m in range(2):
            D = vr(ACC[m], 16)
            a(f"v_mfma_f32_32x32x16_bf16 {D}, {vr(b+4*m,4)}, {vr(XR+4*g,4)}, {'0' if g == 0 else D}")
            if g + LOOK < 28:
                for x in reads1b(g + LOOK)[2*m:2*m+2]:
                    a(x); lg.issue(g + LOOK)
    if "fine" in OPT: st(1)
    if FLAGAT == 28: sendflag()
    a(f"s_lshl_b32 s{t0}, s{sKQ}, 8\ns_add_u32 s{t0}, s{t0}, {L_G}")
    a(f"v_lshl_add_u32 v{T}, v{vN}, 3, s{t0}")
    a(f"s_lshl_b32 s{t0}, s{sKQ}, 11\ns_add_u32 s{t0}, s{t0}, {L_QX}")
    a(f"v_add_u32 v{T+1}, s{t0}, v{vL16}")
    a(f"v_mov_b32 v{T+2}, 0x{QSCALE:08x}")
    a("s_nop 4")
    a(f"v_mov_b32 v{DAC}, v{ACC[0]+12}")
    gate = [f"v_cvt_pk_bf16_f32 v{DAC}, v{DAC}, v{DAC}", f"v_lshlrev_b32 v{DAC}, 16, v{DAC}",
            f"v_mul_f32 v{DAC}, 0x{LOG2E ^ 0x80000000:08x}, v{DAC}", f"v_exp_f32 v{DAC}, v{DAC}", "s_nop 0",
            f"v_add_f32 v{DAC}, 1.0, v{DAC}", f"v_rcp_f32 v{DAC}, v{DAC}", "s_nop 0",
            f"v_cvt_pk_bf16_f32 v{DAC}, v{DAC}, v{DAC}", f"v_lshlrev_b32 v{DAC}, 16, v{DAC}",
            f"v_sub_f32 v{DAC+1}, 1.0, v{DAC}", f"v_cvt_pk_bf16_f32 v{DAC+1}, v{DAC+1}, v{DAC+1}", f"v_lshlrev_b32 v{DAC+1}, 16, v{DAC+1}",
            "s_mov_b32 exec_lo, 0", f"ds_write_b64 v{T}, {vr(DAC,2)}", "s_mov_b64 exec, -1"]
    for m in range(2):
        D = ACC[m]; P = 192 + 8*m
        for r in range(0, 16, 2): a(f"v_pk_mul_f32 {vr(D+r,2)}, {vr(D+r,2)}, {vr(T+2,2)} op_sel_hi:[1,0]")
        for r in range(8): a(f"v_cvt_pk_bf16_f32 v{P+r}, v{D+2*r}, v{D+2*r+1}")
        a(f"s_mov_b32 exec_lo, 0\nv_mov_b32 v{P+6}, 0\nv_mov_b32 v{P+7}, 0\ns_mov_b64 exec, -1")
        a(f"ds_write_b128 v{T+1}, {vr(P,4)} offset:{m*8192}")
        a(f"ds_write_b128 v{T+1}, {vr(P+4,4)} offset:{m*8192+1024}")
    for x in gate: a(x)
    a("s_waitcnt lgkmcnt(0)")

    a.label("L_phase2")
    a(f"s_lshl_b32 s{t0}, s{sKQ}, 11\ns_add_u32 s{t0}, s{t0}, {L_QX}")
    a(f"v_add_u32 v{T}, s{t0}, v{vL16}")
    a(f"s_lshl_b32 s{t0}, s{sQH}, 12\ns_add_u32 s{t0}, s{t0}, {L_QX + 8192}")
    a(f"v_add_u32 v{T+1}, s{t0}, v{vL16}")
    st(8)
    a("s_barrier")
    lg = Ctr(a, "lgkmcnt", 15)
    vm = Ctr(a, "vmcnt", 63)
    for k in ["B1"] * 8 + ["B2"] * 8: vm.issue(k)
    def btile(s, q): return dict(key=("B", s), Q=QB[q], O=O[f"B{q}"], mask=False, addr=vBA0, off=L_S[s % 4], s=S[q])
    def atile(i, m, sb): return dict(key=("A", i), Q=QA, O=O["A"], mask=m, addr=vAA, off=i * 4096, s=sb)
    Btiles = [btile(s, q) for s in range(16) for q in range(2)]
    Atiles = [[atile(i, i == 0, sb) for i, sb in enumerate([S[0], S[1], S[0], RED, S[1]])],
              [atile(i, i == 3, sb) for i, sb in enumerate([S[0], S[1], S[0], S[1]])]]
    seqs = [Btiles[:2*APOS] + Atiles[h] + Btiles[2*APOS:] for h in range(2)]
    FOFF = {"K0": 0, "K1": 1024, "V0": 2048, "V1": 3072}
    def load(lg, f, t):
        a(f"ds_read_b128 {vr(FR[f],4)}, v{t['addr']} offset:{t['off'] + FOFF[f]}"); lg.issue(f)
    def reload_after(lg, f, tiles, i):
        if i + 1 < len(tiles) and tiles[i+1]["key"] != tiles[i]["key"]: load(lg, f, tiles[i+1])
    for j in range(2):
        a(f"ds_read_b128 {vr(QB[0]+4*j,4)}, v{T+1} offset:{j*1024}"); lg.issue(f"K{j}")
        load(lg, f"K{j}", Btiles[0])
    for j in range(2):
        a(f"ds_read_b128 {vr(QB[1]+4*j,4)}, v{T+1} offset:{2048+j*1024}"); lg.issue("Q1")
    for f in ("V0", "V1"): load(lg, f, Btiles[0])
    for j in range(2):
        a(f"ds_read_b128 {vr(QA+4*j,4)}, v{T} offset:{j*1024}"); lg.issue("QA")
    a(f"s_lshl_b32 s{t0}, s{sKQ}, 8\ns_add_u32 s{t0}, s{t0}, {L_G}")
    a(f"v_lshl_add_u32 v{T+2}, v{vN}, 3, s{t0}")
    a(f"ds_read_b32 v{vGA}, v{T+2}"); lg.issue("QA")
    a(f"s_and_b32 s{t0}, s{sTBt}, 3\ns_lshl_b32 s{t0}, s{t0}, 8\ns_add_u32 s{t0}, s{t0}, {L_G + 4}")
    a(f"v_lshl_add_u32 v{T+2}, v{vN}, 3, s{t0}")
    a(f"ds_read_b32 v{vGB}, v{T+2}"); lg.issue("QA")
    ZR, PO = RED + 24, RED + 28
    for r in range(4): a(f"v_mov_b32 v{ZR+r}, 0")
    for r in range(4): a(f"v_mov_b32 v{PO+r}, -1")
    for k in ("B0", "B1", "A"): a(f"v_mfma_f32_32x32x16_bf16 {vr(O[k],16)}, {vr(ZR,4)}, {vr(ZR,4)}, 0")

    def dmaB(s):
        return [f"s_add_u32 m0, s{sM0}, {L_S[s % 4]}\ns_add_u32 s{sOFF}, s{sOFF}, 4096",
                f"buffer_load_dwordx4 v{vDB}, {sr(SWS,4)}, s{sOFF} offen sc1 lds",
                f"buffer_load_dwordx4 v{vDB}, {sr(SWS,4)}, s{sOFF} offen offset:1024 sc1 lds"]
    def dmaA(i):
        return [f"s_add_u32 m0, s{sM0}, {L_AREG + i*16384}" + (f"\nv_add_u32 v{vDA}, 16384, v{vDA}" if i else "\ns_nop 0"),
                f"buffer_load_dwordx4 v{vDA}, {sr(SKA,4)}, 0 offen sc1 lds",
                f"buffer_load_dwordx4 v{vDA}, {sr(SKA,4)}, 0 offen offset:1024 sc1 lds"]
    def qk(lg, tiles, i, j):
        t = tiles[i]; D = vr(t["s"], 16)
        lg.wait([f"K{j}"] + (["Q1"] if i == 1 else []))
        C = D if j == 1 else (vr(MASK, 16) if t["mask"] else "0")
        a(f"v_mfma_f32_32x32x16_bf16 {D}, {vr(FR[f'K{j}'],4)}, {vr(t['Q']+4*j,4)}, {C}")
        reload_after(lg, f"K{j}", tiles, i)
    def pv(lg, tiles, i, j, merge=()):
        t = tiles[i]
        lg.wait([f"V{j}"] + list(merge))
        a(f"v_smfmac_f32_32x32x32_bf16 {vr(t['O'],16)}, {vr(FR[f'V{j}'],4)}, {vr(t['s']+8*j,8)}, v{vIDX}")
        reload_after(lg, f"V{j}", tiles, i)
    def slot(lg, tiles, i, extra=(), xp=(3, 4, 6, 7, 9, 10, 11, 13, 14, 15)):
        s0 = tiles[i]["s"]
        extra = list(extra)
        per = -(-len(extra) // len(xp)) if extra else 0
        isB1 = tiles[i]["key"][0] == "B" and tiles[i]["Q"] == QB[1]
        for r in range(16):
            if r == 2 and i > 0: pv(lg, tiles, i - 1, 1, merge=("K0", "K1") if isB1 else ())
            if r == 5 and i + 1 < len(tiles): qk(lg, tiles, i + 1, 0)
            if r == 8 and i + 1 < len(tiles): qk(lg, tiles, i + 1, 1)
            if r == 12: pv(lg, tiles, i, 0)
            if r in xp:
                for _ in range(per):
                    if extra:
                        x = extra.pop(0)
                        x() if callable(x) else a(x)
            a(f"v_exp_f32 v{s0+r}, v{s0+r}")
        assert not extra
    tiles = seqs[1]
    qk(lg, tiles, 0, 0); qk(lg, tiles, 0, 1)
    for x in [f"s_lshl_b32 s{t0}, s{sKQ}, 13", f"s_add_u32 s{t0}, s{t0}, {L_SCRA}", f"s_lshl_b32 s{t1}, s{sQH}, 11", f"s_add_u32 s{t1}, s{t1}, s{t0}",
              f"v_add_u32 v{vAW}, s{t1}, v{vL16}", f"s_lshl_b32 s{t1}, s{sQH}, 12", f"s_add_u32 s{t1}, s{t1}, s{t0}",
              f"v_add_u32 v{vAR}, s{t1}, v{vL16}", f"s_add_u32 s{t0}, s{t0}, {4096 + 1536}", f"v_lshl_add_u32 v{vAL}, v{vN}, 4, s{t0}"]: a(x)
    RA, LA = RED, RED + 16
    def finalize(tag, R, L, G, sOdd, sDst):
        o = []
        o.append(f"v_fma_f32 v{T}, v{R}, 0, v{L}")
        o += [f"v_fma_f32 v{T}, v{R+r}, 0, v{T}" for r in range(1, 8)]
        o.append(f"v_cmp_lt_f32 vcc, 0x{f32bits(2.0**-40):08x}, v{T}\ns_mov_b64 s[{t2}:{t3}], vcc\n"
                 f"v_cmp_gt_f32 vcc, 0x{f32bits(2.0**60):08x}, v{T}\ns_and_b64 vcc, vcc, s[{t2}:{t3}]\n"
                 f"s_cmp_eq_u64 vcc, -1\ns_cbranch_scc0 L_slow{tag}")
        o.append(lambda: a.label(f"L_fin{tag}"))
        o.append(f"v_rcp_f32 v{L}, v{L}\ns_bitcmp1_b32 s{sOdd}, 0\ns_cselect_b32 s{t0}, -1, 0")
        o.append(f"v_mul_f32 v{L}, v{L}, v{G}")
        o += [f"v_mul_f32 v{R+r}, v{R+r}, v{L}" for r in range(8)]
        o += [f"v_cvt_pk_bf16_f32 v{R+r}, v{R+2*r}, v{R+2*r+1}" for r in range(4)]
        o.append(f"s_mov_b32 exec_hi, s{t0}\ns_mov_b32 exec_lo, 0\nv_mov_b32 v{R+2}, 0\nv_mov_b32 v{R+3}, 0\ns_mov_b64 exec, -1")
        o.append(f"buffer_store_dwordx4 {vr(R,4)}, v{vL16}, {sr(SWS,4)}, s{sDst} offen sc1")
        return o
    def dmaW(n, base, SR):
        return f"s_add_u32 m0, s{sWM0}, {base + n*8192}\ns_mov_b32 s{t1}, {n*64*896}\nbuffer_load_dwordx4 v{vDW}, {sr(SR,4)}, s{t1} offen lds"
    def V(x, tag):
        def f():
            a(x); vm.issue(tag)
        return f
    def Lg(x, tag):
        def f():
            a(x); lg.issue(tag)
        return f
    def trio(d, tag): return [d[0], V(d[1], tag), V(d[2], tag)]
    vBW, vBR, vBL, vBX, vFL = 123, 124, 125, 126, 127
    OFA = 208
    sOA2 = u1
    idx = 0
    P = APOS
    for s in range(16):
        ex0, ex1 = [], []
        vm.wait(f"B{s+1}")
        if s == P - 1: vm.wait("A")
        if s == 1: lg.wait("QA")
        if s == P + 1: lg.wait("wa")
        if s == 15: vm.wait("woa")
        a("s_barrier")
        st.step(s - 1)
        if s == P: st(9)
        if s == 10: st(10)
        if "fine" in OPT and s in (0, 1): st(2 + s)
        if s + 3 < 16: ex0 += trio(dmaB(s + 3), f"B{s+3}")
        if s == 0: ex0 += trio(dmaA(0), "A"); ex1 += trio(dmaA(1), "A") + trio(dmaA(2), "A")
        if s == 1: ex1 += [f"s_add_u32 s{t0}, s{sOA}, 32768", V(f"buffer_store_dwordx4 {vr(PO,4)}, v{vL16}, {sr(SWS,4)}, s{t0} offen sc1", "po")]
        if s == P:
            ex1 += [Lg(f"ds_write_b128 v{vAW}, {vr(O['A']+8*o+4*k,4)} offset:{o*4096 + k*1024}", "wa") for o in range(2) for k in range(2)]
        if s == P + 1:
            for src in range(2):
                ex1 += [Lg(f"ds_read_b128 {vr(RA+8*src+4*k,4)}, v{vAR} offset:{src*2048 + k*1024}", "ra") for k in range(2)]
                ex1 += [Lg(f"ds_read_b32 v{LA+src}, v{vAL} offset:{src*2048}", "ra")]
        if s == P + 2:
            ex0 += [lambda: lg.wait("ra")] + [f"v_add_f32 v{RA+r}, v{RA+r}, v{RA+8+r}" for r in range(8)] + [f"v_add_f32 v{LA}, v{LA}, v{LA+1}"]
            f = finalize("A", RA, LA, vGA, sQH, sOA)
            ex1 += f[:-1] + [V(f[-1], "oa")]
        if s == P + 4:
            def fl():
                vm.wait("oa"); a(flag_store(f"s{sFA}")); vm.issue("fa")
            ex1 += [fl]
        if P + 3 <= s <= P + 6:
            n = 2 * (s - P - 3)
            ex1 += [V(dmaW(k, L_WOA, S1), "woa") for k in (n, n + 1) if k < 7]
        if s in (11, 12): ex1 += [V(dmaW(k, L_WOB, S2), "wob") for k in ((3, 4) if s == 11 else (5, 6))]
        if s == 10 and not SPF:
            ex0 += [f"v_min_u32 v{T}, 23, v0\ns_mul_i32 s{t0}, s{sWV}, 24", f"v_add_u32 v{T}, s{t0}, v{T}", f"v_mul_u32_u24 v{T}, 896, v{T}\ns_min_u32 s{t0}, s{sCB}, 6\ns_lshl_b32 s{t0}, s{t0}, 7",
                    V(f"buffer_load_dword v{T+1}, v{T}, {sr(S2,4)}, s{t0} offen", "pf")]
        if s == 12:
            ex0 += [f"v_and_b32 v{vFL}, 7, v0", f"v_lshlrev_b32 v{vFL}, 3, v{vFL}",
                    V(f"buffer_load_dwordx2 {vr(T+2,2)}, v{vFL}, {sr(SWS,4)}, s{sFO} offen sc1", "fl")]
        if s == 13:
            def chk():
                vm.wait("fl")
                a(f"v_cmp_eq_u64 vcc, s[{sNON}:{sNON+1}], {vr(T+2,2)}\ns_cmp_eq_u64 vcc, -1\ns_cbranch_scc0 L_aflag_spin")
                a.label("L_aflag_ok")
                a(f"s_add_u32 s{sOA2}, s{sOO}, 4096")
            ol = [V(f"buffer_load_dwordx4 {vr(OFA+4*kk,4)}, v{vL16}, {sr(SWS,4)}, s{sOO if kk < 4 else sOA2} offen offset:{(kk&3)*1024} sc1", "ofa") for kk in range(8)]
            ex0 += [chk] + ol[:4]; ex1 += ol[4:]
        if s == 14:
            ex0 += [f"s_mul_i32 s{t0}, s{sQH}, 24576", f"v_add_u32 v{vBW}, s{t0}, v{vL16}",
                    f"s_add_u32 s{t0}, s{t0}, 1536", f"v_lshl_add_u32 v{vBL}, v{vN}, 4, s{t0}",
                    f"s_and_b32 s{t0}, s{sWM0}, 0x1800\ns_add_u32 s{t0}, s{t0}, {L_WOB + 16384}", f"v_lshl_add_u32 v{vBX}, v0, 2, s{t0}"]
        slot(lg, tiles, idx, ex0); idx += 1
        if s == P - 1:
            assert not ex1
            a(f"s_cmp_lg_u32 s{sQH}, 0")
            a("s_cbranch_scc1 L_A1")
            states = []
            for hf in range(2):
                if hf: a.label("L_A1")
                l2 = lg.clone(a)
                for i in range(idx, idx + 6 - hf): slot(l2, seqs[hf], i)
                states.append(list(l2.q))
                if hf == 0: a("s_branch L_B")
            assert states[0] == states[1], states
            a.label("L_B")
            lg.q = states[0]
            idx += 5
        elif s < 15:
            slot(lg, tiles, idx, ex1); idx += 1
    assert idx == len(tiles) - 1
    RB, LB = RED, RED + 24
    for kq in range(1, 4):
        a(f"s_cmp_eq_u32 s{sKQ}, {kq}\ns_cbranch_scc1 L_tail{kq}")
    lg0 = lg
    for kq in range(4):
        if kq: a.label(f"L_tail{kq}")
        lg = lg0.clone(a)
        def wr(o):
            sl = kq if kq < o else kq - 1
            return [f"ds_write_b128 v{vBW}, {vr(O['B0']+8*o+4*k,4)} offset:{(o*3+sl)*2048 + k*1024}" for k in range(2)]
        wl = lambda: [f"ds_write_b32 v{vBX}, v{O['B0']+8*kq+4}"]
        ex = [x for o in range(2) if o != kq for x in wr(o)] + (wl() if kq == 1 else [])
        slot(lg, tiles, idx, ex, xp=(13, 14, 15))
        a("s_nop 1")
        pv(lg, tiles, len(tiles) - 1, 1)
        if kq == 0: st(11)
        a("s_nop 11")
        for x in [x for o in (2, 3) if o != kq for x in wr(o)] + (wl() if kq == 3 else []): a(x)
        a("s_waitcnt lgkmcnt(0)")
        a("s_barrier")
        own = O['B0'] + 8*kq
        for sl in range(3):
            for k in range(2):
                a(f"ds_read_b128 {vr(RB+8*sl+4*k,4)}, v{vBW} offset:{(kq*3+sl)*2048 + k*1024}")
        if kq & 1:
            a("s_waitcnt lgkmcnt(4)")
            for r in range(8): a(f"v_add_f32 v{RB+r}, v{RB+r}, v{own+r}")
            a("s_waitcnt lgkmcnt(0)")
            for r in range(8): a(f"v_add_f32 v{RB+8+r}, v{RB+8+r}, v{RB+16+r}")
            for r in (4, 0, 1, 2, 3, 5, 6, 7):
                a(f"v_add_f32 v{RB+r}, v{RB+r}, v{RB+8+r}")
                if r == 4: a(f"v_mov_b32 v{LB}, v{RB+4}\nv_mov_b32 v{LB+1}, v{RB+4}")
            a(f"v_permlane32_swap_b32 v{LB+1}, v{LB}")
        else:
            for sl in range(3): a(f"ds_read_b32 v{LB+sl}, v{vBL} offset:{((kq+1)*3+sl)*2048}")
            a(f"v_or_b32 v{vBX}, 128, v{vBX}")
            a(f"ds_read_b32 v{LB+3}, v{vBX}")
            a("s_waitcnt lgkmcnt(8)")
            for r in range(8): a(f"v_add_f32 v{RB+r}, v{RB+r}, v{own+r}")
            a("s_waitcnt lgkmcnt(4)")
            for r in range(8): a(f"v_add_f32 v{RB+8+r}, v{RB+8+r}, v{RB+16+r}")
            for r in range(8): a(f"v_add_f32 v{RB+r}, v{RB+r}, v{RB+8+r}")
            a("s_waitcnt lgkmcnt(0)")
            a(f"v_add_f32 v{LB}, v{LB}, v{LB+3}\nv_add_f32 v{LB+1}, v{LB+1}, v{LB+2}\nv_add_f32 v{LB}, v{LB}, v{LB+1}")
        if kq < 3: a("s_branch L_tail_join")
    a.label("L_tail_join")
    a("s_nop 0")
    for x in finalize("B", RB, LB, vGB, sKQ, sOB):
        x() if callable(x) else a(x)
    a(f"s_cmp_eq_u32 s{sCB}, 7")
    a("s_cbranch_scc1 L_fini")
    for n in range(3): a(dmaW(n, L_WOB, S2))
    OFB = 48
    def oloads(OF, lo):
        for kk in range(lo, 8):
            a(f"buffer_load_dwordx4 {vr(OF+4*kk,4)}, v{vL16}, {sr(SWS,4)}, s{sOO if kk < 4 else u0} offen offset:{(kk&3)*1024} sc1")
    a(f"s_add_u32 s{sOO}, s{sOO}, 32768\ns_add_u32 s{u0}, s{sOO}, 4096")
    oloads(OFB, 0)
    st(12)
    ACC3 = [16, 32]; W3 = 128
    vT3 = [2, 3]; vT3b = [4, 5]
    a(f"v_bfe_u32 v{T}, v0, 2, 2\nv_lshlrev_b32 v{T}, 7, v{T}")
    a(f"v_bfe_u32 v{T+1}, v0, 4, 1\nv_lshl_add_u32 v{T}, v{T+1}, 5, v{T}")
    a(f"v_and_b32 v{T+1}, 3, v0\nv_lshl_add_u32 v{T}, v{T+1}, 3, v{T}")
    a(f"v_bfe_u32 v{T+1}, v0, 3, 1\nv_lshl_add_u32 v{T}, v{T+1}, 6, v{T}")
    a(f"s_mul_i32 s{t0}, s{sKQ}, 14336\ns_add_u32 s{t0}, s{t0}, {L_WOA}")
    a(f"v_add_u32 v{vT3b[0]}, s{t0}, v{T}\nv_xor_b32 v{T}, 64, v{T}\nv_add_u32 v{vT3b[1]}, s{t0}, v{T}")
    a(f"v_lshrrev_b32 v{T+1}, 5, v0")
    for c in range(2): a(f"v_lshl_add_u32 v{vT3[c]}, v{T+1}, 9, v{vT3b[c]}")
    def reads3(kk):
        hd, j = kk >> 1, kk & 1
        for ct in range(2):
            for e in range(2):
                a(f"ds_read_b64_tr_b16 {vr(W3+8*kk+4*ct+2*e,2)}, v{vT3b[ct] if (j == 1 and e == 1) else vT3[ct]} offset:{(28*hd+16*j+8*e)*128}")
    def mm(OF, kk, first):
        for ct in range(2):
            D = vr(ACC3[ct], 16)
            a(f"v_mfma_f32_32x32x16_bf16 {D}, {vr(W3+8*kk+4*ct,4)}, {vr(OF+4*kk,4)}, {'0' if first else D}")
    for kk in range(3): reads3(kk)
    a("s_waitcnt vmcnt(12)")
    for kk in range(8):
        a(f"s_waitcnt lgkmcnt({min(8, 4*(7-kk))})")
        mm(OFA, kk, kk == 0)
        if kk + 3 < 8: reads3(kk + 3)
    for r in vT3 + vT3b: a(f"v_add_u32 v{r}, {(L_WOB - L_WOA) & 0xffffffff}, v{r}")
    a("s_waitcnt vmcnt(8)")
    a("s_barrier")
    for kk in range(8): reads3(kk)
    a(f"v_add_u32 v{vBW}, {L_SCR3}, v{vBW}")
    a(f"v_mul_u32_u24 v{T+3}, 896, v{vN}\nv_lshrrev_b32 v{T}, 5, v0\nv_lshl_add_u32 v{T+3}, v{T}, 4, v{T+3}")
    a(f"s_mov_b32 s{sCNT}, {SPIN_MAX}")
    a("s_waitcnt lgkmcnt(0)")
    st(13)
    for kk in range(8):
        L = f"L_ob{kk}"
        a.label(L)
        a(f"s_waitcnt vmcnt({7-kk})")
        f = OFB + 4*kk
        a(f"v_max3_u32 v{T}, v{f}, v{f+1}, v{f+2}\nv_max_u32 v{T}, v{T}, v{f+3}\nv_cmp_eq_u32 vcc, -1, v{T}")
        a(f"s_cbranch_vccnz L_retry{kk}")
        a.label(L + "_go")
        mm(OFB, kk, False)
    st(14)
    for kq in range(1, 4):
        a(f"s_cmp_eq_u32 s{sKQ}, {kq}\ns_cbranch_scc1 L_fin3_{kq}")
    R = 88
    for kq in range(4):
        if kq: a.label(f"L_fin3_{kq}")
        a("s_nop 9")
        for o in range(4):
            if o == kq: continue
            sl = kq if kq < o else kq - 1
            for k in range(2):
                a(f"ds_write_b128 v{vBW}, {vr(ACC3[0]+8*o+4*k,4)} offset:{(o*3+sl)*2048 + k*1024}")
        a("s_waitcnt lgkmcnt(0)")
        a("s_barrier")
        for sl in range(3):
            for k in range(2):
                a(f"ds_read_b128 {vr(R+8*sl+4*k,4)}, v{vBW} offset:{(kq*3+sl)*2048 + k*1024}")
        a("s_waitcnt lgkmcnt(4)")
        for r in range(8): a(f"v_add_f32 v{R+r}, v{R+r}, v{ACC3[0]+8*kq+r}")
        if kq < 3: a("s_branch L_fin3_join")
    a.label("L_fin3_join")
    a("s_waitcnt lgkmcnt(0)")
    for r in range(8): a(f"v_add_f32 v{R+8+r}, v{R+8+r}, v{R+16+r}")
    for r in range(8): a(f"v_add_f32 v{R+r}, v{R+r}, v{R+8+r}")
    for r in range(4): a(f"v_cvt_pk_bf16_f32 v{R+8+r}, v{R+2*r}, v{R+2*r+1}")
    a("s_nop 1")
    a(f"v_permlane32_swap_b32 v{R+8}, v{R+10}\nv_permlane32_swap_b32 v{R+9}, v{R+11}")
    a(f"buffer_store_dwordx4 {vr(R+8,4)}, v{T+3}, {sr(S3,4)}, s{sOUT} offen")
    a.label("L_fini")
    a("s_waitcnt vmcnt(0)")
    st.dump()
    a.label("L_end")
    a("s_endpgm")
    a.label("L_aflag_spin")
    poll(vFL, f"s{sFO}", None, T + 2)
    a("s_branch L_aflag_ok")
    for kk in range(8):
        a.label(f"L_retry{kk}")
        a(f"s_sub_u32 s{sCNT}, s{sCNT}, 1\ns_cbranch_scc1 L_giveup{kk}")
        a("s_waitcnt vmcnt(0)")
        oloads(OFB, kk)
        a(f"s_branch L_ob{kk}")
        a.label(f"L_giveup{kk}")
        a(f"s_mov_b32 s{sCNT}, 0\ns_branch L_ob{kk}_go")

    def slow(tag, R, L, sOdd, sTile, mat):
        SS, OO, KF, VF, Q, M, DL, NI = 128, 144, 192, 200, 240, 248, 249, 251
        sT, sT1, sKO, sT0 = t0, t1, u0, u1
        SK = SKA if mat == 0 else SWS
        a.label(f"L_slow{tag}")
        if mat == 0:
            for r in range(8): a(f"v_mov_b32 v{Q+r}, v{QA+r}")
            a(f"s_sub_i32 s{sT0}, s{sTile}, 8\ns_max_i32 s{sT0}, s{sT0}, 0\ns_add_u32 s{sT1}, s{sTile}, 1")
        else:
            for r in range(8): a(f"v_mov_b32 v{Q+r}, v{QB[0]+r}")
            a(f"s_bitcmp1_b32 s{sKQ}, 1\ns_cbranch_scc0 L_slowB_q")
            for r in range(8): a(f"v_mov_b32 v{Q+r}, v{QB[1]+r}")
            a.label("L_slowB_q")
            a(f"s_mov_b32 s{sT0}, 0\ns_mov_b32 s{sT1}, 64")
        a(f"v_mov_b32 v{M}, 0xff800000\nv_mov_b32 v{NI}, 0xff800000")
        for r in range(16): a(f"v_mov_b32 v{OO+r}, 0")
        for p in range(2):
            a(f"s_mov_b32 s{sT}, s{sT0}")
            a.label(f"L_slow{tag}_p{p}")
            a(f"s_lshl_b32 s{sKO}, s{sT}, 12")
            if mat == 1: a(f"s_add_u32 s{sKO}, s{sKO}, s{sKVB}")
            for j in range(2):
                a(f"buffer_load_dwordx4 {vr(KF+4*j,4)}, v{vL16}, {sr(SK,4)}, s{sKO} offen offset:{j*1024} sc1")
            if p == 1:
                for j in range(2):
                    a(f"buffer_load_dwordx4 {vr(VF+4*j,4)}, v{vL16}, {sr(SK,4)}, s{sKO} offen offset:{2048+j*1024} sc1")
            if mat == 0:
                a(f"s_sub_u32 s{t2}, s{sTile}, s{sT}\ns_lshl_b32 s{t2}, s{t2}, 5")
                a(f"v_lshrrev_b32 v{DL}, 5, v0\nv_lshlrev_b32 v{DL}, 3, v{DL}\nv_sub_u32 v{DL}, v{vN}, v{DL}")
                a(f"v_add_u32 v{DL}, s{t2}, v{DL}")
            a("s_waitcnt vmcnt(0)")
            a(f"v_mfma_f32_32x32x16_bf16 {vr(SS,16)}, {vr(KF,4)}, {vr(Q,4)}, 0")
            a(f"v_mfma_f32_32x32x16_bf16 {vr(SS,16)}, {vr(KF+4,4)}, {vr(Q+4,4)}, {vr(SS,16)}")
            a("s_nop 15")
            if mat == 0:
                for r in range(16):
                    a(f"v_subrev_u32 v{DL+1}, {16*(r>>3)+(r&7)}, v{DL}")
                    a(f"v_cmp_gt_u32 vcc, 0x100, v{DL+1}")
                    a("s_nop 1")
                    a(f"v_cndmask_b32 v{SS+r}, v{NI}, v{SS+r}, vcc")
            if p == 0:
                for r in range(16): a(f"v_max_f32 v{M}, v{M}, v{SS+r}")
            else:
                for r in range(16): a(f"v_sub_f32 v{SS+r}, v{SS+r}, v{M}")
                for r in range(16): a(f"v_exp_f32 v{SS+r}, v{SS+r}")
                a("s_nop 1")
                for j in range(2):
                    a(f"v_smfmac_f32_32x32x32_bf16 {vr(OO,16)}, {vr(VF+4*j,4)}, {vr(SS+8*j,8)}, v{vIDX}")
            a(f"s_add_u32 s{sT}, s{sT}, 1\ns_cmp_lt_u32 s{sT}, s{sT1}")
            a(f"s_cbranch_scc1 L_slow{tag}_p{p}")
            if p == 0:
                a(f"v_mov_b32 v{DL}, v{M}\ns_nop 1\nv_permlane32_swap_b32 v{M}, v{DL}\ns_nop 1\nv_max_f32 v{M}, v{M}, v{DL}")
        a("s_nop 15")
        a(f"v_mov_b32 v{DL}, v{OO+12}\nv_mov_b32 v{L}, v{OO+12}\ns_nop 1")
        a(f"v_permlane32_swap_b32 v{DL}, v{L}\ns_nop 1")
        a(f"s_bitcmp1_b32 s{sOdd}, 0\ns_cbranch_scc1 L_slow{tag}_odd")
        for r in range(8): a(f"v_mov_b32 v{R+r}, v{OO+r}")
        a(f"s_branch L_fin{tag}")
        a.label(f"L_slow{tag}_odd")
        for r in range(8): a(f"v_mov_b32 v{R+r}, v{OO+8+r}")
        a(f"s_branch L_fin{tag}")
    slow("A", RA, LA, sQH, sTAt, 0)
    slow("B", RB, LB, sKQ, sTBt, 1)
    return K, 256

def main(out):
    a = Asm()
    hdr = open("cdna_kernels/" + NAME + ".s.ref").read().split("; Override launch")[0]
    a.raw(hdr.rstrip())
    a.raw(f"; @launch grid=(256,1,1) block=(512,1,1) lds={LDS}")
    a.raw('.amdgcn_target "amdgcn-amd-amdhsa--gfx950"')
    a.raw(".text")
    K, v = kernel(a)
    a.raw('.section .rodata,"a"')
    a.raw(".p2align 6")
    a.raw(descriptor(K, v))
    open(out, "w").write(a.text())

if __name__ == "__main__":
    pos = [x for x in sys.argv[1:] if not x.startswith("--")]
    main(pos[0] if pos else "f.s")
```

```python
import sys, struct, math
from asmlib import *

NAME = "gated_mix__sliding_block__softmax_full_mha__prompt"
KV_OFF = 0
OF_OFF = 8 << 20
FL1_OFF = 12 << 20
FLO_OFF = FL1_OFF + 32768
WS_SIZE = FLO_OFF
X_BYTES = 2048 * 896
W_BYTES = 448 * 2688
WO_BYTES = 448 * 896
def f32bits(x): return struct.unpack("<I", struct.pack("<f", x))[0]
QSCALE = f32bits(math.log2(math.e) / math.sqrt(28.0))
LOG2E = f32bits(math.log2(math.e))
SPIN_MAX = 200000

OPT = dict(a.lstrip("-").split("=") if "=" in a else (a.lstrip("-"), "1") for a in sys.argv[1:] if a.startswith("--"))
STAMPS = "stamps" in OPT
RT = "rt" in OPT
ROT = int(OPT.get("rot", 1))
FLAGAT = int(OPT.get("flagat", 28))
OBAT = int(OPT.get("obat", 3))
SPF = int(OPT.get("spf", 1))
POAT = int(OPT.get("poat", -1))
PK2 = int(OPT.get("pk", 1))
QPF = int(OPT.get("qpf", -1))
UP = int(OPT.get("up", 2))
ST_OFF = 32 << 20

R_SLOT = 30720
L_S = [0, 16384, 32768, 49152]
L_QX = 65536
L_GW, L_G, L_CNT = 98304, 99328, 100352
L_WQ = 106496
L_AREG = 106496
L_WOA, L_WOB = 106496, 49152
L_SCRA = 65536
L_SCRB = 0
L_SCR3 = 106496
LDS = 163840
APOS = int(OPT.get("apos", 5))
WQAT = [int(x) for x in OPT.get("wqat", "1,0,0,0,0,3,3,0").split(",")]

pX, pWA, pWOA, pWB, pWOB, pGW, pOUT, pDBG, pWS = 4, 6, 8, 12, 14, 16, 18, 20, 22
SWS, SKA, S1, S2, S3, S4 = 24, 28, 32, 36, 40, 44
sH, sTB, sWV, sQH, sKQ, sG16, sNON, sM0, sOFF, sTBt, sTAt, sOA, sOB, sFA, sCB = 48, 49, 50, 51, 52, 53, 54, 56, 57, 58, 59, 60, 61, 62, 63
t0, t1, t2, t3 = 64, 65, 66, 67
u0, u1 = 10, 11
sCNT = 3
sC0, sKVB = 0, 1
sFO, sOO, sOUT, sWM0 = 4, 5, 6, 7
sHI, sQM = 8, 12

class Stamper:
    def __init__(self, a): self.a = a
    def start(self):
        if STAMPS:
            self.a("s_memrealtime s[100:101]"); self.a("s_memtime s[68:69]")
        if RT:
            for i in range(1, 16): self.a(f"s_mov_b32 s{68+2*i}, 0")
            self.a("s_memrealtime s[68:69]")
    def step(self, s):
        if "steps" in OPT and 1 <= s <= 14: self.a(f"s_mem{'real' if OPT['stamps'] == 'r' else ''}time s[{68+2*s}:{69+2*s}]")
    def __call__(self, i):
        if "steps" in OPT: return
        if STAMPS: self.a(f"s_mem{'real' if OPT['stamps'] == 'r' else ''}time s[{68+2*i}:{69+2*i}]")
        if RT: self.a(f"s_memrealtime s[{68+2*i}:{69+2*i}]")
    def dump(self):
        a = self.a
        if RT and "echo" in OPT:
            i = int(OPT["echo"])
            a("s_waitcnt vmcnt(0)\ns_memrealtime s[98:99]\ns_waitcnt lgkmcnt(0)")
            a(f"s_cmp_lt_u32 s{sWV}, 4\ns_cbranch_scc0 L_end")
            a(f"s_sub_u32 s64, s{68+2*i}, s68\ns_lshl_b32 s64, s64, 2\ns_min_u32 s64, s64, 100000")
            a.label("L_echo")
            a("s_memrealtime s[66:67]\ns_waitcnt lgkmcnt(0)\ns_sub_u32 s65, s66, s98\ns_cmp_lt_u32 s65, s64\ns_cbranch_scc1 L_echo")
            return
        if not STAMPS: return
        a("s_waitcnt vmcnt(0)")
        a("s_memtime s[98:99]"); a("s_memrealtime s[66:67]")
        a("s_waitcnt lgkmcnt(0)")
        a("s_mov_b64 exec, -1")
        srd(a, S4, pWS, 0x100000, add=ST_OFF)
        a(f"s_lshl_b32 s64, s2, 4\ns_add_u32 s64, s64, s{sWV}\ns_lshl_b32 s64, s64, 7")
        a("v_mov_b32 v1, 0")
        for i in range(16):
            a(f"v_mov_b32 v2, s{68+2*i}")
            a(f"buffer_store_dword v2, v1, {sr(S4,4)}, s64 offen offset:{4*i}")
        a(f"v_mov_b32 v2, s100\nbuffer_store_dword v2, v1, {sr(S4,4)}, s64 offen offset:64")
        a(f"v_mov_b32 v2, s66\nbuffer_store_dword v2, v1, {sr(S4,4)}, s64 offen offset:68")
        a(f"s_getreg_b32 s65, hwreg(HW_REG_XCC_ID)\nv_mov_b32 v2, s65\nbuffer_store_dword v2, v1, {sr(S4,4)}, s64 offen offset:72")

def g16_table():
    v = 0
    for hq in range(4):
        hs = sorted(range(4*hq, 4*hq+4), key=lambda h: 0 if (56*h) % 128 > 64 else 1)
        for h, q in zip(hs, (0, 3, 1, 2)): v |= (4*hq + q) << (4*h)
    return v

def kernel(a):
    K = NAME + "_kernel"
    kernel_begin(a, K)
    st = Stamper(a)
    uid = [0]
    def lab(p):
        uid[0] += 1; return f"{p}_{uid[0]}"
    vL16 = 1
    a("s_cmp_ge_u32 s2, 256")
    a("s_cbranch_scc1 L_end")
    st.start()
    a("s_load_dwordx8 s[4:11], s[0:1], 0")
    a("s_load_dwordx8 s[12:19], s[0:1], 32")
    a("s_load_dwordx4 s[20:23], s[0:1], 64")
    a("v_lshrrev_b32 v1, 6, v0")
    a("v_and_b32 v0, 63, v0")
    a(f"v_readfirstlane_b32 s{sWV}, v1")
    a(f"v_lshlrev_b32 v{vL16}, 4, v0")
    a(f"s_and_b32 s{t0}, s2, 6\ns_lshl_b32 s{t0}, s{t0}, 1\ns_lshr_b32 s{t1}, s2, 6\ns_add_u32 s{sH}, s{t0}, s{t1}")
    a(f"s_and_b32 s{t0}, s2, 1\ns_lshl_b32 s{t0}, s{t0}, 3\ns_bfe_u32 s{t2}, s2, 0x30003\ns_add_u32 s{sTB}, s{t0}, s{t2}")
    a(f"s_lshl_b32 s{t1}, s{t1}, 1\ns_add_u32 s{sCB}, s{t1}, s{t2}")
    a(f"s_cmp_ge_u32 s{sCB}, 7\ns_cselect_b32 s{t1}, 7, 0\ns_sub_u32 s{sCB}, s{sCB}, s{t1}")
    if not ROT: a(f"s_mov_b32 s{sCB}, 0")
    tb = g16_table()
    a(f"s_mov_b32 s{t2}, 0x{tb & 0xffffffff:08x}\ns_mov_b32 s{t3}, 0x{tb >> 32:08x}")
    a(f"s_lshl_b32 s{t0}, s{sH}, 2\ns_lshr_b64 s[{t2}:{t3}], s[{t2}:{t3}], s{t0}\ns_and_b32 s{sG16}, s{t2}, 15")
    a(f"s_lshr_b32 s{sQH}, s{sWV}, 2")
    a(f"s_and_b32 s{sKQ}, s{sWV}, 3")

    vDB, vBA0, vDA, vAA, vIDX, vN, vGA, vGB = 2, 3, 4, 5, 6, 7, 8, 9
    T = 10
    vDW = 254; vZ = 255
    QB = [16, 24]; QA = 32
    FR = {"K0": 40, "K1": 44, "V0": 48, "V1": 52}
    S = [56, 72]
    RED = 88
    O = {"B0": 160, "B1": 176, "A": 208}
    MASK = 224
    vNON = 252
    vAW, vAR, vAL, vALW = 120, 121, 122, 119
    vAV, vPA, vPB, vLO = 15, 110, 111, 109

    def scalar_setup():
        srd(a, SWS, pWS, WS_SIZE)
        a(f"s_lshl_b32 s{t0}, s{sH}, 18")
        srd(a, SKA, pWS, 262144, add=f"s{t0}")
        a(f"s_add_u32 s{sKVB}, s{t0}, {16 << 18}")
        a(f"s_lshl_b32 s{sM0}, s{sWV}, 11")
        a(f"s_lshl_b32 s{t1}, s{sTB}, 2")
        a(f"s_lshl_b32 s{t0}, s{sQH}, 1\ns_add_u32 s{t0}, s{t0}, s{t1}\ns_lshr_b32 s{t2}, s{sKQ}, 1")
        a(f"s_add_u32 s{sTBt}, s{t0}, s{t2}")
        a(f"s_add_u32 s{sTAt}, s{t1}, s{sKQ}")
        a(f"s_lshl_b32 s{t0}, s{sTAt}, 5\ns_add_u32 s{t0}, s{t0}, s{sH}\ns_lshl_b32 s{t0}, s{t0}, 1\ns_add_u32 s{t0}, s{t0}, s{sQH}")
        a(f"s_lshl_b32 s{t0}, s{t0}, 10\ns_add_u32 s{sOA}, s{t0}, {OF_OFF}")
        a(f"s_lshl_b32 s{t0}, s{sTBt}, 5\ns_add_u32 s{t0}, s{t0}, s{sH}\ns_lshl_b32 s{t0}, s{t0}, 1\ns_and_b32 s{t1}, s{sKQ}, 1\ns_add_u32 s{t0}, s{t0}, s{t1}")
        a(f"s_lshl_b32 s{t0}, s{t0}, 10\ns_add_u32 s{sOB}, s{t0}, {OF_OFF + 32768}")
        a(f"s_mov_b32 s{sOFF}, 8192")

    def late_setup():
        srd(a, S1, pWOA, WO_BYTES); srd(a, S2, pWOB, WO_BYTES); srd(a, S3, pOUT, X_BYTES)
        a(f"s_and_b32 s{t0}, s2, 7\ns_lshl_b32 s{t0}, s{t0}, 2\ns_bfe_u32 s{t1}, s2, 0x20003\ns_add_u32 s{t0}, s{t0}, s{t1}\ns_lshr_b32 s{sCB}, s2, 5")
        a(f"s_lshl_b32 s{t0}, s{t0}, 1\ns_add_u32 s{t2}, s{t0}, s{sQH}")
        a(f"s_lshr_b32 s{t0}, s{t2}, 2\ns_lshl_b32 s{t0}, s{t0}, 7\ns_add_u32 s{sFO}, s{t0}, {FL1_OFF}")
        a(f"s_lshl_b32 s{t0}, s{t2}, 16\ns_lshl_b32 s{t1}, s{sKQ}, 13\ns_add_u32 s{t0}, s{t0}, s{t1}\ns_add_u32 s{sOO}, s{t0}, {OF_OFF}")
        a(f"s_mul_i32 s{t0}, s{t2}, {32*896}\ns_lshl_b32 s{t1}, s{sCB}, 7\ns_add_u32 s{t0}, s{t0}, s{t1}\ns_lshl_b32 s{t1}, s{sKQ}, 5\ns_add_u32 s{sOUT}, s{t0}, s{t1}")
        a(f"s_lshl_b32 s{sWM0}, s{sWV}, 10")
        a(f"v_lshrrev_b32 v{T}, 3, v0\ns_lshl_b32 s{t0}, s{sWV}, 3\nv_add_u32 v{T}, s{t0}, v{T}\nv_mul_u32_u24 v{T}, 896, v{T}")
        a(f"v_bfe_u32 v{T+1}, v0, 4, 1\nv_lshlrev_b32 v{T+1}, 2, v{T+1}\nv_and_b32 v{T+2}, 7, v0\nv_xor_b32 v{T+1}, v{T+1}, v{T+2}")
        a(f"v_lshl_add_u32 v{T}, v{T+1}, 4, v{T}\ns_min_u32 s{t0}, s{sCB}, 6\ns_lshl_b32 s{t0}, s{t0}, 7\nv_add_u32 v{vDW}, s{t0}, v{T}")

    def phase2_setup():
        a(f"s_lshr_b32 s{t0}, s{sWV}, 1\ns_lshl_b32 s{t0}, s{t0}, 16\ns_and_b32 s{t1}, s{sWV}, 1\ns_lshl_b32 s{t1}, s{t1}, 11\ns_add_u32 s{t0}, s{t0}, s{t1}\ns_add_u32 s{t0}, s{t0}, s{sKVB}")
        a(f"v_add_u32 v{vDB}, s{t0}, v{vL16}")
        a(f"s_lshl_b32 s{t0}, s{sKQ}, 12\ns_add_u32 s{t0}, s{t0}, {L_S[0]}")
        a(f"v_add_u32 v{vBA0}, s{t0}, v{vL16}")
        a(f"s_lshl_b32 s{t0}, s{sTB}, 14\ns_sub_u32 s{t0}, s{t0}, 32768\ns_add_u32 s{t0}, s{t0}, s{sM0}")
        a(f"v_add_u32 v{vDA}, s{t0}, v{vL16}")
        a(f"s_mul_i32 s{t0}, s{sQH}, 5\ns_add_u32 s{t0}, s{t0}, s{sKQ}\ns_lshl_b32 s{t0}, s{t0}, 12\ns_add_u32 s{t0}, s{t0}, {L_AREG}")
        a(f"v_add_u32 v{vAA}, s{t0}, v{vL16}")
        a(f"s_lshl_b32 s{t0}, s{sQH}, 8\nv_xor_b32 v{vAV}, s{t0}, v{vAA}")
        a(f"v_mov_b32 v{vIDX}, 0xdddddddd")
        a(f"v_and_b32 v{vN}, 31, v0")
        a(f"v_lshrrev_b32 v{T}, 5, v0\nv_lshlrev_b32 v{T}, 3, v{T}\nv_sub_u32 v{T}, v{vN}, v{T}")
        a(f"s_cmp_eq_u32 s{sQH}, 0")
        a(f"s_cselect_b32 s{t0}, 0, 0xff800000")
        a(f"s_cselect_b32 s{t1}, 0xff800000, 0")
        a(f"v_mov_b32 v{T+1}, s{t0}\nv_mov_b32 v{T+2}, s{t1}")
        for r in range(0, 16, 2):
            a(f"v_cmp_le_i32 s[{t2}:{t3}], {16*(r>>3) + (r&7)}, v{T}")
            a(f"v_cmp_le_i32 vcc, {16*(r>>3) + (r&7) + 1}, v{T}")
            a("s_nop 0")
            a(f"v_cndmask_b32 v{MASK+r}, v{T+1}, v{T+2}, s[{t2}:{t3}]")
            a(f"v_cndmask_b32_e64 v{MASK+r+1}, v{T+1}, v{T+2}, vcc")

    def get_nonce(issued):
        L, D = lab("L_non"), lab("L_non_done")
        a(f"s_mov_b32 s{sCNT}, {SPIN_MAX}")
        if issued: a(f"s_branch {L}_chk")
        a.label(L)
        a(f"buffer_load_dwordx2 {vr(vNON,2)}, v{vZ}, {sr(S4,4)}, 0 offen sc1")
        a.label(L + "_chk")
        a("s_waitcnt vmcnt(0)")
        a(f"v_readfirstlane_b32 s{sNON}, v{vNON}\nv_readfirstlane_b32 s{sNON+1}, v{vNON+1}")
        a(f"s_sub_u32 s{sCNT}, s{sCNT}, 1\ns_cbranch_scc1 {D}")
        a(f"s_cmp_eq_u32 s{sNON}, 0\ns_cbranch_scc1 {L}")
        a.label(D)

    def poll(vaddr, soff, need, tmp):
        L, D = lab("L_poll"), lab("L_poll_done")
        a(f"s_mov_b32 s{sCNT}, {SPIN_MAX}")
        a.label(L)
        a(f"buffer_load_dwordx2 {vr(tmp,2)}, v{vaddr}, {sr(SWS,4)}, {soff} offen sc1")
        a("s_waitcnt vmcnt(0)")
        a(f"v_cmp_eq_u64 vcc, s[{sNON}:{sNON+1}], {vr(tmp,2)}")
        if need is not None: a(f"s_orn2_b64 vcc, vcc, s[{need}:{need+1}]")
        a(f"s_cmp_eq_u64 vcc, -1\ns_cbranch_scc1 {D}")
        a(f"s_sleep {OPT.get('sleep', 4)}")
        a(f"s_sub_u32 s{sCNT}, s{sCNT}, 1\ns_cbranch_scc0 {L}")
        a.label(D)

    def flag_store(soff):
        return f"s_mov_b64 exec, 1\nbuffer_store_dwordx2 {vr(vNON,2)}, v{vZ}, {sr(SWS,4)}, {soff} offen sc1\ns_mov_b64 exec, -1"

    a(f"v_mov_b32 v{vZ}, 0")
    a(f"s_cmp_lt_u32 s{sWV}, 4")
    a("s_cbranch_scc1 L_compute")
    XA, WA, WQA, GWR = 16, 20, 24, 26
    sLX, sLW, sOX, sOW = u0, u1, sOA, sOB
    a("v_lshrrev_b32 v2, 3, v0")
    a(f"s_lshl_b32 s{t0}, s{sTB}, 7\ns_lshl_b32 s{t1}, s{sKQ}, 5\ns_add_u32 s{t0}, s{t0}, s{t1}")
    a(f"v_add_u32 v2, s{t0}, v2")
    a("v_mul_u32_u24 v2, 896, v2")
    a("v_lshrrev_b32 v3, 4, v0\nv_and_b32 v4, 7, v0\nv_xor_b32 v3, v3, v4\nv_lshlrev_b32 v3, 4, v3\nv_xor_b32 v4, 64, v3")
    a(f"v_add_u32 v{XA}, v2, v3\nv_add_u32 v{XA+1}, v2, v4\nv_add_u32 v{XA+1}, 7168, v{XA+1}")
    a(f"v_add_u32 v{XA+2}, 14336, v{XA}\nv_add_u32 v{XA+3}, 14336, v{XA+1}")
    a(f"s_and_b32 s{t0}, s{sG16}, 7\ns_mul_i32 s{t0}, s{t0}, 224\ns_add_u32 s{t0}, s{t0}, 896")
    a(f"s_lshl_b32 s{t1}, s{sKQ}, 6")
    for n in range(4):
        a(f"v_add_u32 v2, s{t1}, v0")
        if n: a(f"v_add_u32 v2, {256*n}, v2")
        a("v_mul_u32_u24 v3, 4682, v2\nv_lshrrev_b32 v3, 16, v3")
        a("v_mul_u32_u24 v4, 14, v3\nv_sub_u32 v4, v2, v4")
        a("v_and_b32 v5, 1, v3\nv_lshlrev_b32 v5, 2, v5\nv_bfe_u32 v6, v3, 1, 2\nv_and_b32 v3, 0x78, v3\nv_or3_b32 v3, v3, v5, v6")
        a("v_mul_u32_u24 v3, 2688, v3\nv_lshl_add_u32 v3, v4, 4, v3")
        a(f"v_add_u32 v{WA+n}, s{t0}, v3")
    a(f"s_lshl_b32 s{sOX}, s{sCB}, 7\ns_mul_i32 s{sOW}, s{sCB}, {64*2688}")
    a("s_waitcnt lgkmcnt(0)")
    a(f"s_lshl_b32 s{sLX}, s{sKQ}, 12")
    a(f"s_lshl_b32 s{sLW}, s{sKQ}, 10")
    srd(a, S1, pX, X_BYTES)
    a(f"s_cmp_lt_u32 s{sG16}, 8")
    a(f"s_cselect_b32 s{S2}, s{pWA}, s{pWB}\ns_cselect_b32 s{S2+1}, s{pWA+1}, s{pWB+1}")
    a(f"s_mov_b32 s{S2+2}, {W_BYTES}\ns_mov_b32 s{S2+3}, 0x00020000")
    a(f"s_cmp_ge_u32 s{sKQ}, 2")
    a("s_cbranch_scc1 L_load3")
    def loader(nw):
        vm = Ctr(a, "vmcnt", 63)
        sOQ, sLQ = sFA, sTBt
        nq = [0]
        def issue(c):
            slot = (c % 3) * R_SLOT
            for n in range(4):
                a(f"s_add_u32 m0, s{sLX}, {slot + n*1024}\ns_nop 0")
                a(f"buffer_load_dwordx4 v{XA+n}, {sr(S1,4)}, s{sOX} offen lds"); vm.issue(c)
                if n < nw:
                    a(f"s_add_u32 m0, s{sLW}, {slot + 16384 + n*4096}\ns_nop 0")
                    a(f"buffer_load_dwordx4 v{WA+n}, {sr(S2,4)}, s{sOW} offen lds"); vm.issue(c)
            a(f"s_add_u32 s{sOX}, s{sOX}, 128\ns_add_u32 s{sOW}, s{sOW}, {64*2688}\ns_cmp_eq_u32 s{sOX}, 896")
            a(f"s_cselect_b32 s{sOX}, 0, s{sOX}\ns_cselect_b32 s{sOW}, 0, s{sOW}")
        def wq(k, SR=S3, sOQ=sOQ, sLQ=sLQ):
            for _ in range(k):
                a(f"s_add_u32 m0, s{sLQ}, {(nq[0] % 7)*1024}\ns_nop 0")
                a(f"buffer_load_dwordx4 v{WQA}, {sr(SR,4)}, s{sOQ} offen lds"); vm.issue("q")
                a(f"s_add_u32 s{sOQ}, s{sOQ}, 43008\ns_cmp_eq_u32 s{sOQ}, {28*43008}\ns_cselect_b32 s{sOQ}, 0, s{sOQ}")
                nq[0] += 1
        st(1)
        for c in range(UP): issue(c)
        srd(a, S3, pWB, W_BYTES)
        a("v_lshrrev_b32 v2, 2, v0\nv_mul_u32_u24 v2, 2688, v2\nv_and_b32 v3, 3, v0\nv_lshl_add_u32 v2, v3, 4, v2")
        a(f"s_mul_i32 s{t0}, s{sH}, 56\nv_add_u32 v{WQA}, s{t0}, v2")
        a(f"s_mul_i32 s{sLQ}, s{sKQ}, 7168\ns_add_u32 s{sLQ}, s{sLQ}, {L_WQ + 28672}")
        a(f"s_mul_i32 s{t0}, s{sKQ}, 7\ns_lshl_b32 s{t1}, s{sCB}, 2\ns_add_u32 s{t0}, s{t0}, s{t1}")
        a(f"s_cmp_ge_u32 s{t0}, 28\ns_cselect_b32 s{t1}, 28, 0\ns_sub_u32 s{t0}, s{t0}, s{t1}\ns_mul_i32 s{sOQ}, s{t0}, 43008")
        a(f"s_mov_b32 s{sC0}, s{sOQ}")
        wq(WQAT[0])
        if nw == 4:
            srd(a, S4, pDBG, 256)
            L = lab("L_notag")
            a(f"s_or_b32 s{t0}, s2, s{sKQ}\ns_cmp_lg_u32 s{t0}, 0\ns_cbranch_scc1 {L}")
            a(f"s_memrealtime s[{sNON}:{sNON+1}]\ns_waitcnt lgkmcnt(0)")
            a(f"s_or_b32 s{sNON}, s{sNON}, 1\ns_xor_b32 s{sNON+1}, s{sNON+1}, 0x5bd1e995")
            a(f"v_mov_b32 v{vNON}, s{sNON}\nv_mov_b32 v{vNON+1}, s{sNON+1}")
            a("s_mov_b64 exec, 1")
            a(f"buffer_store_dwordx2 {vr(vNON,2)}, v{vZ}, {sr(S4,4)}, 0 offen sc1")
            a("s_mov_b64 exec, -1")
            a("s_waitcnt vmcnt(0)")
            a.label(L)
        else:
            a(f"v_mov_b32 v2, {L_CNT}\nds_write_b32 v2, v{vZ}\ns_waitcnt lgkmcnt(0)")
        srd(a, S4, pGW, 896)
        a(f"s_mul_i32 s{t0}, s{sKQ}, 112\ns_lshl_b32 s{t1}, s{sCB}, 6\ns_add_u32 s{t1}, s{t1}, s{t0}")
        a(f"v_min_u32 v2, 55, v0\nv_add_u32 v3, s{t1}, v2")
        a(f"v_add_u32 v2, s{t0}, v2\nv_lshlrev_b32 v2, 6, v2\nv_add_u32 v{GWR+4}, {L_WQ + 28672 + 56}, v2")
        for i in range(2):
            a(f"v_add_u32 v4, {56*i}, v3\nv_subrev_u32 v5, 448, v4\nv_min_u32 v4, v4, v5\nv_lshlrev_b32 v4, 1, v4")
            a(f"buffer_load_ushort v{GWR+i}, v4, {sr(S4,4)}, 0 offen"); vm.issue("gw")
        srd(a, S4, pDBG, 256)
        srd(a, SWS, pWS, WS_SIZE)
        a(f"s_lshl_b32 s{t0}, s{sTB}, 2\ns_add_u32 s{t0}, s{t0}, s{sKQ}\ns_lshl_b32 s{t0}, s{t0}, 5\ns_add_u32 s{t0}, s{t0}, s{sH}")
        a(f"s_lshl_b32 s{t0}, s{t0}, 11\ns_add_u32 s{t0}, s{t0}, {OF_OFF}\ns_add_u32 s{t1}, s{t0}, 32768")
        for r in range(4): a(f"v_mov_b32 v{32+r}, -1")
        def poison():
            for so in (t0, t1):
                for j in range(2):
                    a(f"buffer_store_dwordx4 v[32:35], v{vL16}, {sr(SWS,4)}, s{so} offen offset:{j*1024} sc1"); vm.issue("po")
        if POAT < 0: poison()
        for c in range(7):
            vm.wait(c)
            if c in (0, 3, 6): st(2 + c // 3)
            a("s_barrier")
            nx = c + 2 if UP == 2 else (c + 2 if c >= 1 else None)
            if nx is not None and nx <= 6: issue(nx)
            wq(WQAT[c + 1])
            if c == POAT: poison()
            if c == 5: a(f"buffer_load_dwordx2 {vr(vNON,2)}, v{vZ}, {sr(S4,4)}, 0 offen sc1"); vm.issue("n")
        assert nq[0] == 7
        get_nonce(True)
        for i in range(2): a(f"ds_write_b16 v{GWR+4}, v{GWR+i} offset:{56*64*i}")
        a("s_waitcnt lgkmcnt(0)")
        st(5)
        a("s_barrier")
        srd(a, S4, pWA, W_BYTES)
        scalar_setup()
        phase2_setup()
        late_setup()
        a(f"v_and_b32 v{T+2}, 15, v0")
        a(f"s_lshr_b32 s{t0}, s{sH}, 2\ns_lshl_b32 s{t0}, s{t0}, 11\ns_add_u32 s{t0}, s{t0}, {FL1_OFF}")
        if nw == 4:
            a(f"v_lshlrev_b32 v{T}, 7, v{T+2}")
            a(f"s_lshl_b32 s{u1}, s{sKQ}, 11\ns_lshl_b32 s{t1}, s{sKQ}, 13\ns_add_u32 s{t0}, s{t0}, s{t1}\ns_add_u32 s{t0}, s{t0}, {8*2048}")
            a(f"s_add_u32 s{t1}, s{u1}, s{sKVB}\nv_add_u32 v{T+1}, s{t1}, v{vL16}")
        else:
            L = lab("L_w7")
            a(f"v_lshlrev_b32 v{T}, 11, v{T+2}")
            a(f"s_cmp_eq_u32 s{sKQ}, 3\ns_cselect_b32 s{t0}, s{sFO}, s{t0}\ns_cbranch_scc1 {L}")
            a(f"s_sub_i32 s{u0}, s{sTB}, 2\ns_max_i32 s{u0}, s{u0}, 0")
            a(f"v_max_u32 v{T+2}, s{u0}, v{T+2}\nv_min_u32 v{T+2}, s{sTB}, v{T+2}\nv_lshlrev_b32 v{T}, 7, v{T+2}")
            a(f"v_bfe_u32 v{T+2}, v0, 4, 1\nv_lshl_add_u32 v{T}, v{T+2}, 13, v{T}")
            a.label(L)
        a(f"s_mul_i32 s{t2}, s{sKQ}, 7168\ns_add_u32 s{t2}, s{t2}, {L_WQ}")
        a("s_barrier")
        wq(7, S4, sC0, t2)
        a("s_waitcnt vmcnt(0)")
        st(7)
        a("s_barrier")
        poll(T, f"s{t0}", None, RED)
        st(6)
        if nw == 4:
            for s in range(3):
                a(f"s_mov_b32 s{u0}, {s*4096}")
                for kq in range(4):
                    a(f"s_add_u32 m0, s{u1}, {L_S[s] + kq*4096}\ns_nop 0")
                    a(f"buffer_load_dwordx4 v{T+1}, {sr(SWS,4)}, s{u0} offen sc1 lds")
                    a(f"buffer_load_dwordx4 v{T+1}, {sr(SWS,4)}, s{u0} offen offset:1024 sc1 lds")
                    a(f"s_add_u32 s{u0}, s{u0}, 65536")
            a("s_waitcnt vmcnt(16)")
        a("s_branch L_phase2")
    loader(4)
    a.label("L_load3")
    loader(3)

    a.label("L_compute")
    vST, vVC, XAD, WAD, WQD, GWD = 240, 241, 242, 246, 14, 15
    XR = 16; ACC = [128 + 16*u for u in range(4)]
    WF = [[192 + 16*b + 4*u for u in range(4)] for b in range(2)]
    PK = 192; DAC = 248
    a("v_and_b32 v9, 31, v0\nv_lshrrev_b32 v10, 5, v0\nv_bfe_u32 v11, v0, 1, 3")
    a(f"s_lshl_b32 s{t0}, s{sKQ}, 12")
    a(f"v_lshlrev_b32 v12, 7, v9\nv_add_u32 v12, s{t0}, v12")
    for ks in range(4):
        a(f"v_or_b32 v13, {2*ks}, v10\nv_xor_b32 v13, v13, v11\nv_lshl_add_u32 v{XAD+ks}, v13, 4, v12")
    a("v_bfe_u32 v12, v0, 4, 1\nv_lshlrev_b32 v12, 5, v12\nv_and_b32 v13, 3, v0\nv_lshl_add_u32 v12, v13, 3, v12")
    a("v_bfe_u32 v13, v0, 2, 2")
    a("v_lshl_add_u32 v11, v10, 2, v13")
    a(f"v_mul_u32_u24 v11, 448, v11\nv_add_u32 v{WAD}, v11, v12")
    a("v_lshl_add_u32 v11, v10, 3, v13")
    a(f"v_lshl_add_u32 v11, v11, 6, v12\nv_add_u32 v{WQD}, {L_WQ}, v11")
    a(f"v_mov_b32 v{vVC}, 0")
    a("s_mov_b32 exec_lo, 0x10000000\ns_mov_b32 exec_hi, 0x10000000")
    a(f"v_mov_b32 v{vVC}, 0x3f803f80")
    a("s_mov_b64 exec, -1")
    a("v_and_b32 v11, 0x33, v0\nv_bfe_u32 v12, v0, 2, 1\nv_lshl_or_b32 v11, v12, 3, v11\nv_bfe_u32 v12, v0, 3, 1\nv_lshl_or_b32 v11, v12, 2, v11")
    a(f"v_lshlrev_b32 v{vST}, 4, v11")
    a("v_mul_u32_u24 v11, 21846, v0\nv_lshrrev_b32 v11, 16, v11\nv_mul_u32_u24 v12, 3, v11\nv_sub_u32 v12, v0, v12\nv_min_u32 v11, 13, v11")
    a(f"s_lshr_b32 s{t0}, s2, 3\ns_mul_i32 s{t0}, s{t0}, 14\nv_add_u32 v11, s{t0}, v11\nv_mul_u32_u24 v11, 2688, v11\nv_lshl_add_u32 v11, v12, 7, v11")
    a(f"s_lshr_b32 s{t0}, s{sH}, 2\ns_mul_i32 s{t0}, s{t0}, 224\ns_and_b32 s{t0}, s{t0}, 0xffffff80\nv_add_u32 v{DAC}, s{t0}, v11")
    a("s_waitcnt lgkmcnt(0)")
    a(f"s_mov_b64 s[{pGW}:{pGW+1}], s[{pWA}:{pWA+1}]")
    scalar_setup()
    phase2_setup()
    late_setup()
    srd(a, S4, pDBG, 256)
    a(f"s_lshr_b32 s{t0}, s{sG16}, 3\ns_lshl_b32 s{t0}, s{t0}, 2\ns_and_b32 s{t1}, s{sG16}, 3\ns_add_u32 s{t0}, s{t0}, s{t1}")
    a(f"s_lshl_b32 s{t0}, s{t0}, 8\ns_add_u32 s{t0}, s{t0}, s{sTAt}\ns_lshl_b32 s{u0}, s{t0}, 12")
    a(f"s_lshl_b32 s{u1}, s{sG16}, 4\ns_add_u32 s{u1}, s{u1}, s{sTB}\ns_lshl_b32 s{u1}, s{u1}, 7\ns_add_u32 s{u1}, s{u1}, {FL1_OFF}")
    a(f"s_bitcmp1_b32 s{sG16}, 2")
    a("s_cbranch_scc1 L_1a_V")
    def reads1a(g):
        b, ks = g & 1, g & 3
        r = [f"ds_read_b128 {vr(XR+4*g,4)}, v{XAD+ks}"]
        for u in range(4):
            for e in range(2):
                r.append(f"ds_read_b64_tr_b16 {vr(WF[b][u]+2*e,2)}, v{WAD} offset:{16384 + ks*3584 + e*224 + u*56}")
        return r
    for ty in "KV":
        a.label("L_1a_" + ty)
        if ty == "V": a(f"s_add_u32 s{u0}, s{u0}, 2048")
        st(1)
        a("s_barrier")
        st(2)
        lg = Ctr(a, "lgkmcnt", 15)
        def rd1a(g, lo, hi):
            for k, x in list(enumerate(reads1a(g)))[lo:hi]:
                a(x); lg.issue((g, 0 if k == 0 else (k - 1) // 2))
        rd1a(0, 0, 9)
        for g in range(28):
            b = g & 1
            edge = g + 1 < 28 and (g + 1) & 3 == 0
            cut = [0, 0, 0, 5, 9] if edge else [0, 4, 8, 9, 9]
            for u in range(4):
                if edge and u == 2:
                    c = (g + 1) >> 2
                    lg.wait_all()
                    if c == 6:
                        get_nonce(True)
                        if QPF >= 0:
                            L = lab("L_nopf")
                            srd(a, S4, pGW, W_BYTES)
                            a(f"s_cmp_lg_u32 s{sKQ}, 0\ns_cbranch_scc1 {L}")
                            a(f"buffer_load_dword v{DAC+1}, v{DAC}, {sr(S4,4)}, 0 offen")
                            a.label(L)
                    a("s_barrier")
                    if c in (3, 6): st(2 + c // 3)
                    d = R_SLOT if c % 3 else -2 * R_SLOT
                    for r in (0, 4): a(f"v_add_u32 v{XAD+r}, {d & 0xffffffff}, v{XAD+r}")
                lg.wait([(g, u)])
                D = vr(ACC[u], 16); C = "0" if g == 0 else D
                X, W = vr(XR + 4*g, 4), vr(WF[b][u], 4)
                a(f"v_mfma_f32_32x32x16_bf16 {D}, {X}, {W}, {C}" if ty == "V" else f"v_mfma_f32_32x32x16_bf16 {D}, {W}, {X}, {C}")
                if g + 1 < 28: rd1a(g + 1, cut[u], cut[u+1])
                if edge and u == 3:
                    for r in (1, 2, 3): a(f"v_add_u32 v{XAD+r}, {d & 0xffffffff}, v{XAD+r}")
                    if c == 4: a(f"buffer_load_dwordx2 {vr(vNON,2)}, v{vZ}, {sr(S4,4)}, 0 offen sc1")
        st(5)
        a("s_nop 8")
        for u in range(4):
            D = ACC[u]; P = PK + 8 * (u & 1)
            for r in range(8): a(f"v_cvt_pk_bf16_f32 v{P+r}, v{D+2*r}, v{D+2*r+1}")
            if ty == "V":
                a("s_mov_b32 exec_lo, 0xf0000000\ns_mov_b32 exec_hi, 0xf0000000")
                for r in range(8): a(f"v_mov_b32 v{P+r}, v{vVC}")
            else:
                a(f"s_mov_b32 exec_lo, 0\nv_mov_b32 v{P+6}, 0\nv_mov_b32 v{P+7}, 0")
            a("s_mov_b64 exec, -1")
            va = vST if ty == "K" else vL16
            a(f"buffer_store_dwordx4 {vr(P,4)}, v{va}, {sr(SWS,4)}, s{u0} offen sc1")
            a(f"buffer_store_dwordx4 {vr(P+4,4)}, v{va}, {sr(SWS,4)}, s{u0} offen offset:1024 sc1")
            if u < 3: a(f"s_add_u32 s{u0}, s{u0}, 262144")
        if ty == "K": a("s_branch L_1a_join")
    a.label("L_1a_join")
    lg = Ctr(a, "lgkmcnt", 15)
    def sendflag():
        a(f"v_mov_b32 v{T}, {L_CNT}\nv_mov_b32 v{T+1}, 1")
        a("s_waitcnt vmcnt(0)")
        a(f"s_mov_b64 exec, 1\nds_add_rtn_u32 v{T+1}, v{T}, v{T+1}\ns_waitcnt lgkmcnt(0)")
        lg.q = []
        a(f"v_cmp_eq_u32 vcc, 3, v{T+1}\ns_cbranch_vccz L_noflag")
        a(f"buffer_store_dwordx2 {vr(vNON,2)}, v{vZ}, {sr(SWS,4)}, s{u1} offen sc1")
        a.label("L_noflag")
        a("s_mov_b64 exec, -1")
        st(7)
    a("s_barrier")
    st(6)
    NB = 8; LOOK = 6
    QBUF = [160 + 4*i for i in range(NB)]
    def qpass(m):
        def rd(g):
            for e in range(2):
                a(f"ds_read_b64_tr_b16 {vr(QBUF[g % NB]+2*e,2)}, v{WQD} offset:{m*28672 + g*1024 + e*256}"); lg.issue(g)
        for g in range(LOOK): rd(g)
        D = vr(ACC[m], 16)
        for g in range(28):
            lg.wait(g)
            a(f"v_mfma_f32_32x32x16_bf16 {D}, {vr(QBUF[g % NB],4)}, {vr(XR+4*g,4)}, {'0' if g == 0 else D}")
            if g + LOOK < 28: rd(g + LOOK)
    def qout(m):
        D = ACC[m]; P = 208
        for r in range(0, 16, 2): a(f"v_pk_mul_f32 {vr(D+r,2)}, {vr(D+r,2)}, {vr(T+2,2)} op_sel_hi:[1,0]")
        for r in range(8): a(f"v_cvt_pk_bf16_f32 v{P+r}, v{D+2*r}, v{D+2*r+1}")
        a(f"s_mov_b32 exec_lo, 0\nv_mov_b32 v{P+6}, 0\nv_mov_b32 v{P+7}, 0\ns_mov_b64 exec, -1")
        a(f"ds_write_b128 v{DAC+3}, {vr(P,4)} offset:{m*8192}")
        a(f"ds_write_b128 v{DAC+3}, {vr(P+4,4)} offset:{m*8192+1024}")
    qpass(1)
    if "fine" in OPT: st(1)
    sendflag()
    a("s_barrier")
    a(f"s_lshl_b32 s{t0}, s{sKQ}, 8\ns_add_u32 s{t0}, s{t0}, {L_G}")
    a(f"v_lshl_add_u32 v{DAC+2}, v{vN}, 3, s{t0}")
    a(f"s_lshl_b32 s{t0}, s{sKQ}, 11\ns_add_u32 s{t0}, s{t0}, {L_QX}")
    a(f"v_add_u32 v{DAC+3}, s{t0}, v{vL16}")
    a(f"v_mov_b32 v{T+2}, 0x{QSCALE:08x}")
    a(f"v_mov_b32 v{DAC}, v{ACC[1]+12}")
    qout(1)
    for x in [f"v_cvt_pk_bf16_f32 v{DAC}, v{DAC}, v{DAC}", f"v_lshlrev_b32 v{DAC}, 16, v{DAC}",
              f"v_mul_f32 v{DAC}, 0x{LOG2E ^ 0x80000000:08x}, v{DAC}", f"v_exp_f32 v{DAC}, v{DAC}", "s_nop 0",
              f"v_add_f32 v{DAC}, 1.0, v{DAC}", f"v_rcp_f32 v{DAC}, v{DAC}", "s_nop 0",
              f"v_cvt_pk_bf16_f32 v{DAC}, v{DAC}, v{DAC}", f"v_lshlrev_b32 v{DAC}, 16, v{DAC}",
              f"v_sub_f32 v{DAC+1}, 1.0, v{DAC}", f"v_cvt_pk_bf16_f32 v{DAC+1}, v{DAC+1}, v{DAC+1}", f"v_lshlrev_b32 v{DAC+1}, 16, v{DAC+1}",
              "s_mov_b32 exec_lo, 0", f"ds_write_b64 v{DAC+2}, {vr(DAC,2)}", "s_mov_b64 exec, -1"]: a(x)
    a("s_waitcnt lgkmcnt(0)")
    a("s_barrier")
    if "fine" in OPT: st(4)
    qpass(0)
    a("s_nop 11")
    qout(0)
    a("s_waitcnt lgkmcnt(0)")

    a.label("L_phase2")
    a(f"s_lshl_b32 s{t0}, s{sKQ}, 11\ns_add_u32 s{t0}, s{t0}, {L_QX}")
    a(f"v_add_u32 v{T}, s{t0}, v{vL16}")
    a(f"s_lshl_b32 s{t0}, s{sQH}, 12\ns_add_u32 s{t0}, s{t0}, {L_QX + 8192}")
    a(f"v_add_u32 v{T+1}, s{t0}, v{vL16}")
    st(8)
    a("s_barrier")
    lg = Ctr(a, "lgkmcnt", 15)
    vm = Ctr(a, "vmcnt", 63)
    for k in ["B1"] * 8 + ["B2"] * 8: vm.issue(k)
    def btile(s, q): return dict(key=("B", s), Q=QB[q], O=O[f"B{q}"], mask=False, addr=vBA0, off=L_S[s % 4], s=S[q])
    def atile(i, m, sb): return dict(key=("A", i), Q=QA, O=O["A"], mask=m, addr=vAA, off=i * 4096, s=sb)
    Btiles = [btile(s, q) for s in range(16) for q in range(2)]
    Atiles = [[atile(i, i == 0, sb) for i, sb in enumerate([S[0], S[1], S[0], RED, S[1]])],
              [atile(i, i == 3, sb) for i, sb in enumerate([S[0], S[1], S[0], S[1]])]]
    seqs = [Btiles[:2*APOS] + Atiles[h] + Btiles[2*APOS:] for h in range(2)]
    FOFF = {"K0": 0, "K1": 1024, "V0": 2048, "V1": 3072}
    def load(lg, f, t):
        ad = vAV if (t["key"][0] == "A" and f[0] == "V") else t["addr"]
        a(f"ds_read_b128 {vr(FR[f],4)}, v{ad} offset:{t['off'] + FOFF[f]}"); lg.issue(f)
    def reload_after(lg, f, tiles, i):
        if i + 1 < len(tiles) and tiles[i+1]["key"] != tiles[i]["key"]: load(lg, f, tiles[i+1])
    for j in range(2):
        a(f"ds_read_b128 {vr(QB[0]+4*j,4)}, v{T+1} offset:{j*1024}"); lg.issue(f"K{j}")
        load(lg, f"K{j}", Btiles[0])
    for j in range(2):
        a(f"ds_read_b128 {vr(QB[1]+4*j,4)}, v{T+1} offset:{2048+j*1024}"); lg.issue("Q1")
    for f in ("V0", "V1"): load(lg, f, Btiles[0])
    for j in range(2):
        a(f"ds_read_b128 {vr(QA+4*j,4)}, v{T} offset:{j*1024}"); lg.issue("QA")
    a(f"s_lshl_b32 s{t0}, s{sKQ}, 8\ns_add_u32 s{t0}, s{t0}, {L_G}")
    a(f"v_lshl_add_u32 v{T+2}, v{vN}, 3, s{t0}")
    a(f"ds_read_b32 v{vGA}, v{T+2}"); lg.issue("QA")
    a(f"s_and_b32 s{t0}, s{sTBt}, 3\ns_lshl_b32 s{t0}, s{t0}, 8\ns_add_u32 s{t0}, s{t0}, {L_G + 4}")
    a(f"v_lshl_add_u32 v{T+2}, v{vN}, 3, s{t0}")
    a(f"ds_read_b32 v{vGB}, v{T+2}"); lg.issue("QA")
    ZR, PO = RED, RED + 24
    for r in range(4): a(f"v_mov_b32 v{ZR+r}, 0")
    a("s_nop 1")
    for k in ("B0", "B1", "A"): a(f"v_mfma_f32_32x32x16_bf16 {vr(O[k],16)}, {vr(ZR,4)}, {vr(ZR,4)}, 0")

    def dmaB(s):
        return [f"s_add_u32 m0, s{sM0}, {L_S[s % 4]}\ns_add_u32 s{sOFF}, s{sOFF}, 4096",
                f"buffer_load_dwordx4 v{vDB}, {sr(SWS,4)}, s{sOFF} offen sc1 lds",
                f"buffer_load_dwordx4 v{vDB}, {sr(SWS,4)}, s{sOFF} offen offset:1024 sc1 lds"]
    def dmaA(i):
        return [f"s_add_u32 m0, s{sM0}, {L_AREG + i*16384}" + (f"\nv_add_u32 v{vDA}, 16384, v{vDA}" if i else "\ns_nop 0"),
                f"buffer_load_dwordx4 v{vDA}, {sr(SKA,4)}, 0 offen sc1 lds",
                f"buffer_load_dwordx4 v{vDA}, {sr(SKA,4)}, 0 offen offset:1024 sc1 lds"]
    def qk(lg, tiles, i, j):
        t = tiles[i]; D = vr(t["s"], 16)
        lg.wait([f"K{j}"] + (["Q1"] if i == 1 else []))
        C = D if j == 1 else (vr(MASK, 16) if t["mask"] else "0")
        a(f"v_mfma_f32_32x32x16_bf16 {D}, {vr(FR[f'K{j}'],4)}, {vr(t['Q']+4*j,4)}, {C}")
        reload_after(lg, f"K{j}", tiles, i)
    def pv(lg, tiles, i, j, merge=()):
        t = tiles[i]
        lg.wait([f"V{j}"] + list(merge))
        a(f"v_smfmac_f32_32x32x32_bf16 {vr(t['O'],16)}, {vr(FR[f'V{j}'],4)}, {vr(t['s']+8*j,8)}, v{vIDX}")
        reload_after(lg, f"V{j}", tiles, i)
    def slot(lg, tiles, i, extra=(), late=()):
        s0 = tiles[i]["s"]
        at = {r: [] for r in range(16)}
        xp = (1, 3, 4, 6, 7, 9, 10, 11, 13, 14, 15)
        for k, x in enumerate(extra): at[xp[(2 * k + 1) * len(xp) // (2 * len(extra))]].append(x)
        for k, x in enumerate(late): at[13 + k * 3 // len(late)].append(x)
        isB1 = tiles[i]["key"][0] == "B" and tiles[i]["Q"] == QB[1]
        for r in range(16):
            if r == 2 and i > 0: pv(lg, tiles, i - 1, 1, merge=("K0", "K1") if isB1 else ())
            if r == 5 and i + 1 < len(tiles): qk(lg, tiles, i + 1, 0)
            if r == 8 and i + 1 < len(tiles): qk(lg, tiles, i + 1, 1)
            if r == 12: pv(lg, tiles, i, 0)
            for x in at[r]: x() if callable(x) else a(x)
            a(f"v_exp_f32 v{s0+r}, v{s0+r}")
    tiles = seqs[1]
    qk(lg, tiles, 0, 0); qk(lg, tiles, 0, 1)
    for x in [f"s_add_u32 s{t0}, s{sM0}, {L_SCRA}", f"v_add_u32 v{vAW}, s{t0}, v{vL16}", f"v_xor_b32 v{vAR}, 8192, v{vAW}",
              f"s_lshl_b32 s{t0}, s{sKQ}, 9", f"s_add_u32 s{t0}, s{t0}, {L_SCRA + 16384 + 128}", f"v_lshl_add_u32 v{vAL}, v{vN}, 2, s{t0}",
              f"s_lshl_b32 s{t1}, s{sQH}, 8", f"s_add_u32 s{t0}, s{t0}, s{t1}", f"s_sub_u32 s{t0}, s{t0}, 128", f"v_lshl_add_u32 v{vALW}, v0, 2, s{t0}",
              f"v_lshrrev_b32 v{T}, 5, v0", f"v_and_b32 v{vPA}, s{sQH}, v{T}", f"v_and_b32 v{vPB}, s{sKQ}, v{T}",
              f"v_add_u32 v{vPA}, -1, v{vPA}", f"v_add_u32 v{vPB}, -1, v{vPB}", f"v_mov_b32 v{vLO}, 0x{f32bits(2.0**-40):08x}",
              f"s_mov_b32 s{sHI}, 0x{f32bits(2.0**60):08x}", f"s_cmp_lg_u32 s{sQH}, 0", f"s_cselect_b64 s[{sQM}:{sQM+1}], -1, 0"]: a(x)
    RA, LA = RED, RED + 8
    def finalize(tag, R, L, G, vP, sDst):
        o = []
        o.append(f"v_pk_fma_f32 {vr(T,2)}, {vr(R,2)}, 0, {vr(L,2)} op_sel_hi:[1,0,0]")
        o += [f"v_pk_fma_f32 {vr(T,2)}, {vr(R+r,2)}, 0, {vr(T,2)} op_sel_hi:[1,0,1]" for r in (2, 4, 6)]
        o.append(f"v_med3_f32 v{T+2}, v{T}, v{vLO}, s{sHI}")
        o.append(f"v_fma_f32 v{T}, v{T+1}, 0, v{T}")
        o.append(f"v_cmp_neq_f32 vcc, v{T}, v{T+2}")
        def br():
            a(f"s_cbranch_vccnz L_slow{tag}"); a.label(f"L_fin{tag}")
        o.append(br)
        o.append(f"v_rcp_f32 v{L}, v{L}\ns_nop 0")
        o.append(f"v_mul_f32 v{L}, v{L}, v{G}")
        o += [f"v_pk_mul_f32 {vr(R+r,2)}, {vr(R+r,2)}, {vr(L,2)} op_sel_hi:[1,0]" for r in (0, 2, 4, 6)]
        o += [f"v_cvt_pk_bf16_f32 v{R+r}, v{R+2*r}, v{R+2*r+1}" for r in range(4)]
        o += [f"v_and_b32 v{R+2}, v{vP}, v{R+2}", f"v_and_b32 v{R+3}, v{vP}, v{R+3}"]
        o.append(f"buffer_store_dwordx4 {vr(R,4)}, v{vL16}, {sr(SWS,4)}, s{sDst} offen sc1")
        return o
    def pkadd(D, A_, B_, n=8): return [f"v_pk_add_f32 {vr(D+r,2)}, {vr(A_+r,2)}, {vr(B_+r,2)}" for r in range(0, n, 2)]
    def dmaW(n, base, SR):
        return f"s_add_u32 m0, s{sWM0}, {base + n*8192}\ns_mov_b32 s{t1}, {n*64*896}\nbuffer_load_dwordx4 v{vDW}, {sr(SR,4)}, s{t1} offen lds"
    def V(x, tag):
        def f():
            a(x); vm.issue(tag)
        return f
    def Lg(x, tag):
        def f():
            a(x); lg.issue(tag)
        return f
    def trio(d, tag): return [d[0], V(d[1], tag), V(d[2], tag)]
    vBW, vBR, vBL, vBX, vFL = 123, 124, 125, 126, 127
    OFA = 208
    sOA2 = u1
    idx = 0
    P = APOS
    sched = {(s, q): [] for s in range(16) for q in range(2)}
    late = {(s, q): [] for s in range(16) for q in range(2)}
    for s in range(13): sched[s, 0] += trio(dmaB(s + 3), f"B{s+3}")
    for i in range(3): sched[i, 1] += trio(dmaA(i), "A")
    OA = O["A"]
    late[P, 0] += [Lg(f"ds_write_b128 v{vAW}, {vr(OA+8,4)}", "wa")]
    sched[P, 1] += [f"v_cndmask_b32 v{T}, v{OA+12}, v{OA+4}, s[{sQM}:{sQM+1}]", Lg(f"ds_write_b128 v{vAW}, {vr(OA+12,4)} offset:1024", "wa"),
                    Lg(f"ds_write_b32 v{vALW}, v{T}", "wa")]
    sched[P+1, 0] += [Lg(f"ds_read_b128 {vr(RA+4*k,4)}, v{vAR} offset:{k*1024}", "ra") for k in range(2)] + [Lg(f"ds_read2st64_b32 {vr(LA,2)}, v{vAL} offset1:1", "ra")]
    f = finalize("A", RA, LA, vGA, vPA, sOA)
    f[8] = f"v_rcp_f32 v{LA}, v{LA}"
    if PK2:
        sched[P+1, 1] += [lambda: lg.wait("ra")] + pkadd(RA, RA, OA) + [f"v_add_f32 v{LA}, v{LA}, v{LA+1}"] + f[:9]
        sched[P+2, 0] += f[9:-1] + [V(f[-1], "oa")]
    else:
        chkf = [f"v_fma_f32 v{T}, v{RA}, 0, v{LA}", f"v_fma_f32 v{T+1}, v{RA+1}, 0, v{LA}"] + [f"v_fma_f32 v{T+(r&1)}, v{RA+r}, 0, v{T+(r&1)}" for r in range(2, 8)]
        sched[P+1, 1] += [lambda: lg.wait("ra")] + [f"v_add_f32 v{RA+r}, v{RA+r}, v{OA+r}" for r in range(8)] + [f"v_add_f32 v{LA}, v{LA}, v{LA+1}"] + chkf + f[4:9]
        sched[P+2, 0] += [f[9]] + [f"v_mul_f32 v{RA+r}, v{RA+r}, v{LA}" for r in range(8)] + f[14:-1] + [V(f[-1], "oa")]
    pfw = [f"s_lshr_b32 s{t0}, s2, 3\ns_lshl_b32 s{t0}, s{t0}, 2\ns_add_u32 s{t0}, s{t0}, s{sKQ}\ns_mul_i32 s{t0}, s{t0}, {49*64}",
           f"v_min_u32 v{T}, 24, v0", f"v_lshlrev_b32 v{T}, 7, v{T}"]
    late[P-1, 0] += pfw
    wo = [V(dmaW(k, L_WOA, S1), "woa") for k in range(7)] + [V(dmaW(k, L_WOB, S2), "wob") for k in range(3, 7)]
    for (s_, q_), n in [((7, 1), 1), ((8, 1), 2), ((9, 1), 2), ((10, 1), 2), ((11, 1), 2), ((12, 1), 2)]:
        sched[s_, q_] += wo[:n]; wo = wo[n:]
    assert not wo
    ol = [V(f"buffer_load_dwordx4 {vr(OFA+4*kk,4)}, v{vL16}, {sr(SWS,4)}, s{sOO if kk < 4 else sOA2} offen offset:{(kk&3)*1024} sc1", "ofa") for kk in range(8)]
    sched[13, 0] += ol[0:2]; sched[13, 1] += ol[2:4] + [f"s_add_u32 s{sOA2}, s{sOO}, 4096"]; sched[14, 0] += ol[4:6]; sched[14, 1] += ol[6:8]
    sched[15, 0] += [f"s_mul_i32 s{t0}, s{sQH}, 24576", f"v_add_u32 v{vBW}, s{t0}, v{vL16}",
                     f"s_add_u32 s{t0}, s{t0}, 1536", f"v_lshl_add_u32 v{vBL}, v{vN}, 4, s{t0}",
                     f"s_and_b32 s{t0}, s{sWM0}, 0x1800\ns_add_u32 s{t0}, s{t0}, {L_WOB + 16384}", f"v_lshl_add_u32 v{vBX}, v0, 2, s{t0}"]
    for s in range(16):
        ex0, ex1 = (sched[s, 0], late[s, 0]), (sched[s, 1], late[s, 1])
        vm.wait(f"B{s+1}")
        if s == P - 1: vm.wait("A")
        if s == 1: lg.wait("QA")
        if s == P + 1: lg.wait("wa")
        if s == 15: vm.wait("woa")
        a("s_barrier")
        st.step(s - 1)
        if s == P: st(9)
        if s == 10: st(10)
        if "fine" in OPT and s in (0, 1): st(2 + s)
        slot(lg, tiles, idx, *ex0); idx += 1
        if s == P - 1:
            assert not ex1[0]
            a(f"s_cmp_lg_u32 s{sQH}, 0")
            a("s_cbranch_scc1 L_A1")
            states = []
            for hf in range(2):
                if hf: a.label("L_A1")
                l2 = lg.clone(a)
                if SPF: a(f"buffer_load_dword v{T+1}, v{T}, {sr([S1, S2][hf],4)}, s{t0} offen")
                for i in range(idx, idx + 6 - hf): slot(l2, seqs[hf], i)
                states.append(list(l2.q))
                if hf == 0: a("s_branch L_B")
            assert states[0] == states[1], states
            a.label("L_B")
            lg.q = states[0]
            if SPF: vm.issue("pf")
            idx += 5
        elif s < 15:
            slot(lg, tiles, idx, *ex1); idx += 1
    assert idx == len(tiles) - 1
    RB, LB = 56, 80
    for kq in range(1, 4):
        a(f"s_cmp_eq_u32 s{sKQ}, {kq}\ns_cbranch_scc1 L_tail{kq}")
    lg0 = lg
    for kq in range(4):
        if kq: a.label(f"L_tail{kq}")
        lg = lg0.clone(a)
        def wr(o):
            sl = kq if kq < o else kq - 1
            return [f"ds_write_b128 v{vBW}, {vr(O['B0']+8*o+4*k,4)} offset:{(o*3+sl)*2048 + k*1024}" for k in range(2)]
        wl = lambda: [f"ds_write_b32 v{vBX}, v{O['B0']+8*kq+4}"]
        ex = [x for o in range(2) if o != kq for x in wr(o)] + (wl() if kq == 1 else [])
        slot(lg, tiles, idx, [], ex)
        a("s_nop 1")
        pv(lg, tiles, len(tiles) - 1, 1)
        if kq == 0: st(11)
        a("s_nop 11")
        for x in [x for o in (2, 3) if o != kq for x in wr(o)] + (wl() if kq == 3 else []): a(x)
        a("s_waitcnt lgkmcnt(0)")
        a("s_barrier")
        own = O['B0'] + 8*kq
        wlate = [dmaW(n, L_WOB, S2) for n in range(3)]
        for sl in range(3):
            for k in range(2):
                a(f"ds_read_b128 {vr(RB+8*sl+4*k,4)}, v{vBW} offset:{(kq*3+sl)*2048 + k*1024}")
        if kq & 1:
            for x in wlate: a(x)
            a("s_waitcnt lgkmcnt(4)")
            for x in pkadd(RB, RB, own): a(x)
            a("s_waitcnt lgkmcnt(0)")
            for x in pkadd(RB+8, RB+8, RB+16): a(x)
            for r in (4, 0, 2, 6):
                a(f"v_pk_add_f32 {vr(RB+r,2)}, {vr(RB+r,2)}, {vr(RB+8+r,2)}")
                if r == 4: a(f"v_mov_b32 v{LB}, v{RB+4}\nv_mov_b32 v{LB+1}, v{RB+4}")
            a(f"v_permlane32_swap_b32 v{LB+1}, v{LB}")
        else:
            for sl in range(3): a(f"ds_read_b32 v{LB+sl}, v{vBL} offset:{((kq+1)*3+sl)*2048}")
            a(f"v_or_b32 v{vBX}, 128, v{vBX}")
            a(f"ds_read_b32 v{LB+3}, v{vBX}")
            for x in wlate[:2]: a(x)
            a("s_waitcnt lgkmcnt(8)")
            for x in pkadd(RB, RB, own): a(x)
            a("s_waitcnt lgkmcnt(4)")
            for x in pkadd(RB+8, RB+8, RB+16) + pkadd(RB, RB, RB+8): a(x)
            a("s_waitcnt lgkmcnt(0)")
            a(wlate[2])
            a(f"v_add_f32 v{LB}, v{LB}, v{LB+3}\nv_add_f32 v{LB+1}, v{LB+1}, v{LB+2}\nv_add_f32 v{LB}, v{LB}, v{LB+1}")
        if kq < 3: a("s_branch L_tail_join")
    a.label("L_tail_join")
    a("s_nop 0")
    for x in finalize("B", RB, LB, vGB, vPB, sOB):
        x() if callable(x) else a(x)
    a(f"s_cmp_eq_u32 s{sCB}, 7")
    a("s_cbranch_scc1 L_fini")
    OFB = 88
    def oloads(OF, lo):
        for kk in range(lo, 8):
            a(f"buffer_load_dwordx4 {vr(OF+4*kk,4)}, v{vL16}, {sr(SWS,4)}, s{sOO if kk < 4 else u0} offen offset:{(kk&3)*1024} sc1")
    a(f"s_add_u32 s{u0}, s{sOO}, 4096\ns_mov_b32 s{sCNT}, {SPIN_MAX}")
    st(12)
    ACC3 = [16, 32]; W3 = 128
    vT3 = [2, 3]; vT3b = [4, 5]
    a(f"v_bfe_u32 v{T}, v0, 2, 2\nv_lshlrev_b32 v{T}, 7, v{T}")
    a(f"v_bfe_u32 v{T+1}, v0, 4, 1\nv_lshl_add_u32 v{T}, v{T+1}, 5, v{T}")
    a(f"v_and_b32 v{T+1}, 3, v0\nv_lshl_add_u32 v{T}, v{T+1}, 3, v{T}")
    a(f"v_bfe_u32 v{T+1}, v0, 3, 1\nv_lshl_add_u32 v{T}, v{T+1}, 6, v{T}")
    a(f"s_mul_i32 s{t0}, s{sKQ}, 14336\ns_add_u32 s{t0}, s{t0}, {L_WOA}")
    a(f"v_add_u32 v{vT3b[0]}, s{t0}, v{T}\nv_xor_b32 v{T}, 64, v{T}\nv_add_u32 v{vT3b[1]}, s{t0}, v{T}")
    a(f"v_lshrrev_b32 v{T+1}, 5, v0")
    for c in range(2): a(f"v_lshl_add_u32 v{vT3[c]}, v{T+1}, 9, v{vT3b[c]}")
    def reads3(kk):
        hd, j = kk >> 1, kk & 1
        for ct in range(2):
            for e in range(2):
                a(f"ds_read_b64_tr_b16 {vr(W3+8*kk+4*ct+2*e,2)}, v{vT3b[ct] if (j == 1 and e == 1) else vT3[ct]} offset:{(28*hd+16*j+8*e)*128}")
    def mm(OF, kk, first):
        for ct in range(2):
            D = vr(ACC3[ct], 16)
            a(f"v_mfma_f32_32x32x16_bf16 {D}, {vr(W3+8*kk+4*ct,4)}, {vr(OF+4*kk,4)}, {'0' if first else D}")
    for kk in range(3): reads3(kk)
    a("s_waitcnt vmcnt(4)")
    a.label("L_oa_chk")
    a(f"v_max3_u32 v{T}, v{OFA}, v{OFA+1}, v{OFA+2}")
    for r in range(3, 31, 2): a(f"v_max3_u32 v{T}, v{T}, v{OFA+r}, v{OFA+r+1}")
    a(f"v_max_u32 v{T}, v{T}, v{OFA+31}\nv_cmp_eq_u32 vcc, -1, v{T}\ns_cbranch_vccnz L_oa_retry")
    a.label("L_oa_ok")
    a(f"s_add_u32 s{sOO}, s{sOO}, 32768\ns_add_u32 s{u0}, s{sOO}, 4096")
    for kk in range(8):
        a(f"s_waitcnt lgkmcnt({min(8, 4*(7-kk))})")
        mm(OFA, kk, kk == 0)
        if kk + 3 < 8: reads3(kk + 3)
    for r in vT3 + vT3b: a(f"v_add_u32 v{r}, {(L_WOB - L_WOA) & 0xffffffff}, v{r}")
    a("s_waitcnt vmcnt(1)")
    a("s_barrier")
    for kk in range(8):
        reads3(kk)
        if kk == OBAT: oloads(OFB, 0)
    a(f"v_add_u32 v{vBW}, {L_SCR3}, v{vBW}")
    a(f"v_mul_u32_u24 v{T+3}, 896, v{vN}\nv_lshrrev_b32 v{T}, 5, v0\nv_lshl_add_u32 v{T+3}, v{T}, 4, v{T+3}")
    a(f"s_mov_b32 s{sCNT}, {SPIN_MAX}")
    a("s_waitcnt lgkmcnt(0)")
    st(13)
    for kk in range(8):
        L = f"L_ob{kk}"
        a.label(L)
        a(f"s_waitcnt vmcnt({7-kk})")
        f = OFB + 4*kk
        a(f"v_max3_u32 v{T}, v{f}, v{f+1}, v{f+2}\nv_max_u32 v{T}, v{T}, v{f+3}\nv_cmp_eq_u32 vcc, -1, v{T}")
        a(f"s_cbranch_vccnz L_retry{kk}")
        a.label(L + "_go")
        mm(OFB, kk, False)
    st(14)
    for kq in range(1, 4):
        a(f"s_cmp_eq_u32 s{sKQ}, {kq}\ns_cbranch_scc1 L_fin3_{kq}")
    R = 48
    for kq in range(4):
        if kq: a.label(f"L_fin3_{kq}")
        a("s_nop 9")
        for o in range(4):
            if o == kq: continue
            sl = kq if kq < o else kq - 1
            for k in range(2):
                a(f"ds_write_b128 v{vBW}, {vr(ACC3[0]+8*o+4*k,4)} offset:{(o*3+sl)*2048 + k*1024}")
        a("s_waitcnt lgkmcnt(0)")
        a("s_barrier")
        for sl in range(3):
            for k in range(2):
                a(f"ds_read_b128 {vr(R+8*sl+4*k,4)}, v{vBW} offset:{(kq*3+sl)*2048 + k*1024}")
        a("s_waitcnt lgkmcnt(4)")
        for x in pkadd(R, R, ACC3[0]+8*kq): a(x)
        if kq < 3: a("s_branch L_fin3_join")
    a.label("L_fin3_join")
    a("s_waitcnt lgkmcnt(0)")
    for x in pkadd(R+8, R+8, R+16) + pkadd(R, R, R+8): a(x)
    for r in range(4): a(f"v_cvt_pk_bf16_f32 v{R+8+r}, v{R+2*r}, v{R+2*r+1}")
    a("s_nop 1")
    a(f"v_permlane32_swap_b32 v{R+8}, v{R+10}\nv_permlane32_swap_b32 v{R+9}, v{R+11}")
    a(f"buffer_store_dwordx4 {vr(R+8,4)}, v{T+3}, {sr(S3,4)}, s{sOUT} offen")
    a.label("L_fini")
    a("s_waitcnt vmcnt(0)")
    st.dump()
    a.label("L_end")
    a("s_endpgm")
    a.label("L_oa_retry")
    a(f"s_sub_u32 s{sCNT}, s{sCNT}, 1\ns_cbranch_scc1 L_oa_ok")
    oloads(OFA, 0)
    a("s_waitcnt vmcnt(0)\ns_branch L_oa_chk")
    for kk in range(8):
        a.label(f"L_retry{kk}")
        a(f"s_sub_u32 s{sCNT}, s{sCNT}, 1\ns_cbranch_scc1 L_giveup{kk}")
        a("s_waitcnt vmcnt(0)")
        oloads(OFB, kk)
        a(f"s_branch L_ob{kk}")
        a.label(f"L_giveup{kk}")
        a(f"s_mov_b32 s{sCNT}, 0\ns_branch L_ob{kk}_go")

    def slow(tag, R, L, sOdd, sTile, mat):
        SS, OO, KF, VF, Q, M, DL, NI = 128, 144, 192, 200, 240, 248, 249, 251
        sT, sT1, sKO, sT0 = t0, t1, u0, u1
        SK = SKA if mat == 0 else SWS
        a.label(f"L_slow{tag}")
        if mat == 0:
            for r in range(8): a(f"v_mov_b32 v{Q+r}, v{QA+r}")
            a(f"s_sub_i32 s{sT0}, s{sTile}, 8\ns_max_i32 s{sT0}, s{sT0}, 0\ns_add_u32 s{sT1}, s{sTile}, 1")
        else:
            for r in range(8): a(f"v_mov_b32 v{Q+r}, v{QB[0]+r}")
            a(f"s_bitcmp1_b32 s{sKQ}, 1\ns_cbranch_scc0 L_slowB_q")
            for r in range(8): a(f"v_mov_b32 v{Q+r}, v{QB[1]+r}")
            a.label("L_slowB_q")
            a(f"s_mov_b32 s{sT0}, 0\ns_mov_b32 s{sT1}, 64")
        a(f"v_mov_b32 v{M}, 0xff800000\nv_mov_b32 v{NI}, 0xff800000")
        for r in range(16): a(f"v_mov_b32 v{OO+r}, 0")
        for p in range(2):
            a(f"s_mov_b32 s{sT}, s{sT0}")
            a.label(f"L_slow{tag}_p{p}")
            a(f"s_lshl_b32 s{sKO}, s{sT}, 12")
            if mat == 1: a(f"s_add_u32 s{sKO}, s{sKO}, s{sKVB}")
            for j in range(2):
                a(f"buffer_load_dwordx4 {vr(KF+4*j,4)}, v{vL16}, {sr(SK,4)}, s{sKO} offen offset:{j*1024} sc1")
            if p == 1:
                for j in range(2):
                    a(f"buffer_load_dwordx4 {vr(VF+4*j,4)}, v{vL16}, {sr(SK,4)}, s{sKO} offen offset:{2048+j*1024} sc1")
            if mat == 0:
                a(f"s_sub_u32 s{t2}, s{sTile}, s{sT}\ns_lshl_b32 s{t2}, s{t2}, 5")
                a(f"v_lshrrev_b32 v{DL}, 5, v0\nv_lshlrev_b32 v{DL}, 3, v{DL}\nv_sub_u32 v{DL}, v{vN}, v{DL}")
                a(f"v_add_u32 v{DL}, s{t2}, v{DL}")
            a("s_waitcnt vmcnt(0)")
            a(f"v_mfma_f32_32x32x16_bf16 {vr(SS,16)}, {vr(KF,4)}, {vr(Q,4)}, 0")
            a(f"v_mfma_f32_32x32x16_bf16 {vr(SS,16)}, {vr(KF+4,4)}, {vr(Q+4,4)}, {vr(SS,16)}")
            a("s_nop 15")
            if mat == 0:
                for r in range(16):
                    a(f"v_subrev_u32 v{DL+1}, {16*(r>>3)+(r&7)}, v{DL}")
                    a(f"v_cmp_gt_u32 vcc, 0x100, v{DL+1}")
                    a("s_nop 1")
                    a(f"v_cndmask_b32 v{SS+r}, v{NI}, v{SS+r}, vcc")
            if p == 0:
                for r in range(16): a(f"v_max_f32 v{M}, v{M}, v{SS+r}")
            else:
                for r in range(16): a(f"v_sub_f32 v{SS+r}, v{SS+r}, v{M}")
                for r in range(16): a(f"v_exp_f32 v{SS+r}, v{SS+r}")
                a("s_nop 1")
                for j in range(2):
                    a(f"v_smfmac_f32_32x32x32_bf16 {vr(OO,16)}, {vr(VF+4*j,4)}, {vr(SS+8*j,8)}, v{vIDX}")
            a(f"s_add_u32 s{sT}, s{sT}, 1\ns_cmp_lt_u32 s{sT}, s{sT1}")
            a(f"s_cbranch_scc1 L_slow{tag}_p{p}")
            if p == 0:
                a(f"v_mov_b32 v{DL}, v{M}\ns_nop 1\nv_permlane32_swap_b32 v{M}, v{DL}\ns_nop 1\nv_max_f32 v{M}, v{M}, v{DL}")
        a("s_nop 15")
        a(f"v_mov_b32 v{DL}, v{OO+12}\nv_mov_b32 v{L}, v{OO+12}\ns_nop 1")
        a(f"v_permlane32_swap_b32 v{DL}, v{L}\ns_nop 1")
        a(f"s_bitcmp1_b32 s{sOdd}, 0\ns_cbranch_scc1 L_slow{tag}_odd")
        for r in range(8): a(f"v_mov_b32 v{R+r}, v{OO+r}")
        a(f"s_branch L_fin{tag}")
        a.label(f"L_slow{tag}_odd")
        for r in range(8): a(f"v_mov_b32 v{R+r}, v{OO+8+r}")
        a(f"s_branch L_fin{tag}")
    slow("A", RA, LA, sQH, sTAt, 0)
    slow("B", RB, LB, sKQ, sTBt, 1)
    return K, 256

def main(out):
    a = Asm()
    hdr = open("cdna_kernels/" + NAME + ".s.ref").read().split("; Override launch")[0]
    a.raw(hdr.rstrip())
    a.raw(f"; @launch grid=(256,1,1) block=(512,1,1) lds={LDS}")
    a.raw('.amdgcn_target "amdgcn-amd-amdhsa--gfx950"')
    a.raw(".text")
    K, v = kernel(a)
    a.raw('.section .rodata,"a"')
    a.raw(".p2align 6")
    a.raw(descriptor(K, v))
    open(out, "w").write(a.text())

if __name__ == "__main__":
    pos = [x for x in sys.argv[1:] if not x.startswith("--")]
    main(pos[0] if pos else "f.s")
```

```python
import sys, struct, math
from asmlib import *

NAME = "gated_mix__sliding_block__softmax_full_mha__prompt"
KV_OFF = 0
OF_OFF = 8 << 20
FL1_OFF = 12 << 20
FLO_OFF = FL1_OFF + 32768
WS_SIZE = FLO_OFF + 32768
X_BYTES = 2048 * 896
W_BYTES = 448 * 2688
WO_BYTES = 448 * 896
def f32bits(x): return struct.unpack("<I", struct.pack("<f", x))[0]
QSCALE = f32bits(math.log2(math.e) / math.sqrt(28.0))
LOG2E = f32bits(math.log2(math.e))
SPIN_MAX = 200000

OPT = dict(a.lstrip("-").split("=") if "=" in a else (a.lstrip("-"), "1") for a in sys.argv[1:] if a.startswith("--"))
STAMPS = "stamps" in OPT
RT = "rt" in OPT
ROT = int(OPT.get("rot", 1))
FLAGAT = int(OPT.get("flagat", 28))
OBAT = int(OPT.get("obat", 0))
OBN = int(OPT.get("obn", 1))
OST = OPT.get("ost", "")
SPF = int(OPT.get("spf", 1))
NQA = [int(x) for x in OPT.get("nqa", "1,0,0,0,0,0,2,0").split(",")]
PK2 = int(OPT.get("pk", 1))
QPF = int(OPT.get("qpf", -1))
UP = int(OPT.get("up", 2))
ST_OFF = 32 << 20

R_SLOT = 30720
L_S = [0, 16384, 32768, 49152]
L_QX = 65536
L_GW, L_G, L_CNT = 98304, 99328, 100352
L_WQ = 106496
L_AREG = 106496
L_WOA, L_WOB = 106496, 49152
L_SCRA = 65536
L_SCRB = 0
L_SCR3 = 106496
LDS = 163840
APOS = int(OPT.get("apos", 5))
WQAT = [int(x) for x in OPT.get("wqat", "1,0,0,0,0,3,3,0").split(",")]

pX, pWA, pWOA, pWB, pWOB, pGW, pOUT, pDBG, pWS = 4, 6, 8, 12, 14, 16, 18, 20, 22
SWS, SKA, S1, S2, S3, S4 = 24, 28, 32, 36, 40, 44
sH, sTB, sWV, sQH, sKQ, sG16, sNON, sM0, sOFF, sTBt, sTAt, sOA, sOB, sFA, sCB = 48, 49, 50, 51, 52, 53, 54, 56, 57, 58, 59, 60, 61, 62, 63
t0, t1, t2, t3 = 64, 65, 66, 67
u0, u1 = 10, 11
sCNT = 3
sC0, sKVB = 0, 1
sFO, sOO, sOUT, sWM0 = 4, 5, 6, 7
sHI, sQM, sW0 = 8, 12, 14

class Stamper:
    def __init__(self, a): self.a = a
    def start(self):
        if STAMPS:
            self.a("s_memrealtime s[100:101]"); self.a("s_memtime s[68:69]")
        if RT:
            for i in range(1, 16): self.a(f"s_mov_b32 s{68+2*i}, 0")
            self.a("s_memrealtime s[68:69]")
    def step(self, s):
        if "steps" in OPT and 1 <= s <= 14: self.a(f"s_mem{'real' if OPT['stamps'] == 'r' else ''}time s[{68+2*s}:{69+2*s}]")
    def __call__(self, i):
        if "steps" in OPT: return
        if STAMPS: self.a(f"s_mem{'real' if OPT['stamps'] == 'r' else ''}time s[{68+2*i}:{69+2*i}]")
        if RT: self.a(f"s_memrealtime s[{68+2*i}:{69+2*i}]")
    def dump(self):
        a = self.a
        if RT and "echo" in OPT:
            i = int(OPT["echo"])
            a("s_waitcnt vmcnt(0)\ns_memrealtime s[98:99]\ns_waitcnt lgkmcnt(0)")
            a(f"s_cmp_lt_u32 s{sWV}, 4\ns_cbranch_scc0 L_end")
            a(f"s_sub_u32 s64, s{68+2*i}, s68\ns_lshl_b32 s64, s64, 2\ns_min_u32 s64, s64, 100000")
            a.label("L_echo")
            a("s_memrealtime s[66:67]\ns_waitcnt lgkmcnt(0)\ns_sub_u32 s65, s66, s98\ns_cmp_lt_u32 s65, s64\ns_cbranch_scc1 L_echo")
            return
        if not STAMPS: return
        a("s_waitcnt vmcnt(0)")
        a("s_memtime s[98:99]"); a("s_memrealtime s[66:67]")
        a("s_waitcnt lgkmcnt(0)")
        a("s_mov_b64 exec, -1")
        srd(a, S4, pWS, 0x100000, add=ST_OFF)
        a(f"s_lshl_b32 s64, s2, 4\ns_add_u32 s64, s64, s{sWV}\ns_lshl_b32 s64, s64, 7")
        a("v_mov_b32 v1, 0")
        for i in range(16):
            a(f"v_mov_b32 v2, s{68+2*i}")
            a(f"buffer_store_dword v2, v1, {sr(S4,4)}, s64 offen offset:{4*i}")
        a(f"v_mov_b32 v2, s100\nbuffer_store_dword v2, v1, {sr(S4,4)}, s64 offen offset:64")
        a(f"v_mov_b32 v2, s66\nbuffer_store_dword v2, v1, {sr(S4,4)}, s64 offen offset:68")
        a(f"s_getreg_b32 s65, hwreg(HW_REG_XCC_ID)\nv_mov_b32 v2, s65\nbuffer_store_dword v2, v1, {sr(S4,4)}, s64 offen offset:72")

def g16_table():
    v = 0
    for hq in range(4):
        hs = sorted(range(4*hq, 4*hq+4), key=lambda h: 0 if (56*h) % 128 > 64 else 1)
        for h, q in zip(hs, (0, 3, 1, 2)): v |= (4*hq + q) << (4*h)
    return v

def kernel(a):
    K = NAME + "_kernel"
    kernel_begin(a, K)
    st = Stamper(a)
    uid = [0]
    def lab(p):
        uid[0] += 1; return f"{p}_{uid[0]}"
    vL16 = 1
    a("s_cmp_ge_u32 s2, 256")
    a("s_cbranch_scc1 L_end")
    st.start()
    a("s_load_dwordx8 s[4:11], s[0:1], 0")
    a("s_load_dwordx8 s[12:19], s[0:1], 32")
    a("s_load_dwordx4 s[20:23], s[0:1], 64")
    a("v_lshrrev_b32 v1, 6, v0")
    a("v_and_b32 v0, 63, v0")
    a(f"v_readfirstlane_b32 s{sWV}, v1")
    a(f"v_lshlrev_b32 v{vL16}, 4, v0")
    a(f"s_and_b32 s{t0}, s2, 6\ns_lshl_b32 s{t0}, s{t0}, 1\ns_lshr_b32 s{t1}, s2, 6\ns_add_u32 s{sH}, s{t0}, s{t1}")
    a(f"s_and_b32 s{t0}, s2, 1\ns_lshl_b32 s{t0}, s{t0}, 3\ns_bfe_u32 s{t2}, s2, 0x30003\ns_add_u32 s{sTB}, s{t0}, s{t2}")
    a(f"s_lshl_b32 s{t1}, s{t1}, 1\ns_add_u32 s{sCB}, s{t1}, s{t2}")
    a(f"s_cmp_ge_u32 s{sCB}, 7\ns_cselect_b32 s{t1}, 7, 0\ns_sub_u32 s{sCB}, s{sCB}, s{t1}")
    if not ROT: a(f"s_mov_b32 s{sCB}, 0")
    tb = g16_table()
    a(f"s_mov_b32 s{t2}, 0x{tb & 0xffffffff:08x}\ns_mov_b32 s{t3}, 0x{tb >> 32:08x}")
    a(f"s_lshl_b32 s{t0}, s{sH}, 2\ns_lshr_b64 s[{t2}:{t3}], s[{t2}:{t3}], s{t0}\ns_and_b32 s{sG16}, s{t2}, 15")
    a(f"s_lshr_b32 s{sQH}, s{sWV}, 2")
    a(f"s_and_b32 s{sKQ}, s{sWV}, 3")

    vDB, vBA0, vDA, vAA, vIDX, vN, vGA, vGB = 2, 3, 4, 5, 6, 7, 8, 9
    T = 10
    vDW = 254; vZ = 255
    QB = [16, 24]; QA = 32
    FR = {"K0": 40, "K1": 44, "V0": 48, "V1": 52}
    S = [56, 72]
    RED = 88
    O = {"B0": 160, "B1": 176, "A": 208}
    MASK = 224
    vNON = 252
    vAW, vAR, vAL, vALW = 120, 121, 122, 119
    vAV, vPA, vPB, vLO = 15, 110, 111, 109

    def scalar_setup():
        srd(a, SWS, pWS, WS_SIZE)
        a(f"s_lshl_b32 s{t0}, s{sH}, 18")
        srd(a, SKA, pWS, 262144, add=f"s{t0}")
        a(f"s_add_u32 s{sKVB}, s{t0}, {16 << 18}")
        a(f"s_lshl_b32 s{sM0}, s{sWV}, 11")
        a(f"s_lshl_b32 s{t1}, s{sTB}, 2")
        a(f"s_lshl_b32 s{t0}, s{sQH}, 1\ns_add_u32 s{t0}, s{t0}, s{t1}\ns_lshr_b32 s{t2}, s{sKQ}, 1")
        a(f"s_add_u32 s{sTBt}, s{t0}, s{t2}")
        a(f"s_add_u32 s{sTAt}, s{t1}, s{sKQ}")
        a(f"s_lshl_b32 s{t0}, s{sTAt}, 5\ns_add_u32 s{t0}, s{t0}, s{sH}\ns_lshl_b32 s{t0}, s{t0}, 1\ns_add_u32 s{t0}, s{t0}, s{sQH}")
        a(f"s_lshl_b32 s{t0}, s{t0}, 10\ns_add_u32 s{sOA}, s{t0}, {OF_OFF}")
        a(f"s_lshl_b32 s{t0}, s{sTBt}, 5\ns_add_u32 s{t0}, s{t0}, s{sH}\ns_lshl_b32 s{t0}, s{t0}, 1\ns_and_b32 s{t1}, s{sKQ}, 1\ns_add_u32 s{t0}, s{t0}, s{t1}")
        a(f"s_lshl_b32 s{t0}, s{t0}, 10\ns_add_u32 s{sOB}, s{t0}, {OF_OFF + 32768}")
        a(f"s_lshl_b32 s{t0}, s{sTB}, 4\ns_add_u32 s{t0}, s{t0}, s{sH}\ns_lshl_b32 s{t0}, s{t0}, 7\ns_add_u32 s{sFA}, s{t0}, {FLO_OFF}")
        a(f"s_mov_b32 s{sOFF}, 8192")

    def late_setup():
        srd(a, S1, pWOA, WO_BYTES); srd(a, S2, pWOB, WO_BYTES); srd(a, S3, pOUT, X_BYTES)
        a(f"s_and_b32 s{t0}, s2, 7\ns_lshl_b32 s{t0}, s{t0}, 2\ns_bfe_u32 s{t1}, s2, 0x20003\ns_add_u32 s{t0}, s{t0}, s{t1}\ns_lshr_b32 s{sCB}, s2, 5")
        a(f"s_lshl_b32 s{t0}, s{t0}, 1\ns_add_u32 s{t2}, s{t0}, s{sQH}")
        a(f"s_lshr_b32 s{t0}, s{t2}, 2\ns_lshl_b32 s{t0}, s{t0}, 11\ns_add_u32 s{sFO}, s{t0}, {FLO_OFF}")
        a(f"s_lshl_b32 s{t0}, s{t2}, 16\ns_lshl_b32 s{t1}, s{sKQ}, 13\ns_add_u32 s{t0}, s{t0}, s{t1}\ns_add_u32 s{sOO}, s{t0}, {OF_OFF}")
        a(f"s_mul_i32 s{t0}, s{t2}, {32*896}\ns_lshl_b32 s{t1}, s{sCB}, 7\ns_add_u32 s{t0}, s{t0}, s{t1}\ns_lshl_b32 s{t1}, s{sKQ}, 5\ns_add_u32 s{sOUT}, s{t0}, s{t1}")
        a(f"s_lshl_b32 s{sWM0}, s{sWV}, 10")
        a(f"v_lshrrev_b32 v{T}, 3, v0\ns_lshl_b32 s{t0}, s{sWV}, 3\nv_add_u32 v{T}, s{t0}, v{T}\nv_mul_u32_u24 v{T}, 896, v{T}")
        a(f"v_bfe_u32 v{T+1}, v0, 4, 1\nv_lshlrev_b32 v{T+1}, 2, v{T+1}\nv_and_b32 v{T+2}, 7, v0\nv_xor_b32 v{T+1}, v{T+1}, v{T+2}")
        a(f"v_lshl_add_u32 v{T}, v{T+1}, 4, v{T}\ns_min_u32 s{t0}, s{sCB}, 6\ns_lshl_b32 s{t0}, s{t0}, 7\nv_add_u32 v{vDW}, s{t0}, v{T}")

    def phase2_setup():
        a(f"s_lshr_b32 s{t0}, s{sWV}, 1\ns_lshl_b32 s{t0}, s{t0}, 16\ns_and_b32 s{t1}, s{sWV}, 1\ns_lshl_b32 s{t1}, s{t1}, 11\ns_add_u32 s{t0}, s{t0}, s{t1}\ns_add_u32 s{t0}, s{t0}, s{sKVB}")
        a(f"v_add_u32 v{vDB}, s{t0}, v{vL16}")
        a(f"s_lshl_b32 s{t0}, s{sKQ}, 12\ns_add_u32 s{t0}, s{t0}, {L_S[0]}")
        a(f"v_add_u32 v{vBA0}, s{t0}, v{vL16}")
        a(f"s_lshl_b32 s{t0}, s{sTB}, 14\ns_sub_u32 s{t0}, s{t0}, 32768\ns_add_u32 s{t0}, s{t0}, s{sM0}")
        a(f"v_add_u32 v{vDA}, s{t0}, v{vL16}")
        a(f"s_mul_i32 s{t0}, s{sQH}, 5\ns_add_u32 s{t0}, s{t0}, s{sKQ}\ns_lshl_b32 s{t0}, s{t0}, 12\ns_add_u32 s{t0}, s{t0}, {L_AREG}")
        a(f"v_add_u32 v{vAA}, s{t0}, v{vL16}")
        a(f"s_lshl_b32 s{t0}, s{sQH}, 8\nv_xor_b32 v{vAV}, s{t0}, v{vAA}")
        a(f"v_mov_b32 v{vIDX}, 0xdddddddd")
        a(f"v_and_b32 v{vN}, 31, v0")
        a(f"v_lshrrev_b32 v{T}, 5, v0\nv_lshlrev_b32 v{T}, 3, v{T}\nv_sub_u32 v{T}, v{vN}, v{T}")
        a(f"s_cmp_eq_u32 s{sQH}, 0")
        a(f"s_cselect_b32 s{t0}, 0, 0xff800000")
        a(f"s_cselect_b32 s{t1}, 0xff800000, 0")
        a(f"v_mov_b32 v{T+1}, s{t0}\nv_mov_b32 v{T+2}, s{t1}")
        for r in range(0, 16, 2):
            a(f"v_cmp_le_i32 s[{t2}:{t3}], {16*(r>>3) + (r&7)}, v{T}")
            a(f"v_cmp_le_i32 vcc, {16*(r>>3) + (r&7) + 1}, v{T}")
            a("s_nop 0")
            a(f"v_cndmask_b32 v{MASK+r}, v{T+1}, v{T+2}, s[{t2}:{t3}]")
            a(f"v_cndmask_b32_e64 v{MASK+r+1}, v{T+1}, v{T+2}, vcc")

    def get_nonce(issued):
        L, D = lab("L_non"), lab("L_non_done")
        a(f"s_mov_b32 s{sCNT}, {SPIN_MAX}")
        if issued: a(f"s_branch {L}_chk")
        a.label(L)
        a(f"buffer_load_dwordx2 {vr(vNON,2)}, v{vZ}, {sr(S4,4)}, 0 offen sc1")
        a.label(L + "_chk")
        a("s_waitcnt vmcnt(0)")
        a(f"v_readfirstlane_b32 s{sNON}, v{vNON}\nv_readfirstlane_b32 s{sNON+1}, v{vNON+1}")
        a(f"s_sub_u32 s{sCNT}, s{sCNT}, 1\ns_cbranch_scc1 {D}")
        a(f"s_cmp_eq_u32 s{sNON}, 0\ns_cbranch_scc1 {L}")
        a.label(D)

    def poll(vaddr, soff, need, tmp):
        L, D = lab("L_poll"), lab("L_poll_done")
        a(f"s_mov_b32 s{sCNT}, {SPIN_MAX}")
        a.label(L)
        a(f"buffer_load_dwordx2 {vr(tmp,2)}, v{vaddr}, {sr(SWS,4)}, {soff} offen sc1")
        a("s_waitcnt vmcnt(0)")
        a(f"v_cmp_eq_u64 vcc, s[{sNON}:{sNON+1}], {vr(tmp,2)}")
        if need is not None: a(f"s_orn2_b64 vcc, vcc, s[{need}:{need+1}]")
        a(f"s_cmp_eq_u64 vcc, -1\ns_cbranch_scc1 {D}")
        a(f"s_sleep {OPT.get('sleep', 4)}")
        a(f"s_sub_u32 s{sCNT}, s{sCNT}, 1\ns_cbranch_scc0 {L}")
        a.label(D)

    def flag_store(soff):
        return f"s_mov_b64 exec, 1\nbuffer_store_dwordx2 {vr(vNON,2)}, v{vZ}, {sr(SWS,4)}, {soff} offen sc1\ns_mov_b64 exec, -1"

    a(f"v_mov_b32 v{vZ}, 0")
    a(f"s_cmp_lt_u32 s{sWV}, 4")
    a("s_cbranch_scc1 L_compute")
    XA, WA, WQA, GWR = 16, 20, 24, 26
    sLX, sLW, sOX, sOW = u0, u1, sOA, sOB
    a("v_lshrrev_b32 v2, 3, v0")
    a(f"s_lshl_b32 s{t0}, s{sTB}, 7\ns_lshl_b32 s{t1}, s{sKQ}, 5\ns_add_u32 s{t0}, s{t0}, s{t1}")
    a(f"v_add_u32 v2, s{t0}, v2")
    a("v_mul_u32_u24 v2, 896, v2")
    a("v_lshrrev_b32 v3, 4, v0\nv_and_b32 v4, 7, v0\nv_xor_b32 v3, v3, v4\nv_lshlrev_b32 v3, 4, v3\nv_xor_b32 v4, 64, v3")
    a(f"v_add_u32 v{XA}, v2, v3\nv_add_u32 v{XA+1}, v2, v4\nv_add_u32 v{XA+1}, 7168, v{XA+1}")
    a(f"v_add_u32 v{XA+2}, 14336, v{XA}\nv_add_u32 v{XA+3}, 14336, v{XA+1}")
    a(f"s_and_b32 s{t0}, s{sG16}, 7\ns_mul_i32 s{t0}, s{t0}, 224\ns_add_u32 s{t0}, s{t0}, 896")
    a(f"s_lshl_b32 s{t1}, s{sKQ}, 6")
    for n in range(4):
        a(f"v_add_u32 v2, s{t1}, v0")
        if n: a(f"v_add_u32 v2, {256*n}, v2")
        a("v_mul_u32_u24 v3, 4682, v2\nv_lshrrev_b32 v3, 16, v3")
        a("v_mul_u32_u24 v4, 14, v3\nv_sub_u32 v4, v2, v4")
        a("v_and_b32 v5, 1, v3\nv_lshlrev_b32 v5, 2, v5\nv_bfe_u32 v6, v3, 1, 2\nv_and_b32 v3, 0x78, v3\nv_or3_b32 v3, v3, v5, v6")
        a("v_mul_u32_u24 v3, 2688, v3\nv_lshl_add_u32 v3, v4, 4, v3")
        a(f"v_add_u32 v{WA+n}, s{t0}, v3")
    a(f"s_lshl_b32 s{sOX}, s{sCB}, 7\ns_mul_i32 s{sOW}, s{sCB}, {64*2688}")
    a("s_waitcnt lgkmcnt(0)")
    a(f"s_lshl_b32 s{sLX}, s{sKQ}, 12")
    a(f"s_lshl_b32 s{sLW}, s{sKQ}, 10")
    srd(a, S1, pX, X_BYTES)
    a(f"s_cmp_lt_u32 s{sG16}, 8")
    a(f"s_cselect_b32 s{S2}, s{pWA}, s{pWB}\ns_cselect_b32 s{S2+1}, s{pWA+1}, s{pWB+1}")
    a(f"s_mov_b32 s{S2+2}, {W_BYTES}\ns_mov_b32 s{S2+3}, 0x00020000")
    a(f"s_cmp_ge_u32 s{sKQ}, 2")
    a("s_cbranch_scc1 L_load3")
    def loader(nw):
        vm = Ctr(a, "vmcnt", 63)
        sOQ, sLQ = sFA, sTBt
        nq = [0]; nqa = [0]
        def issue(c):
            slot = (c % 3) * R_SLOT
            for n in range(4):
                a(f"s_add_u32 m0, s{sLX}, {slot + n*1024}\ns_nop 0")
                a(f"buffer_load_dwordx4 v{XA+n}, {sr(S1,4)}, s{sOX} offen lds"); vm.issue(c)
                if n < nw:
                    a(f"s_add_u32 m0, s{sLW}, {slot + 16384 + n*4096}\ns_nop 0")
                    a(f"buffer_load_dwordx4 v{WA+n}, {sr(S2,4)}, s{sOW} offen lds"); vm.issue(c)
            a(f"s_add_u32 s{sOX}, s{sOX}, 128\ns_add_u32 s{sOW}, s{sOW}, {64*2688}\ns_cmp_eq_u32 s{sOX}, 896")
            a(f"s_cselect_b32 s{sOX}, 0, s{sOX}\ns_cselect_b32 s{sOW}, 0, s{sOW}")
        def wqa(k, sL, off):
            for _ in range(k):
                a(f"s_add_u32 m0, s{sL}, {(nqa[0]*1024 + off) & 0xffffffff}\ns_nop 0")
                a(f"buffer_load_dwordx4 v{WQA}, {sr(SKA if off else S4,4)}, s{sC0} offen lds"); vm.issue("qa")
                a(f"s_add_u32 s{sC0}, s{sC0}, 43008\ns_cmp_eq_u32 s{sC0}, {28*43008}\ns_cselect_b32 s{sC0}, 0, s{sC0}")
                nqa[0] += 1
        def wq(k, SR=S3, sOQ=sOQ, sLQ=sLQ):
            for _ in range(k):
                a(f"s_add_u32 m0, s{sLQ}, {(nq[0] % 7)*1024}\ns_nop 0")
                a(f"buffer_load_dwordx4 v{WQA}, {sr(SR,4)}, s{sOQ} offen lds"); vm.issue("q")
                a(f"s_add_u32 s{sOQ}, s{sOQ}, 43008\ns_cmp_eq_u32 s{sOQ}, {28*43008}\ns_cselect_b32 s{sOQ}, 0, s{sOQ}")
                nq[0] += 1
        st(1)
        for c in range(UP): issue(c)
        srd(a, S3, pWB, W_BYTES)
        a("v_lshrrev_b32 v2, 2, v0\nv_mul_u32_u24 v2, 2688, v2\nv_and_b32 v3, 3, v0\nv_lshl_add_u32 v2, v3, 4, v2")
        a(f"s_mul_i32 s{t0}, s{sH}, 56\nv_add_u32 v{WQA}, s{t0}, v2")
        a(f"s_mul_i32 s{sLQ}, s{sKQ}, 7168\ns_add_u32 s{sLQ}, s{sLQ}, {L_WQ + 28672}")
        a(f"s_mul_i32 s{t0}, s{sKQ}, 7\ns_lshl_b32 s{t1}, s{sCB}, 2\ns_add_u32 s{t0}, s{t0}, s{t1}")
        a(f"s_cmp_ge_u32 s{t0}, 28\ns_cselect_b32 s{t1}, 28, 0\ns_sub_u32 s{t0}, s{t0}, s{t1}\ns_mul_i32 s{sOQ}, s{t0}, 43008")
        a(f"s_mov_b32 s{sC0}, s{sOQ}")
        wq(WQAT[0])
        srd(a, SKA, pWA, W_BYTES)
        wqa(NQA[0], sLQ, -28672)
        if nw == 4:
            srd(a, S4, pDBG, 256)
            L = lab("L_notag")
            a(f"s_or_b32 s{t0}, s2, s{sKQ}\ns_cmp_lg_u32 s{t0}, 0\ns_cbranch_scc1 {L}")
            a(f"s_memrealtime s[{sNON}:{sNON+1}]\ns_waitcnt lgkmcnt(0)")
            a(f"s_or_b32 s{sNON}, s{sNON}, 1\ns_xor_b32 s{sNON+1}, s{sNON+1}, 0x5bd1e995")
            a(f"v_mov_b32 v{vNON}, s{sNON}\nv_mov_b32 v{vNON+1}, s{sNON+1}")
            a("s_mov_b64 exec, 1")
            a(f"buffer_store_dwordx2 {vr(vNON,2)}, v{vZ}, {sr(S4,4)}, 0 offen sc1")
            a("s_mov_b64 exec, -1")
            a("s_waitcnt vmcnt(0)")
            a.label(L)
        else:
            a(f"v_mov_b32 v2, {L_CNT}\nds_write_b32 v2, v{vZ}\ns_waitcnt lgkmcnt(0)")
        srd(a, S4, pGW, 896)
        a(f"s_mul_i32 s{t0}, s{sKQ}, 112\ns_lshl_b32 s{t1}, s{sCB}, 6\ns_add_u32 s{t1}, s{t1}, s{t0}")
        a(f"v_min_u32 v2, 55, v0\nv_add_u32 v3, s{t1}, v2")
        a(f"v_add_u32 v2, s{t0}, v2\nv_lshlrev_b32 v2, 6, v2\nv_add_u32 v{GWR+4}, {L_WQ + 28672 + 56}, v2")
        for i in range(2):
            a(f"v_add_u32 v4, {56*i}, v3\nv_subrev_u32 v5, 448, v4\nv_min_u32 v4, v4, v5\nv_lshlrev_b32 v4, 1, v4")
            a(f"buffer_load_ushort v{GWR+i}, v4, {sr(S4,4)}, 0 offen"); vm.issue("gw")
        srd(a, S4, pDBG, 256)
        for c in range(7):
            vm.wait(c)
            if c in (0, 3, 6): st(2 + c // 3)
            a("s_barrier")
            nx = c + 2 if UP == 2 else (c + 2 if c >= 1 else None)
            if nx is not None and nx <= 6: issue(nx)
            wq(WQAT[c + 1])
            wqa(NQA[c + 1], sLQ, -28672)
            if c == 5: a(f"buffer_load_dwordx2 {vr(vNON,2)}, v{vZ}, {sr(S4,4)}, 0 offen sc1"); vm.issue("n")
        assert nq[0] == 7
        get_nonce(True)
        for i in range(2): a(f"ds_write_b16 v{GWR+4}, v{GWR+i} offset:{56*64*i}")
        a("s_waitcnt lgkmcnt(0)")
        st(5)
        a("s_barrier")
        srd(a, S4, pWA, W_BYTES)
        scalar_setup()
        phase2_setup()
        late_setup()
        a(f"v_and_b32 v{T+2}, 15, v0")
        a(f"s_lshr_b32 s{t0}, s{sH}, 2\ns_lshl_b32 s{t0}, s{t0}, 11\ns_add_u32 s{t0}, s{t0}, {FL1_OFF}")
        if nw == 4:
            a(f"v_lshlrev_b32 v{T}, 7, v{T+2}")
            a(f"s_lshl_b32 s{u1}, s{sKQ}, 11\ns_lshl_b32 s{t1}, s{sKQ}, 13\ns_add_u32 s{t0}, s{t0}, s{t1}\ns_add_u32 s{t0}, s{t0}, {8*2048}")
            a(f"s_add_u32 s{t1}, s{u1}, s{sKVB}\nv_add_u32 v{T+1}, s{t1}, v{vL16}")
        else:
            a(f"s_sub_i32 s{u0}, s{sTB}, 2\ns_max_i32 s{u0}, s{u0}, 0")
            a(f"v_max_u32 v{T+2}, s{u0}, v{T+2}\nv_min_u32 v{T+2}, s{sTB}, v{T+2}\nv_lshlrev_b32 v{T}, 7, v{T+2}")
            a(f"v_bfe_u32 v{T+2}, v0, 4, 1\nv_lshl_add_u32 v{T}, v{T+2}, 13, v{T}")
        a(f"s_mul_i32 s{t2}, s{sKQ}, 7168\ns_add_u32 s{t2}, s{t2}, {L_WQ}")
        a("s_barrier")
        wqa(7 - nqa[0], t2, 0)
        a("s_waitcnt vmcnt(0)")
        st(7)
        a("s_barrier")
        if nw == 3: a(f"s_cmp_eq_u32 s{sKQ}, 3\ns_cbranch_scc1 L_phase2")
        poll(T, f"s{t0}", None, RED)
        st(6)
        if nw == 4:
            for s in range(3):
                a(f"s_mov_b32 s{u0}, {s*4096}")
                for kq in range(4):
                    a(f"s_add_u32 m0, s{u1}, {L_S[s] + kq*4096}\ns_nop 0")
                    a(f"buffer_load_dwordx4 v{T+1}, {sr(SWS,4)}, s{u0} offen sc1 lds")
                    a(f"buffer_load_dwordx4 v{T+1}, {sr(SWS,4)}, s{u0} offen offset:1024 sc1 lds")
                    a(f"s_add_u32 s{u0}, s{u0}, 65536")
            a("s_waitcnt vmcnt(16)")
        a("s_branch L_phase2")
    loader(4)
    a.label("L_load3")
    loader(3)

    a.label("L_compute")
    vST, vVC, XAD, WAD, WQD, GWD = 240, 241, 242, 246, 14, 15
    XR = 16; ACC = [128 + 16*u for u in range(4)]
    WF = [[192 + 16*b + 4*u for u in range(4)] for b in range(2)]
    PK = 192; DAC = 248; XAO = 216
    WF = [[192, 196], [204, 208]]; XO = [200, 212]
    a("v_and_b32 v9, 31, v0\nv_lshrrev_b32 v10, 5, v0\nv_bfe_u32 v11, v0, 1, 3")
    a(f"s_lshl_b32 s{t0}, s{sKQ}, 12")
    a(f"v_lshlrev_b32 v12, 7, v9\nv_add_u32 v12, s{t0}, v12")
    for ks in range(4):
        a(f"v_or_b32 v13, {2*ks}, v10\nv_xor_b32 v13, v13, v11\nv_lshl_add_u32 v{XAD+ks}, v13, 4, v12")
    a("v_bfe_u32 v12, v0, 4, 1\nv_lshlrev_b32 v12, 5, v12\nv_and_b32 v13, 3, v0\nv_lshl_add_u32 v12, v13, 3, v12")
    a("v_bfe_u32 v13, v0, 2, 2")
    a("v_lshl_add_u32 v11, v10, 2, v13")
    a(f"s_and_b32 s{t0}, s{sKQ}, 1\ns_mul_i32 s{t0}, s{t0}, 112")
    a(f"v_mul_u32_u24 v11, 448, v11\nv_add3_u32 v{WAD}, v11, v12, s{t0}")
    for ks in range(4): a(f"v_xor_b32 v{XAO+ks}, 4096, v{XAD+ks}")
    a("v_lshl_add_u32 v11, v10, 3, v13")
    a(f"v_lshl_add_u32 v11, v11, 6, v12\nv_add_u32 v{WQD}, {L_WQ}, v11")
    a(f"v_mov_b32 v{vVC}, 0")
    a("s_mov_b32 exec_lo, 0x10000000\ns_mov_b32 exec_hi, 0x10000000")
    a(f"v_mov_b32 v{vVC}, 0x3f803f80")
    a("s_mov_b64 exec, -1")
    a("v_and_b32 v11, 0x33, v0\nv_bfe_u32 v12, v0, 2, 1\nv_lshl_or_b32 v11, v12, 3, v11\nv_bfe_u32 v12, v0, 3, 1\nv_lshl_or_b32 v11, v12, 2, v11")
    a(f"v_lshlrev_b32 v{vST}, 4, v11")
    a("s_waitcnt lgkmcnt(0)")
    scalar_setup()
    phase2_setup()
    late_setup()
    srd(a, S4, pDBG, 256)
    a(f"s_lshr_b32 s{t0}, s{sG16}, 3\ns_lshl_b32 s{t0}, s{t0}, 2\ns_and_b32 s{t1}, s{sG16}, 3\ns_add_u32 s{t0}, s{t0}, s{t1}")
    a(f"s_lshl_b32 s{t0}, s{t0}, 1\ns_and_b32 s{t1}, s{sKQ}, 1\ns_add_u32 s{t0}, s{t0}, s{t1}")
    a(f"s_lshl_b32 s{t0}, s{t0}, 7\ns_add_u32 s{t0}, s{t0}, s{sTAt}\ns_lshl_b32 s{u0}, s{t0}, 12")
    a(f"s_lshl_b32 s{u1}, s{sG16}, 4\ns_add_u32 s{u1}, s{u1}, s{sTB}\ns_lshl_b32 s{u1}, s{u1}, 7\ns_add_u32 s{u1}, s{u1}, {FL1_OFF}")
    a(f"s_bitcmp1_b32 s{sG16}, 2")
    a("s_cbranch_scc1 L_1a_V")
    def reads1a(g):
        b, ks = g & 1, g & 3
        tr = lambda u: [(f"ds_read_b64_tr_b16 {vr(WF[b][u]+2*e,2)}, v{WAD} offset:{16384 + ks*3584 + e*224 + u*56}") for e in range(2)]
        return ([(f"ds_read_b128 {vr(XR+4*g,4)}, v{XAD+ks}", 0)] + [(x, 0) for x in tr(0)] +
                [(f"ds_read_b128 {vr(XO[b],4)}, v{XAO+ks}", 1)] + [(x, 2) for x in tr(1)])
    for ty in "KV":
        a.label("L_1a_" + ty)
        if ty == "V": a(f"s_add_u32 s{u0}, s{u0}, 2048")
        st(1)
        a("s_barrier")
        st(2)
        lg = Ctr(a, "lgkmcnt", 15)
        def rd1a(g, lo, hi):
            for x, k in reads1a(g)[lo:hi]:
                a(x); lg.issue((g, k))
        rd1a(0, 0, 6)
        for g in range(28):
            b = g & 1
            edge = g + 1 < 28 and (g + 1) & 3 == 0
            cut = [0, 0, 0, 4, 6] if edge else [0, 3, 6, 6, 6]
            for u in range(4):
                if edge and u == 2:
                    c = (g + 1) >> 2
                    lg.wait_all()
                    if c == 6: get_nonce(True)
                    a("s_barrier")
                    if c in (3, 6): st(2 + c // 3)
                    d = R_SLOT if c % 3 else -2 * R_SLOT
                    for r in (XAD, WAD, XAO): a(f"v_add_u32 v{r}, {d & 0xffffffff}, v{r}")
                lg.wait([(g, u)])
                D = vr(ACC[u], 16); C = "0" if g == 0 else D
                X, W = vr(XO[b] if u & 1 else XR + 4*g, 4), vr(WF[b][u >> 1], 4)
                a(f"v_mfma_f32_32x32x16_bf16 {D}, {X}, {W}, {C}" if ty == "V" else f"v_mfma_f32_32x32x16_bf16 {D}, {W}, {X}, {C}")
                if g + 1 < 28: rd1a(g + 1, cut[u], cut[u+1])
                if edge and u == 3:
                    for r in (XAD + 1, XAO + 1): a(f"v_add_u32 v{r}, {d & 0xffffffff}, v{r}")
                    if c == 4: a(f"buffer_load_dwordx2 {vr(vNON,2)}, v{vZ}, {sr(S4,4)}, 0 offen sc1")
                if g >= 4 and g & 3 == 0 and u >= 2:
                    for r in (XAD + u, XAO + u): a(f"v_add_u32 v{r}, {d & 0xffffffff}, v{r}")
        st(5)
        a(f"s_xor_b32 s{t0}, s{u0}, 4096")
        a("s_nop 7")
        for u in range(4):
            D = ACC[u]; P = [192, 216][u & 1]
            for r in range(8): a(f"v_cvt_pk_bf16_f32 v{P+r}, v{D+2*r}, v{D+2*r+1}")
            if ty == "V":
                a("s_mov_b32 exec_lo, 0xf0000000\ns_mov_b32 exec_hi, 0xf0000000")
                for r in range(8): a(f"v_mov_b32 v{P+r}, v{vVC}")
            else:
                a(f"s_mov_b32 exec_lo, 0\nv_mov_b32 v{P+6}, 0\nv_mov_b32 v{P+7}, 0")
            a("s_mov_b64 exec, -1")
            va = vST if ty == "K" else vL16
            so = t0 if u & 1 else u0
            a(f"buffer_store_dwordx4 {vr(P,4)}, v{va}, {sr(SWS,4)}, s{so} offen sc1")
            a(f"buffer_store_dwordx4 {vr(P+4,4)}, v{va}, {sr(SWS,4)}, s{so} offen offset:1024 sc1")
            if u < 2: a(f"s_add_u32 s{so}, s{so}, 262144")
        if ty == "K": a("s_branch L_1a_join")
    a.label("L_1a_join")
    lg = Ctr(a, "lgkmcnt", 15)
    def sendflag():
        a(f"v_mov_b32 v{T}, {L_CNT}\nv_mov_b32 v{T+1}, 1")
        a("s_waitcnt vmcnt(0)")
        a(f"s_mov_b64 exec, 1\nds_add_rtn_u32 v{T+1}, v{T}, v{T+1}\ns_waitcnt lgkmcnt(0)")
        lg.q = []
        a(f"v_cmp_eq_u32 vcc, 3, v{T+1}\ns_cbranch_vccz L_noflag")
        a(f"buffer_store_dwordx2 {vr(vNON,2)}, v{vZ}, {sr(SWS,4)}, s{u1} offen sc1")
        a.label("L_noflag")
        a("s_mov_b64 exec, -1")
        st(7)
    a("s_barrier")
    st(6)
    NB = 8; LOOK = 6
    QBUF = [160 + 4*i for i in range(NB)]
    def qpass(m):
        def rd(g):
            for e in range(2):
                a(f"ds_read_b64_tr_b16 {vr(QBUF[g % NB]+2*e,2)}, v{WQD} offset:{m*28672 + g*1024 + e*256}"); lg.issue(g)
        for g in range(LOOK): rd(g)
        D = vr(ACC[m], 16)
        for g in range(28):
            lg.wait(g)
            a(f"v_mfma_f32_32x32x16_bf16 {D}, {vr(QBUF[g % NB],4)}, {vr(XR+4*g,4)}, {'0' if g == 0 else D}")
            if g + LOOK < 28: rd(g + LOOK)
    def qout(m):
        D = ACC[m]; P = 208
        for r in range(0, 16, 2): a(f"v_pk_mul_f32 {vr(D+r,2)}, {vr(D+r,2)}, {vr(T+2,2)} op_sel_hi:[1,0]")
        for r in range(8): a(f"v_cvt_pk_bf16_f32 v{P+r}, v{D+2*r}, v{D+2*r+1}")
        a(f"s_mov_b32 exec_lo, 0\nv_mov_b32 v{P+6}, 0\nv_mov_b32 v{P+7}, 0\ns_mov_b64 exec, -1")
        a(f"ds_write_b128 v{DAC+3}, {vr(P,4)} offset:{m*8192}")
        a(f"ds_write_b128 v{DAC+3}, {vr(P+4,4)} offset:{m*8192+1024}")
    qpass(1)
    if "fine" in OPT: st(1)
    sendflag()
    a("s_barrier")
    a(f"s_lshl_b32 s{t0}, s{sKQ}, 8\ns_add_u32 s{t0}, s{t0}, {L_G}")
    a(f"v_lshl_add_u32 v{DAC+2}, v{vN}, 3, s{t0}")
    a(f"s_lshl_b32 s{t0}, s{sKQ}, 11\ns_add_u32 s{t0}, s{t0}, {L_QX}")
    a(f"v_add_u32 v{DAC+3}, s{t0}, v{vL16}")
    a(f"v_mov_b32 v{T+2}, 0x{QSCALE:08x}")
    a(f"v_mov_b32 v{DAC}, v{ACC[1]+12}")
    qout(1)
    for x in [f"v_cvt_pk_bf16_f32 v{DAC}, v{DAC}, v{DAC}", f"v_lshlrev_b32 v{DAC}, 16, v{DAC}",
              f"v_mul_f32 v{DAC}, 0x{LOG2E ^ 0x80000000:08x}, v{DAC}", f"v_exp_f32 v{DAC}, v{DAC}", "s_nop 0",
              f"v_add_f32 v{DAC}, 1.0, v{DAC}", f"v_rcp_f32 v{DAC}, v{DAC}", "s_nop 0",
              f"v_cvt_pk_bf16_f32 v{DAC}, v{DAC}, v{DAC}", f"v_lshlrev_b32 v{DAC}, 16, v{DAC}",
              f"v_sub_f32 v{DAC+1}, 1.0, v{DAC}", f"v_cvt_pk_bf16_f32 v{DAC+1}, v{DAC+1}, v{DAC+1}", f"v_lshlrev_b32 v{DAC+1}, 16, v{DAC+1}",
              "s_mov_b32 exec_lo, 0", f"ds_write_b64 v{DAC+2}, {vr(DAC,2)}", "s_mov_b64 exec, -1"]: a(x)
    a("s_waitcnt lgkmcnt(0)")
    a("s_barrier")
    if "fine" in OPT: st(4)
    qpass(0)
    a("s_nop 11")
    qout(0)
    a("s_waitcnt lgkmcnt(0)")

    a.label("L_phase2")
    a(f"s_lshl_b32 s{t0}, s{sKQ}, 11\ns_add_u32 s{t0}, s{t0}, {L_QX}")
    a(f"v_add_u32 v{T}, s{t0}, v{vL16}")
    a(f"s_lshl_b32 s{t0}, s{sQH}, 12\ns_add_u32 s{t0}, s{t0}, {L_QX + 8192}")
    a(f"v_add_u32 v{T+1}, s{t0}, v{vL16}")
    st(8)
    a("s_barrier")
    lg = Ctr(a, "lgkmcnt", 15)
    vm = Ctr(a, "vmcnt", 63)
    for k in ["B1"] * 8 + ["B2"] * 8: vm.issue(k)
    def btile(s, q): return dict(key=("B", s), Q=QB[q], O=O[f"B{q}"], mask=False, addr=vBA0, off=L_S[s % 4], s=S[q])
    def atile(i, m, sb): return dict(key=("A", i), Q=QA, O=O["A"], mask=m, addr=vAA, off=i * 4096, s=sb)
    Btiles = [btile(s, q) for s in range(16) for q in range(2)]
    Atiles = [[atile(i, i == 0, sb) for i, sb in enumerate([S[0], S[1], S[0], RED, S[1]])],
              [atile(i, i == 3, sb) for i, sb in enumerate([S[0], S[1], S[0], S[1]])]]
    seqs = [Btiles[:2*APOS] + Atiles[h] + Btiles[2*APOS:] for h in range(2)]
    FOFF = {"K0": 0, "K1": 1024, "V0": 2048, "V1": 3072}
    def load(lg, f, t):
        ad = vAV if (t["key"][0] == "A" and f[0] == "V") else t["addr"]
        a(f"ds_read_b128 {vr(FR[f],4)}, v{ad} offset:{t['off'] + FOFF[f]}"); lg.issue(f)
    def reload_after(lg, f, tiles, i):
        if i + 1 < len(tiles) and tiles[i+1]["key"] != tiles[i]["key"]: load(lg, f, tiles[i+1])
    for j in range(2):
        a(f"ds_read_b128 {vr(QB[0]+4*j,4)}, v{T+1} offset:{j*1024}"); lg.issue(f"K{j}")
        load(lg, f"K{j}", Btiles[0])
    for j in range(2):
        a(f"ds_read_b128 {vr(QB[1]+4*j,4)}, v{T+1} offset:{2048+j*1024}"); lg.issue("Q1")
    for f in ("V0", "V1"): load(lg, f, Btiles[0])
    for j in range(2):
        a(f"ds_read_b128 {vr(QA+4*j,4)}, v{T} offset:{j*1024}"); lg.issue("QA")
    a(f"s_lshl_b32 s{t0}, s{sKQ}, 8\ns_add_u32 s{t0}, s{t0}, {L_G}")
    a(f"v_lshl_add_u32 v{T+2}, v{vN}, 3, s{t0}")
    a(f"ds_read_b32 v{vGA}, v{T+2}"); lg.issue("QA")
    a(f"s_and_b32 s{t0}, s{sTBt}, 3\ns_lshl_b32 s{t0}, s{t0}, 8\ns_add_u32 s{t0}, s{t0}, {L_G + 4}")
    a(f"v_lshl_add_u32 v{T+2}, v{vN}, 3, s{t0}")
    a(f"ds_read_b32 v{vGB}, v{T+2}"); lg.issue("QA")
    ZR, PO = RED, RED + 24
    for r in range(4): a(f"v_mov_b32 v{ZR+r}, 0")
    for r in range(4): a(f"v_mov_b32 v{PO+r}, -1")
    for k in ("B0", "B1", "A"): a(f"v_mfma_f32_32x32x16_bf16 {vr(O[k],16)}, {vr(ZR,4)}, {vr(ZR,4)}, 0")

    def dmaB(s):
        return [f"s_add_u32 m0, s{sM0}, {L_S[s % 4]}\ns_add_u32 s{sOFF}, s{sOFF}, 4096",
                f"buffer_load_dwordx4 v{vDB}, {sr(SWS,4)}, s{sOFF} offen sc1 lds",
                f"buffer_load_dwordx4 v{vDB}, {sr(SWS,4)}, s{sOFF} offen offset:1024 sc1 lds"]
    def dmaA(i):
        return [f"s_add_u32 m0, s{sM0}, {L_AREG + i*16384}" + (f"\nv_add_u32 v{vDA}, 16384, v{vDA}" if i else "\ns_nop 0"),
                f"buffer_load_dwordx4 v{vDA}, {sr(SKA,4)}, 0 offen sc1 lds",
                f"buffer_load_dwordx4 v{vDA}, {sr(SKA,4)}, 0 offen offset:1024 sc1 lds"]
    def qk(lg, tiles, i, j):
        t = tiles[i]; D = vr(t["s"], 16)
        lg.wait([f"K{j}"] + (["Q1"] if i == 1 else []))
        C = D if j == 1 else (vr(MASK, 16) if t["mask"] else "0")
        a(f"v_mfma_f32_32x32x16_bf16 {D}, {vr(FR[f'K{j}'],4)}, {vr(t['Q']+4*j,4)}, {C}")
        reload_after(lg, f"K{j}", tiles, i)
    def pv(lg, tiles, i, j, merge=()):
        t = tiles[i]
        lg.wait([f"V{j}"] + list(merge))
        a(f"v_smfmac_f32_32x32x32_bf16 {vr(t['O'],16)}, {vr(FR[f'V{j}'],4)}, {vr(t['s']+8*j,8)}, v{vIDX}")
        reload_after(lg, f"V{j}", tiles, i)
    def slot(lg, tiles, i, extra=(), late=()):
        s0 = tiles[i]["s"]
        at = {r: [] for r in range(16)}
        xp = (1, 3, 4, 6, 7, 9, 10, 11, 13, 14, 15)
        for k, x in enumerate(extra): at[xp[(2 * k + 1) * len(xp) // (2 * len(extra))]].append(x)
        for k, x in enumerate(late): at[13 + k * 3 // len(late)].append(x)
        isB1 = tiles[i]["key"][0] == "B" and tiles[i]["Q"] == QB[1]
        for r in range(16):
            if r == 2 and i > 0: pv(lg, tiles, i - 1, 1, merge=("K0", "K1") if isB1 else ())
            if r == 5 and i + 1 < len(tiles): qk(lg, tiles, i + 1, 0)
            if r == 8 and i + 1 < len(tiles): qk(lg, tiles, i + 1, 1)
            if r == 12: pv(lg, tiles, i, 0)
            for x in at[r]: x() if callable(x) else a(x)
            a(f"v_exp_f32 v{s0+r}, v{s0+r}")
    tiles = seqs[1]
    qk(lg, tiles, 0, 0); qk(lg, tiles, 0, 1)
    for x in [f"s_add_u32 s{t0}, s{sM0}, {L_SCRA}", f"v_add_u32 v{vAW}, s{t0}, v{vL16}", f"v_xor_b32 v{vAR}, 8192, v{vAW}",
              f"s_lshl_b32 s{t0}, s{sKQ}, 9", f"s_add_u32 s{t0}, s{t0}, {L_SCRA + 16384 + 128}", f"v_lshl_add_u32 v{vAL}, v{vN}, 2, s{t0}",
              f"s_lshl_b32 s{t1}, s{sQH}, 8", f"s_add_u32 s{t0}, s{t0}, s{t1}", f"s_sub_u32 s{t0}, s{t0}, 128", f"v_lshl_add_u32 v{vALW}, v0, 2, s{t0}",
              f"v_lshrrev_b32 v{T}, 5, v0", f"v_and_b32 v{vPA}, s{sQH}, v{T}", f"v_and_b32 v{vPB}, s{sKQ}, v{T}",
              f"v_add_u32 v{vPA}, -1, v{vPA}", f"v_add_u32 v{vPB}, -1, v{vPB}", f"v_mov_b32 v{vLO}, 0x{f32bits(2.0**-40):08x}",
              f"s_mov_b32 s{sHI}, 0x{f32bits(2.0**60):08x}", f"s_cmp_lg_u32 s{sQH}, 0", f"s_cselect_b64 s[{sQM}:{sQM+1}], -1, 0",
              f"s_cmp_eq_u32 s{sWV}, 0", f"s_cselect_b64 s[{sW0}:{sW0+1}], 1, 0"]: a(x)
    RA, LA = RED, RED + 8
    def finalize(tag, R, L, G, vP, sDst):
        o = []
        o.append(f"v_pk_fma_f32 {vr(T,2)}, {vr(R,2)}, 0, {vr(L,2)} op_sel_hi:[1,0,0]")
        o += [f"v_pk_fma_f32 {vr(T,2)}, {vr(R+r,2)}, 0, {vr(T,2)} op_sel_hi:[1,0,1]" for r in (2, 4, 6)]
        o.append(f"v_med3_f32 v{T+2}, v{T}, v{vLO}, s{sHI}")
        o.append(f"v_fma_f32 v{T}, v{T+1}, 0, v{T}")
        o.append(f"v_cmp_neq_f32 vcc, v{T}, v{T+2}")
        def br():
            a(f"s_cbranch_vccnz L_slow{tag}"); a.label(f"L_fin{tag}")
        o.append(br)
        o.append(f"v_rcp_f32 v{L}, v{L}\ns_nop 0")
        o.append(f"v_mul_f32 v{L}, v{L}, v{G}")
        o += [f"v_pk_mul_f32 {vr(R+r,2)}, {vr(R+r,2)}, {vr(L,2)} op_sel_hi:[1,0]" for r in (0, 2, 4, 6)]
        o += [f"v_cvt_pk_bf16_f32 v{R+r}, v{R+2*r}, v{R+2*r+1}" for r in range(4)]
        o += [f"v_and_b32 v{R+2}, v{vP}, v{R+2}", f"v_and_b32 v{R+3}, v{vP}, v{R+3}"]
        o.append(f"buffer_store_dwordx4 {vr(R,4)}, v{vL16}, {sr(SWS,4)}, s{sDst} offen sc1")
        return o
    def pkadd(D, A_, B_, n=8): return [f"v_pk_add_f32 {vr(D+r,2)}, {vr(A_+r,2)}, {vr(B_+r,2)}" for r in range(0, n, 2)]
    def dmaW(n, base, SR):
        return f"s_add_u32 m0, s{sWM0}, {base + n*8192}\ns_mov_b32 s{t1}, {n*64*896}\nbuffer_load_dwordx4 v{vDW}, {sr(SR,4)}, s{t1} offen lds"
    def V(x, tag):
        def f():
            a(x); vm.issue(tag)
        return f
    def Lg(x, tag):
        def f():
            a(x); lg.issue(tag)
        return f
    def trio(d, tag): return [d[0], V(d[1], tag), V(d[2], tag)]
    vBW, vBR, vBL, vBX, vFL = 123, 124, 125, 126, 127
    OFA = 208
    sOA2 = u1
    idx = 0
    P = APOS
    sched = {(s, q): [] for s in range(16) for q in range(2)}
    late = {(s, q): [] for s in range(16) for q in range(2)}
    for s in range(13): sched[s, 0] += trio(dmaB(s + 3), f"B{s+3}")
    for i in range(3): sched[i, 1] += trio(dmaA(i), "A")
    OA = O["A"]
    sched[P+2, 0] += [V(f"s_mov_b64 exec, s[{sW0}:{sW0+1}]\nbuffer_store_dwordx2 {vr(vNON,2)}, v{vZ}, {sr(SWS,4)}, s{sFA} offen sc1\ns_mov_b64 exec, -1", "f2")]
    def chk():
        vm.wait("fl")
        a(f"v_cmp_ne_u64 vcc, s[{sNON}:{sNON+1}], {vr(T+2,2)}\ns_cbranch_vccnz L_pflag_spin")
        a.label("L_pflag_ok")
    sched[11, 0] = [f"v_and_b32 v{vFL}, 15, v0", f"v_lshlrev_b32 v{vFL}, 7, v{vFL}",
                    V(f"buffer_load_dwordx2 {vr(T+2,2)}, v{vFL}, {sr(SWS,4)}, s{sFO} offen sc1", "fl")] + sched[11, 0]
    sched[13, 0] += [chk]
    late[P, 0] += [Lg(f"ds_write_b128 v{vAW}, {vr(OA+8,4)}", "wa")]
    sched[P, 1] += [f"v_cndmask_b32 v{T}, v{OA+12}, v{OA+4}, s[{sQM}:{sQM+1}]", Lg(f"ds_write_b128 v{vAW}, {vr(OA+12,4)} offset:1024", "wa"),
                    Lg(f"ds_write_b32 v{vALW}, v{T}", "wa")]
    sched[P+1, 0] += [Lg(f"ds_read_b128 {vr(RA+4*k,4)}, v{vAR} offset:{k*1024}", "ra") for k in range(2)] + [Lg(f"ds_read2st64_b32 {vr(LA,2)}, v{vAL} offset1:1", "ra")]
    f = finalize("A", RA, LA, vGA, vPA, sOA)
    f[8] = f"v_rcp_f32 v{LA}, v{LA}"
    if PK2:
        sched[P+1, 1] += [lambda: lg.wait("ra")] + pkadd(RA, RA, OA) + [f"v_add_f32 v{LA}, v{LA}, v{LA+1}"] + f[:9]
        sched[P+2, 0] += f[9:-1] + [V(f[-1], "oa")]
    else:
        chkf = [f"v_fma_f32 v{T}, v{RA}, 0, v{LA}", f"v_fma_f32 v{T+1}, v{RA+1}, 0, v{LA}"] + [f"v_fma_f32 v{T+(r&1)}, v{RA+r}, 0, v{T+(r&1)}" for r in range(2, 8)]
        sched[P+1, 1] += [lambda: lg.wait("ra")] + [f"v_add_f32 v{RA+r}, v{RA+r}, v{OA+r}" for r in range(8)] + [f"v_add_f32 v{LA}, v{LA}, v{LA+1}"] + chkf + f[4:9]
        sched[P+2, 0] += [f[9]] + [f"v_mul_f32 v{RA+r}, v{RA+r}, v{LA}" for r in range(8)] + f[14:-1] + [V(f[-1], "oa")]
    pfw = [f"s_lshr_b32 s{t0}, s2, 3\ns_lshl_b32 s{t0}, s{t0}, 2\ns_add_u32 s{t0}, s{t0}, s{sKQ}\ns_mul_i32 s{t0}, s{t0}, {49*64}",
           f"v_min_u32 v{T}, 24, v0", f"v_lshlrev_b32 v{T}, 7, v{T}"]
    late[P-1, 0] += pfw
    wo = [V(dmaW(k, L_WOA, S1), "woa") for k in range(7)] + [V(dmaW(k, L_WOB, S2), "wob") for k in range(3, 7)]
    for (s_, q_), n in [((7, 1), 1), ((8, 1), 2), ((9, 1), 2), ((10, 1), 2), ((11, 1), 2), ((12, 1), 2)]:
        sched[s_, q_] += wo[:n]; wo = wo[n:]
    assert not wo
    ol = [V(f"buffer_load_dwordx4 {vr(OFA+4*kk,4)}, v{vL16}, {sr(SWS,4)}, s{sOO if kk < 4 else sOA2} offen offset:{(kk&3)*1024} sc1", "ofa") for kk in range(8)]
    sched[13, 0] += ol[0:2]; sched[13, 1] += ol[2:4] + [f"s_add_u32 s{sOA2}, s{sOO}, 4096"]; sched[14, 0] += ol[4:6]; sched[14, 1] += ol[6:8]
    sched[15, 0] += [f"s_mul_i32 s{t0}, s{sQH}, 24576", f"v_add_u32 v{vBW}, s{t0}, v{vL16}",
                     f"s_add_u32 s{t0}, s{t0}, 1536", f"v_lshl_add_u32 v{vBL}, v{vN}, 4, s{t0}",
                     f"s_and_b32 s{t0}, s{sWM0}, 0x1800\ns_add_u32 s{t0}, s{t0}, {L_WOB + 16384}", f"v_lshl_add_u32 v{vBX}, v0, 2, s{t0}"]
    for s in range(16):
        ex0, ex1 = (sched[s, 0], late[s, 0]), (sched[s, 1], late[s, 1])
        vm.wait(f"B{s+1}")
        if s == P - 1: vm.wait("A")
        if s == P + 2: vm.wait("po")
        if s == 1: lg.wait("QA")
        if s == P + 1: lg.wait("wa")
        if s == 15: vm.wait("woa")
        a("s_barrier")
        st.step(s - 1)
        if s == P: st(9)
        if s == 10: st(10)
        if "fine" in OPT and s in (0, 1): st(2 + s)
        slot(lg, tiles, idx, *ex0); idx += 1
        if s == P - 1:
            assert not ex1[0]
            a(f"s_cmp_lg_u32 s{sQH}, 0")
            a("s_cbranch_scc1 L_A1")
            states = []
            for hf in range(2):
                if hf: a.label("L_A1")
                l2 = lg.clone(a)
                ex = [f"buffer_load_dword v{T+1}, v{T}, {sr([S1, S2][hf],4)}, s{t0} offen"]
                ex += [f"buffer_store_dwordx4 {vr(PO,4)}, v{vL16}, {sr(SWS,4)}, s{so} offen sc1" for so in (sOA, sOB)]
                for i in range(idx, idx + 6 - hf): slot(l2, seqs[hf], i, ex if i == idx else [])
                states.append(list(l2.q))
                if hf == 0: a("s_branch L_B")
            assert states[0] == states[1], states
            a.label("L_B")
            lg.q = states[0]
            for k in ("pf", "po", "po"): vm.issue(k)
            idx += 5
        elif s < 15:
            slot(lg, tiles, idx, *ex1); idx += 1
    assert idx == len(tiles) - 1
    RB, LB = 56, 80
    ACC3 = [16, 32]; W3 = [160, 168, 176, 184]; OFB = 88
    vT3 = [2, 3]; vT3b = [4, 5]; vOUT = 8
    addr3 = [f"v_bfe_u32 v{T}, v0, 2, 2", f"v_lshlrev_b32 v{T}, 7, v{T}", f"v_bfe_u32 v{T+1}, v0, 4, 1", f"v_lshl_add_u32 v{T}, v{T+1}, 5, v{T}",
             f"v_and_b32 v{T+1}, 3, v0", f"v_lshl_add_u32 v{T}, v{T+1}, 3, v{T}", f"v_bfe_u32 v{T+1}, v0, 3, 1", f"v_lshl_add_u32 v{T}, v{T+1}, 6, v{T}",
             f"s_mul_i32 s{t0}, s{sKQ}, 14336", f"s_add_u32 s{t0}, s{t0}, {L_WOA}",
             f"v_add_u32 v{vT3b[0]}, s{t0}, v{T}", f"v_xor_b32 v{vT3b[1]}, 64, v{vT3b[0]}"]
    addr3b = [f"v_lshrrev_b32 v{T+1}, 5, v0"] + [f"v_lshl_add_u32 v{vT3[c]}, v{T+1}, 9, v{vT3b[c]}" for c in range(2)]
    addr3b += [f"v_mul_u32_u24 v{vOUT}, 896, v{vN}", f"v_lshl_add_u32 v{vOUT}, v{T+1}, 4, v{vOUT}"]
    def oa_max():
        a(f"v_max3_u32 v{T+3}, v{OFA}, v{OFA+1}, v{OFA+2}")
        for r in range(3, 31, 2): a(f"v_max3_u32 v{T+3}, v{T+3}, v{OFA+r}, v{OFA+r+1}")
        a(f"v_max_u32 v{T+3}, v{T+3}, v{OFA+31}")
    for kq in range(1, 4):
        a(f"s_cmp_eq_u32 s{sKQ}, {kq}\ns_cbranch_scc1 L_tail{kq}")
    lg0 = lg
    for kq in range(4):
        if kq: a.label(f"L_tail{kq}")
        lg = lg0.clone(a)
        def wr(o):
            sl = kq if kq < o else kq - 1
            return [f"ds_write_b128 v{vBW}, {vr(O['B0']+8*o+4*k,4)} offset:{(o*3+sl)*2048 + k*1024}" for k in range(2)]
        wl = lambda: [f"ds_write_b32 v{vBX}, v{O['B0']+8*kq+4}"]
        ex = [x for o in range(2) if o != kq for x in wr(o)] + (wl() if kq == 1 else [])
        slot(lg, tiles, idx, [], ex)
        a("s_nop 1")
        pv(lg, tiles, len(tiles) - 1, 1)
        if kq == 0: st(11)
        for x in addr3: a(x)
        for x in [x for o in (2, 3) if o != kq for x in wr(o)] + (wl() if kq == 3 else []): a(x)
        for x in addr3b: a(x)
        a("s_waitcnt vmcnt(0)")
        oa_max()
        a("s_waitcnt lgkmcnt(0)")
        a("s_barrier")
        own = O['B0'] + 8*kq
        wlate = [dmaW(n, L_WOB, S2) for n in range(3)]
        for sl in range(3):
            for k in range(2):
                a(f"ds_read_b128 {vr(RB+8*sl+4*k,4)}, v{vBW} offset:{(kq*3+sl)*2048 + k*1024}")
        if kq & 1:
            for x in wlate: a(x)
            a("s_waitcnt lgkmcnt(4)")
            for x in pkadd(RB, RB, own): a(x)
            a("s_waitcnt lgkmcnt(0)")
            for x in pkadd(RB+8, RB+8, RB+16): a(x)
            for r in (4, 0, 2, 6):
                a(f"v_pk_add_f32 {vr(RB+r,2)}, {vr(RB+r,2)}, {vr(RB+8+r,2)}")
                if r == 4: a(f"v_mov_b32 v{LB}, v{RB+4}\nv_mov_b32 v{LB+1}, v{RB+4}")
            a(f"v_permlane32_swap_b32 v{LB+1}, v{LB}")
        else:
            for sl in range(3): a(f"ds_read_b32 v{LB+sl}, v{vBL} offset:{((kq+1)*3+sl)*2048}")
            a(f"v_or_b32 v{vBX}, 128, v{vBX}")
            a(f"ds_read_b32 v{LB+3}, v{vBX}")
            for x in wlate[:2]: a(x)
            a("s_waitcnt lgkmcnt(8)")
            for x in pkadd(RB, RB, own): a(x)
            a("s_waitcnt lgkmcnt(4)")
            for x in pkadd(RB+8, RB+8, RB+16) + pkadd(RB, RB, RB+8): a(x)
            a("s_waitcnt lgkmcnt(0)")
            a(wlate[2])
            a(f"v_add_f32 v{LB}, v{LB}, v{LB+3}\nv_add_f32 v{LB+1}, v{LB+1}, v{LB+2}\nv_add_f32 v{LB}, v{LB}, v{LB+1}")
        if kq < 3: a("s_branch L_tail_join")
    a.label("L_tail_join")
    def reads3(i):
        kk = i & 7; hd, j = kk >> 1, kk & 1
        for ct in range(2):
            for e in range(2):
                a(f"ds_read_b64_tr_b16 {vr(W3[i & 3]+4*ct+2*e,2)}, v{vT3b[ct] if (j == 1 and e == 1) else vT3[ct]} offset:{(28*hd+16*j+8*e)*128}")
    def oload(OF, kk):
        a(f"buffer_load_dwordx4 {vr(OF+4*kk,4)}, v{vL16}, {sr(SWS,4)}, s{sOO if kk < 4 else u0} offen offset:{(kk&3)*1024} sc1")
    def oloads(OF, lo):
        for kk in range(lo, 8): oload(OF, kk)
    for i in range(3): reads3(i)
    for x in finalize("B", RB, LB, vGB, vPB, sOB):
        x() if callable(x) else a(x)
    a(f"s_cmp_eq_u32 s{sCB}, 7")
    a("s_cbranch_scc1 L_fini")
    st(12)
    a(f"s_mov_b32 s{sCNT}, {SPIN_MAX}")
    a.label("L_oa_chk")
    a(f"v_cmp_eq_u32 vcc, -1, v{T+3}\ns_cbranch_vccnz L_oa_retry")
    a.label("L_oa_ok")
    a(f"s_add_u32 s{sOO}, s{sOO}, 32768\ns_add_u32 s{u0}, s{sOO}, 4096\ns_mov_b32 s{sCNT}, {SPIN_MAX}")
    nob = 0
    for i in range(16):
        kk = i & 7
        OF = OFA if i < 8 else OFB
        if i == 8: st(13)
        if i >= 8:
            assert nob == 8
            a.label(f"L_ob{kk}")
            a(f"s_waitcnt vmcnt({7-kk})")
            f = OFB + 4*kk
            a(f"v_max3_u32 v{T}, v{f}, v{f+1}, v{f+2}\nv_max_u32 v{T}, v{T}, v{f+3}\nv_cmp_eq_u32 vcc, -1, v{T}")
            a(f"s_cbranch_vccnz L_retry{kk}")
            a.label(f"L_ob{kk}_go")
        a(f"s_waitcnt lgkmcnt({min(8, 4*(15-i))})")
        for ct in range(2):
            D = vr(ACC3[ct], 16)
            a(f"v_mfma_f32_32x32x16_bf16 {D}, {vr(W3[i&3]+4*ct,4)}, {vr(OF+4*kk,4)}, {'0' if i == 0 else D}")
        if i == 5:
            for r in vT3 + vT3b: a(f"v_add_u32 v{r}, {(L_WOB - L_WOA) & 0xffffffff}, v{r}")
            a(f"s_waitcnt vmcnt({1 + nob})")
            a("s_barrier")
        if i + 3 < 16: reads3(i + 3)
        if OBAT <= i < 8:
            for _ in range(OBN if i < 7 else 8):
                if nob < 8:
                    oload(OFB, nob); nob += 1
    st(14)
    for kq in range(1, 4):
        a(f"s_cmp_eq_u32 s{sKQ}, {kq}\ns_cbranch_scc1 L_fin3_{kq}")
    R = 48
    for kq in range(4):
        if kq: a.label(f"L_fin3_{kq}")
        a("s_nop 9")
        for o in range(4):
            if o == kq: continue
            sl = kq if kq < o else kq - 1
            for k in range(2):
                a(f"ds_write_b128 v{vBW}, {vr(ACC3[0]+8*o+4*k,4)} offset:{(o*3+sl)*2048 + k*1024}")
        a("s_waitcnt lgkmcnt(0)")
        a("s_barrier")
        for sl in range(3):
            for k in range(2):
                a(f"ds_read_b128 {vr(R+8*sl+4*k,4)}, v{vBW} offset:{(kq*3+sl)*2048 + k*1024}")
        a("s_waitcnt lgkmcnt(4)")
        for x in pkadd(R, R, ACC3[0]+8*kq): a(x)
        if kq < 3: a("s_branch L_fin3_join")
    a.label("L_fin3_join")
    a("s_waitcnt lgkmcnt(0)")
    for x in pkadd(R+8, R+8, R+16) + pkadd(R, R, R+8): a(x)
    for r in range(4): a(f"v_cvt_pk_bf16_f32 v{R+8+r}, v{R+2*r}, v{R+2*r+1}")
    a("s_nop 1")
    a(f"v_permlane32_swap_b32 v{R+8}, v{R+10}\nv_permlane32_swap_b32 v{R+9}, v{R+11}")
    a(f"buffer_store_dwordx4 {vr(R+8,4)}, v{vOUT}, {sr(S3,4)}, s{sOUT} offen {OST}")
    a.label("L_fini")
    a("s_waitcnt vmcnt(0)")
    st.dump()
    a.label("L_end")
    a("s_endpgm")
    a.label("L_pflag_spin")
    poll(vFL, f"s{sFO}", None, T + 2)
    a("s_branch L_pflag_ok")
    a.label("L_oa_retry")
    a(f"s_sub_u32 s{sCNT}, s{sCNT}, 1\ns_cbranch_scc1 L_oa_ok")
    a(f"s_add_u32 s{u0}, s{sOO}, 4096")
    oloads(OFA, 0)
    a("s_waitcnt vmcnt(0)")
    oa_max()
    a("s_branch L_oa_chk")
    for kk in range(8):
        a.label(f"L_retry{kk}")
        a(f"s_sub_u32 s{sCNT}, s{sCNT}, 1\ns_cbranch_scc1 L_giveup{kk}")
        a("s_waitcnt vmcnt(0)")
        oloads(OFB, kk)
        a(f"s_branch L_ob{kk}")
        a.label(f"L_giveup{kk}")
        a(f"s_mov_b32 s{sCNT}, 0\ns_branch L_ob{kk}_go")

    def slow(tag, R, L, sOdd, sTile, mat):
        SS, OO, KF, VF, Q, M, DL, NI = 128, 144, 192, 200, 240, 248, 249, 251
        sT, sT1, sKO, sT0 = t0, t1, u0, u1
        SK = SKA if mat == 0 else SWS
        a.label(f"L_slow{tag}")
        if mat == 0:
            for r in range(8): a(f"v_mov_b32 v{Q+r}, v{QA+r}")
            a(f"s_sub_i32 s{sT0}, s{sTile}, 8\ns_max_i32 s{sT0}, s{sT0}, 0\ns_add_u32 s{sT1}, s{sTile}, 1")
        else:
            for r in range(8): a(f"v_mov_b32 v{Q+r}, v{QB[0]+r}")
            a(f"s_bitcmp1_b32 s{sKQ}, 1\ns_cbranch_scc0 L_slowB_q")
            for r in range(8): a(f"v_mov_b32 v{Q+r}, v{QB[1]+r}")
            a.label("L_slowB_q")
            a(f"s_mov_b32 s{sT0}, 0\ns_mov_b32 s{sT1}, 64")
        a(f"v_mov_b32 v{M}, 0xff800000\nv_mov_b32 v{NI}, 0xff800000")
        for r in range(16): a(f"v_mov_b32 v{OO+r}, 0")
        for p in range(2):
            a(f"s_mov_b32 s{sT}, s{sT0}")
            a.label(f"L_slow{tag}_p{p}")
            a(f"s_lshl_b32 s{sKO}, s{sT}, 12")
            if mat == 1: a(f"s_add_u32 s{sKO}, s{sKO}, s{sKVB}")
            for j in range(2):
                a(f"buffer_load_dwordx4 {vr(KF+4*j,4)}, v{vL16}, {sr(SK,4)}, s{sKO} offen offset:{j*1024} sc1")
            if p == 1:
                for j in range(2):
                    a(f"buffer_load_dwordx4 {vr(VF+4*j,4)}, v{vL16}, {sr(SK,4)}, s{sKO} offen offset:{2048+j*1024} sc1")
            if mat == 0:
                a(f"s_sub_u32 s{t2}, s{sTile}, s{sT}\ns_lshl_b32 s{t2}, s{t2}, 5")
                a(f"v_lshrrev_b32 v{DL}, 5, v0\nv_lshlrev_b32 v{DL}, 3, v{DL}\nv_sub_u32 v{DL}, v{vN}, v{DL}")
                a(f"v_add_u32 v{DL}, s{t2}, v{DL}")
            a("s_waitcnt vmcnt(0)")
            a(f"v_mfma_f32_32x32x16_bf16 {vr(SS,16)}, {vr(KF,4)}, {vr(Q,4)}, 0")
            a(f"v_mfma_f32_32x32x16_bf16 {vr(SS,16)}, {vr(KF+4,4)}, {vr(Q+4,4)}, {vr(SS,16)}")
            a("s_nop 15")
            if mat == 0:
                for r in range(16):
                    a(f"v_subrev_u32 v{DL+1}, {16*(r>>3)+(r&7)}, v{DL}")
                    a(f"v_cmp_gt_u32 vcc, 0x100, v{DL+1}")
                    a("s_nop 1")
                    a(f"v_cndmask_b32 v{SS+r}, v{NI}, v{SS+r}, vcc")
            if p == 0:
                for r in range(16): a(f"v_max_f32 v{M}, v{M}, v{SS+r}")
            else:
                for r in range(16): a(f"v_sub_f32 v{SS+r}, v{SS+r}, v{M}")
                for r in range(16): a(f"v_exp_f32 v{SS+r}, v{SS+r}")
                a("s_nop 1")
                for j in range(2):
                    a(f"v_smfmac_f32_32x32x32_bf16 {vr(OO,16)}, {vr(VF+4*j,4)}, {vr(SS+8*j,8)}, v{vIDX}")
            a(f"s_add_u32 s{sT}, s{sT}, 1\ns_cmp_lt_u32 s{sT}, s{sT1}")
            a(f"s_cbranch_scc1 L_slow{tag}_p{p}")
            if p == 0:
                a(f"v_mov_b32 v{DL}, v{M}\ns_nop 1\nv_permlane32_swap_b32 v{M}, v{DL}\ns_nop 1\nv_max_f32 v{M}, v{M}, v{DL}")
        a("s_nop 15")
        a(f"v_mov_b32 v{DL}, v{OO+12}\nv_mov_b32 v{L}, v{OO+12}\ns_nop 1")
        a(f"v_permlane32_swap_b32 v{DL}, v{L}\ns_nop 1")
        a(f"s_bitcmp1_b32 s{sOdd}, 0\ns_cbranch_scc1 L_slow{tag}_odd")
        for r in range(8): a(f"v_mov_b32 v{R+r}, v{OO+r}")
        a(f"s_branch L_fin{tag}")
        a.label(f"L_slow{tag}_odd")
        for r in range(8): a(f"v_mov_b32 v{R+r}, v{OO+8+r}")
        a(f"s_branch L_fin{tag}")
    slow("A", RA, LA, sQH, sTAt, 0)
    slow("B", RB, LB, sKQ, sTBt, 1)
    return K, 256

def main(out):
    a = Asm()
    hdr = open("cdna_kernels/" + NAME + ".s.ref").read().split("; Override launch")[0]
    a.raw(hdr.rstrip())
    a.raw(f"; @launch grid=(256,1,1) block=(512,1,1) lds={LDS}")
    a.raw('.amdgcn_target "amdgcn-amd-amdhsa--gfx950"')
    a.raw(".text")
    K, v = kernel(a)
    a.raw('.section .rodata,"a"')
    a.raw(".p2align 6")
    a.raw(descriptor(K, v))
    open(out, "w").write(a.text())

if __name__ == "__main__":
    pos = [x for x in sys.argv[1:] if not x.startswith("--")]
    main(pos[0] if pos else "f.s")
```

```python
import sys, struct, math
from asmlib import *

NAME = "gated_mix__sliding_block__softmax_full_mha__prompt"
KV_OFF = 0
OF_OFF = 8 << 20
FL1_OFF = 12 << 20
FLO_OFF = FL1_OFF + 32768
WS_SIZE = FLO_OFF + 32768
X_BYTES = 2048 * 896
W_BYTES = 448 * 2688
WO_BYTES = 448 * 896
def f32bits(x): return struct.unpack("<I", struct.pack("<f", x))[0]
QSCALE = f32bits(math.log2(math.e) / math.sqrt(28.0))
LOG2E = f32bits(math.log2(math.e))
SPIN_MAX = 200000

OPT = dict(a.lstrip("-").split("=") if "=" in a else (a.lstrip("-"), "1") for a in sys.argv[1:] if a.startswith("--"))
STAMPS = "stamps" in OPT
RT = "rt" in OPT
ROT = int(OPT.get("rot", 1))
FLAGAT = int(OPT.get("flagat", 28))
OBAT = int(OPT.get("obat", 6))
OBN = int(OPT.get("obn", 4))
OST = OPT.get("ost", "")
SPF = int(OPT.get("spf", 1))
NQA = [int(x) for x in OPT.get("nqa", "1,0,0,0,0,0,2,0").split(",")]
PK2 = int(OPT.get("pk", 1))
QPF = int(OPT.get("qpf", -1))
UP = int(OPT.get("up", 2))
ST_OFF = 32 << 20

R_SLOT = 30720
L_S = [0, 16384, 32768, 49152]
L_QX = 65536
L_WQA, L_WQB = 77824, 106496
L_AREG = 106496
L_MASK, L_G, L_CNT = 155648, 73728, 98304
L_WOA, L_WOB = 106496, 49152
L_SCRA = 65536
LDS = 163840
PFAT = int(OPT.get("pfat", 1))
CPF = int(OPT.get("cpf", 1))
MIX = int(OPT.get("mix", 1))
ADEL = int(OPT.get("adel", 0))
QW = int(OPT.get("qw", 2))
APOS = QW + 5
WQAT = [int(x) for x in OPT.get("wqat", "1,0,0,1,1,2,2,0").split(",")]

pX, pWA, pWOA, pWB, pWOB, pGW, pOUT, pDBG, pWS = 4, 6, 8, 12, 14, 16, 18, 20, 22
SWS, SKA, S1, S2, S3, S4 = 24, 28, 32, 36, 40, 44
sH, sTB, sWV, sQH, sKQ, sG16, sNON, sM0, sOFF, sTBt, sTAt, sOA, sOB, sFA, sCB = 48, 49, 50, 51, 52, 53, 54, 56, 57, 58, 59, 60, 61, 62, 63
t0, t1, t2, t3 = 64, 65, 66, 67
u0, u1 = 10, 11
sCNT = 3
sC0, sKVB = 0, 1
sFO, sOO, sOUT, sWM0 = 4, 5, 6, 7
sA1, sA2, sA3, sQX = 9, 18, 19, 20
sHI, sQM, sW0 = 8, 12, 14

class Stamper:
    def __init__(self, a): self.a = a
    def start(self):
        if STAMPS:
            self.a("s_memrealtime s[100:101]"); self.a("s_memtime s[68:69]")
        if RT:
            for i in range(1, 16): self.a(f"s_mov_b32 s{68+2*i}, 0")
            self.a("s_memrealtime s[68:69]")
    def step(self, s):
        if "steps" in OPT and 1 <= s <= 14: self.a(f"s_mem{'real' if OPT['stamps'] == 'r' else ''}time s[{68+2*s}:{69+2*s}]")
    def __call__(self, i):
        if "steps" in OPT: return
        if STAMPS: self.a(f"s_mem{'real' if OPT['stamps'] == 'r' else ''}time s[{68+2*i}:{69+2*i}]")
        if RT: self.a(f"s_memrealtime s[{68+2*i}:{69+2*i}]")
    def dump(self):
        a = self.a
        if RT and "echo" in OPT:
            i = int(OPT["echo"])
            a("s_waitcnt vmcnt(0)\ns_memrealtime s[98:99]\ns_waitcnt lgkmcnt(0)")
            a(f"s_cmp_lt_u32 s{sWV}, 4\ns_cbranch_scc0 L_end")
            a(f"s_cmp_eq_u32 s{68+2*i}, 0\ns_cbranch_scc1 L_end")
            a(f"s_sub_u32 s64, s{68+2*i}, s68\ns_lshl_b32 s64, s64, 2\ns_min_u32 s64, s64, 100000")
            a.label("L_echo")
            a("s_memrealtime s[66:67]\ns_waitcnt lgkmcnt(0)\ns_sub_u32 s65, s66, s98\ns_cmp_lt_u32 s65, s64\ns_cbranch_scc1 L_echo")
            return
        if not STAMPS: return
        a("s_waitcnt vmcnt(0)")
        a("s_memtime s[98:99]"); a("s_memrealtime s[66:67]")
        a("s_waitcnt lgkmcnt(0)")
        a("s_mov_b64 exec, -1")
        srd(a, S4, pWS, 0x100000, add=ST_OFF)
        a(f"s_lshl_b32 s64, s2, 4\ns_add_u32 s64, s64, s{sWV}\ns_lshl_b32 s64, s64, 7")
        a("v_mov_b32 v1, 0")
        for i in range(16):
            a(f"v_mov_b32 v2, s{68+2*i}")
            a(f"buffer_store_dword v2, v1, {sr(S4,4)}, s64 offen offset:{4*i}")
        a(f"v_mov_b32 v2, s100\nbuffer_store_dword v2, v1, {sr(S4,4)}, s64 offen offset:64")
        a(f"v_mov_b32 v2, s66\nbuffer_store_dword v2, v1, {sr(S4,4)}, s64 offen offset:68")
        a(f"s_getreg_b32 s65, hwreg(HW_REG_XCC_ID)\nv_mov_b32 v2, s65\nbuffer_store_dword v2, v1, {sr(S4,4)}, s64 offen offset:72")

def g16_table():
    v = 0
    for hq in range(4):
        hs = sorted(range(4*hq, 4*hq+4), key=lambda h: 0 if (56*h) % 128 > 64 else 1)
        if MIX:
            sa, sb = hq & 1, 2 + (hq & 1)
            q2, q3 = (0, 1) if hq < 2 else (3, 2)
            gs = [4*sa + q2, 4*sb + q2, 4*sa + q3, 4*sb + q3]
        else:
            gs = [4*hq + q for q in (0, 3, 1, 2)]
        for h, g in zip(hs, gs): v |= g << (4*h)
    return v

def kernel(a):
    K = NAME + "_kernel"
    kernel_begin(a, K)
    st = Stamper(a)
    uid = [0]
    def lab(p):
        uid[0] += 1; return f"{p}_{uid[0]}"
    vL16 = 1
    a("s_cmp_ge_u32 s2, 256")
    a("s_cbranch_scc1 L_end")
    st.start()
    a("s_load_dwordx8 s[4:11], s[0:1], 0")
    a("s_load_dwordx8 s[12:19], s[0:1], 32")
    a("s_load_dwordx4 s[20:23], s[0:1], 64")
    if CPF:
        a(f"s_getpc_b64 s[{SWS}:{SWS+1}]")
        a.label("L_pc")
        a(f"s_lshr_b32 s{t0}, s2, 3\ns_mul_i32 s{t0}, s{t0}, 10\nv_min_u32 v2, 9, v0\nv_add_lshl_u32 v2, v2, s{t0}, 7")
        a(f"v_min_u32 v2, L_code_end-L_pc-4, v2")
        a(f"v_cmp_gt_u32 vcc, 64, v0\ns_cbranch_vccz L_nocpf")
        a(f"global_load_dword v3, v2, s[{SWS}:{SWS+1}]")
        a.label("L_nocpf")
    a("v_lshrrev_b32 v1, 6, v0")
    a("v_and_b32 v0, 63, v0")
    a(f"v_readfirstlane_b32 s{sWV}, v1")
    a(f"v_lshlrev_b32 v{vL16}, 4, v0")
    a(f"s_and_b32 s{t0}, s2, 6\ns_lshl_b32 s{t0}, s{t0}, 1\ns_lshr_b32 s{t1}, s2, 6\ns_add_u32 s{sH}, s{t0}, s{t1}")
    a(f"s_and_b32 s{t0}, s2, 1\ns_lshl_b32 s{t0}, s{t0}, 3\ns_bfe_u32 s{t2}, s2, 0x30003\ns_add_u32 s{sTB}, s{t0}, s{t2}")
    a(f"s_lshl_b32 s{t1}, s{t1}, 1\ns_add_u32 s{sCB}, s{t1}, s{t2}")
    a(f"s_cmp_ge_u32 s{sCB}, 7\ns_cselect_b32 s{t1}, 7, 0\ns_sub_u32 s{sCB}, s{sCB}, s{t1}")
    if not ROT: a(f"s_mov_b32 s{sCB}, 0")
    if ROT == 2:
        a(f"s_lshr_b32 s{t1}, s2, 6\ns_add_u32 s{t1}, s{t1}, s{t2}\ns_and_b32 s{t1}, s{t1}, 1\ns_mul_i32 s{sCB}, s{t1}, 3")
    if ROT == 3:
        a(f"s_lshr_b32 s{t1}, s2, 6\ns_add_u32 s{t1}, s{t1}, s{t2}\ns_and_b32 s{t1}, s{t1}, 3\ns_lshl_b32 s{sCB}, s{t1}, 1")
    if ROT == 4:
        a(f"s_lshr_b32 s{t1}, s2, 6\ns_add_u32 s{t1}, s{t1}, s{t2}\ns_and_b32 s{t1}, s{t1}, 1\ns_lshl_b32 s{sCB}, s{t1}, 1")
    if ROT == 5:
        a(f"s_lshr_b32 s{t1}, s2, 6\ns_add_u32 s{t1}, s{t1}, s{t2}\ns_and_b32 s{sCB}, s{t1}, 3")
    tb = g16_table()
    a(f"s_mov_b32 s{t2}, 0x{tb & 0xffffffff:08x}\ns_mov_b32 s{t3}, 0x{tb >> 32:08x}")
    a(f"s_lshl_b32 s{t0}, s{sH}, 2\ns_lshr_b64 s[{t2}:{t3}], s[{t2}:{t3}], s{t0}\ns_and_b32 s{sG16}, s{t2}, 15")
    a(f"s_lshr_b32 s{sQH}, s{sWV}, 2")
    a(f"s_and_b32 s{sKQ}, s{sWV}, 3")

    vDB, vBA0, vDA, vAA, vIDX, vN, vGA, vGB = 2, 3, 4, 5, 6, 7, 8, 9
    T = 10
    vDW = 254; vZ = 255
    QB = [128, 136]
    FR = {"K0": 144, "K1": 148, "V0": 152, "V1": 156}
    S = [160, 176]
    O = {"B0": 192, "B1": 208, "A": 224}
    WB = [240, 244, 248]
    vNON = 252
    vPA = 15
    MASK, QA, RED = 16, 32, 40
    vPB, vLO, vLA = 56, 57, 58
    PO = 64
    vBW, vBL, vBX, vFL = 68, 69, 70, 71

    def scalar_setup():
        srd(a, SWS, pWS, WS_SIZE)
        a(f"s_lshl_b32 s{t0}, s{sH}, 18")
        srd(a, SKA, pWS, 262144, add=f"s{t0}")
        a(f"s_add_u32 s{sKVB}, s{t0}, {16 << 18}")
        a(f"s_lshl_b32 s{sM0}, s{sWV}, 11")
        a(f"s_lshl_b32 s{t1}, s{sTB}, 2")
        a(f"s_lshl_b32 s{t0}, s{sQH}, 1\ns_add_u32 s{t0}, s{t0}, s{t1}\ns_lshr_b32 s{t2}, s{sKQ}, 1")
        a(f"s_add_u32 s{sTBt}, s{t0}, s{t2}")
        a(f"s_add_u32 s{sTAt}, s{t1}, s{sKQ}")
        a(f"s_lshl_b32 s{t0}, s{sTAt}, 5\ns_add_u32 s{t0}, s{t0}, s{sH}\ns_lshl_b32 s{t0}, s{t0}, 1\ns_add_u32 s{t0}, s{t0}, s{sQH}")
        a(f"s_lshl_b32 s{t0}, s{t0}, 10\ns_add_u32 s{sOA}, s{t0}, {OF_OFF}")
        a(f"s_lshl_b32 s{t0}, s{sTBt}, 5\ns_add_u32 s{t0}, s{t0}, s{sH}\ns_lshl_b32 s{t0}, s{t0}, 1\ns_and_b32 s{t1}, s{sKQ}, 1\ns_add_u32 s{t0}, s{t0}, s{t1}")
        a(f"s_lshl_b32 s{t0}, s{t0}, 10\ns_add_u32 s{sOB}, s{t0}, {OF_OFF + 32768}")
        a(f"s_lshl_b32 s{t0}, s{sTB}, 4\ns_add_u32 s{t0}, s{t0}, s{sH}\ns_lshl_b32 s{t0}, s{t0}, 7\ns_add_u32 s{sFA}, s{t0}, {FLO_OFF}")
        a(f"s_mov_b32 s{sOFF}, 8192")

    def late_setup():
        srd(a, S1, pWOA, WO_BYTES); srd(a, S2, pWOB, WO_BYTES); srd(a, S3, pOUT, X_BYTES)
        a(f"s_and_b32 s{t0}, s2, 7\ns_lshl_b32 s{t0}, s{t0}, 2\ns_bfe_u32 s{t1}, s2, 0x20003\ns_add_u32 s{t0}, s{t0}, s{t1}\ns_lshr_b32 s{sCB}, s2, 5")
        a(f"s_lshl_b32 s{t0}, s{t0}, 1\ns_add_u32 s{t2}, s{t0}, s{sQH}")
        a(f"s_lshr_b32 s{t0}, s{t2}, 2\ns_lshl_b32 s{t0}, s{t0}, 11\ns_add_u32 s{sFO}, s{t0}, {FLO_OFF}")
        a(f"s_lshl_b32 s{t0}, s{t2}, 16\ns_lshl_b32 s{t1}, s{sKQ}, 13\ns_add_u32 s{t0}, s{t0}, s{t1}\ns_add_u32 s{sOO}, s{t0}, {OF_OFF}")
        a(f"s_mul_i32 s{t0}, s{t2}, {32*896}\ns_lshl_b32 s{t1}, s{sCB}, 7\ns_add_u32 s{t0}, s{t0}, s{t1}\ns_lshl_b32 s{t1}, s{sKQ}, 5\ns_add_u32 s{sOUT}, s{t0}, s{t1}")
        a(f"s_lshl_b32 s{sWM0}, s{sWV}, 10")
        a(f"s_mov_b32 s{sHI}, 0x{f32bits(2.0**60):08x}\ns_and_b32 s{sA1}, s{sKQ}, 1\ns_sub_u32 s{sA1}, s{sA1}, 1")
        a(f"s_cmp_eq_u32 s{sWV}, 0\ns_cselect_b64 s[{sW0}:{sW0+1}], 1, 0")
        a(f"v_lshrrev_b32 v{T}, 3, v0\ns_lshl_b32 s{t0}, s{sWV}, 3\nv_add_u32 v{T}, s{t0}, v{T}\nv_mul_u32_u24 v{T}, 896, v{T}")
        a(f"v_bfe_u32 v{T+1}, v0, 4, 1\nv_lshlrev_b32 v{T+1}, 2, v{T+1}\nv_and_b32 v{T+2}, 7, v0\nv_xor_b32 v{T+1}, v{T+1}, v{T+2}")
        a(f"v_lshl_add_u32 v{T}, v{T+1}, 4, v{T}\ns_min_u32 s{t0}, s{sCB}, 6\ns_lshl_b32 s{t0}, s{t0}, 7\nv_add_u32 v{vDW}, s{t0}, v{T}")

    def phase2_setup():
        a(f"s_lshr_b32 s{t0}, s{sWV}, 1\ns_lshl_b32 s{t0}, s{t0}, 16\ns_and_b32 s{t1}, s{sWV}, 1\ns_lshl_b32 s{t1}, s{t1}, 11\ns_add_u32 s{t0}, s{t0}, s{t1}\ns_add_u32 s{t0}, s{t0}, s{sKVB}")
        a(f"v_add_u32 v{vDB}, s{t0}, v{vL16}")
        a(f"s_lshl_b32 s{t0}, s{sKQ}, 12\ns_add_u32 s{t0}, s{t0}, {L_S[0]}")
        a(f"v_add_u32 v{vBA0}, s{t0}, v{vL16}")
        a(f"s_lshl_b32 s{t0}, s{sTB}, 14\ns_sub_u32 s{t0}, s{t0}, 32768\ns_add_u32 s{t0}, s{t0}, s{sM0}")
        a(f"v_add_u32 v{vDA}, s{t0}, v{vL16}")
        a(f"v_add_u32 v{vAA}, {L_AREG}, v{vBA0}")
        a(f"v_lshrrev_b32 v{vPA}, 5, v0\nv_add_u32 v{vPA}, -1, v{vPA}")
        a(f"v_mov_b32 v{vIDX}, 0xdddddddd")
        a(f"v_and_b32 v{vN}, 31, v0")

    low_setup = [f"v_mov_b32 v{PO+r}, -1" for r in range(4)] + [f"v_or_b32 v{vPB}, s{sA1}, v{vPA}", f"v_mov_b32 v{vLO}, 0x{f32bits(2.0**-40):08x}"]

    def mask_setup():
        L = lab("L_nomask")
        a(f"s_cmp_lg_u32 s{sKQ}, 3\ns_cbranch_scc1 {L}")
        a(f"v_lshrrev_b32 v{T}, 5, v0\nv_lshlrev_b32 v{T}, 3, v{T}\nv_sub_u32 v{T}, v{vN}, v{T}")
        a(f"v_mov_b32 v{T+1}, 0xff800000")
        for r in range(0, 16, 2):
            a(f"v_cmp_le_i32 s[{t2}:{t3}], {16*(r>>3) + (r&7)}, v{T}")
            a(f"v_cmp_le_i32 s[{u0}:{u1}], {16*(r>>3) + (r&7) + 1}, v{T}")
            a("s_nop 0")
            a(f"v_cndmask_b32 v{MASK+r}, v{T+1}, 0, s[{t2}:{t3}]")
            a(f"v_cndmask_b32 v{MASK+r+1}, v{T+1}, 0, s[{u0}:{u1}]")
        for r in range(16): a(f"v_xor_b32 v{RED+r}, v{T+1}, v{MASK+r}")
        a(f"v_add_u32 v{T}, {L_MASK}, v{vL16}")
        for k in range(4):
            a(f"ds_write_b128 v{T}, {vr(RED+4*k,4)} offset:{k*1024}")
            a(f"ds_write_b128 v{T}, {vr(MASK+4*k,4)} offset:{4096 + k*1024}")
        a("s_waitcnt lgkmcnt(0)")
        a.label(L)

    def pre_phase2():
        a(f"s_lshl_b32 s{t0}, s{sQH}, 12\ns_add_u32 s{t0}, s{t0}, {L_QX}\nv_add_u32 v{T}, s{t0}, v{vL16}")
        for k in range(4): a(f"ds_read_b128 {vr(QB[0]+4*k,4)}, v{T} offset:{k*1024}")
        a(f"s_lshl_b32 s{t0}, s{sKQ}, 8\ns_add_u32 s{t0}, s{t0}, {L_G}\nv_lshl_add_u32 v{T+1}, v{vN}, 3, s{t0}")
        a(f"ds_read_b32 v{vGA}, v{T+1}")
        a(f"s_and_b32 s{t0}, s{sTBt}, 3\ns_lshl_b32 s{t0}, s{t0}, 8\ns_add_u32 s{t0}, s{t0}, {L_G + 4}\nv_lshl_add_u32 v{T+1}, v{vN}, 3, s{t0}")
        a(f"ds_read_b32 v{vGB}, v{T+1}")
        for r in range(4): a(f"v_mov_b32 v{S[0]+r}, 0")
        a("s_nop 1")
        for k in ("B0", "B1", "A"): a(f"v_mfma_f32_32x32x16_bf16 {vr(O[k],16)}, {vr(S[0],4)}, {vr(S[0],4)}, 0")
        a("s_waitcnt lgkmcnt(0)")

    def get_nonce(issued):
        L, D = lab("L_non"), lab("L_non_done")
        a(f"s_mov_b32 s{sCNT}, {SPIN_MAX}")
        if issued: a(f"s_branch {L}_chk")
        a.label(L)
        a(f"buffer_load_dwordx2 {vr(vNON,2)}, v{vZ}, {sr(S4,4)}, 0 offen sc1")
        a.label(L + "_chk")
        a("s_waitcnt vmcnt(0)")
        a(f"v_readfirstlane_b32 s{sNON}, v{vNON}\nv_readfirstlane_b32 s{sNON+1}, v{vNON+1}")
        a(f"s_sub_u32 s{sCNT}, s{sCNT}, 1\ns_cbranch_scc1 {D}")
        a(f"s_cmp_eq_u32 s{sNON}, 0\ns_cbranch_scc1 {L}")
        a.label(D)

    def poll(vaddr, soff, need, tmp):
        L, D = lab("L_poll"), lab("L_poll_done")
        a(f"s_mov_b32 s{sCNT}, {SPIN_MAX}")
        a.label(L)
        a(f"buffer_load_dwordx2 {vr(tmp,2)}, v{vaddr}, {sr(SWS,4)}, {soff} offen sc1")
        a("s_waitcnt vmcnt(0)")
        a(f"v_cmp_eq_u64 vcc, s[{sNON}:{sNON+1}], {vr(tmp,2)}")
        if need is not None: a(f"s_orn2_b64 vcc, vcc, s[{need}:{need+1}]")
        a(f"s_cmp_eq_u64 vcc, -1\ns_cbranch_scc1 {D}")
        a(f"s_sleep {OPT.get('sleep', 4)}")
        a(f"s_sub_u32 s{sCNT}, s{sCNT}, 1\ns_cbranch_scc0 {L}")
        a.label(D)

    def poll2(vaddr, soff, tmp):
        L, D = lab("L_poll"), lab("L_poll_done")
        ld = lambda k: a(f"buffer_load_dwordx2 {vr(tmp+2*k,2)}, v{vaddr}, {sr(SWS,4)}, {soff} offen sc1")
        a(f"s_mov_b32 s{sCNT}, {SPIN_MAX}")
        ld(0)
        a(f"s_sleep {OPT.get('p2sleep', 4)}")
        a.label(L)
        for k in range(2):
            ld(1 - k)
            a("s_waitcnt vmcnt(1)")
            a(f"v_cmp_ne_u64 vcc, s[{sNON}:{sNON+1}], {vr(tmp+2*k,2)}\ns_cbranch_vccz {D}")
        a(f"s_sub_u32 s{sCNT}, s{sCNT}, 1\ns_cbranch_scc0 {L}")
        a.label(D)

    def flag_store(soff):
        return f"s_mov_b64 exec, 1\nbuffer_store_dwordx2 {vr(vNON,2)}, v{vZ}, {sr(SWS,4)}, {soff} offen sc1\ns_mov_b64 exec, -1"

    a(f"v_mov_b32 v{vZ}, 0")
    a(f"s_cmp_lt_u32 s{sWV}, 4")
    a("s_cbranch_scc1 L_compute")
    XA, WA, WQA, GWR = 72, 76, 80, 82
    sLX, sLW, sOX, sOW = u0, u1, sOA, sOB
    a("v_lshrrev_b32 v2, 3, v0")
    a(f"s_lshl_b32 s{t0}, s{sTB}, 7\ns_lshl_b32 s{t1}, s{sKQ}, 5\ns_add_u32 s{t0}, s{t0}, s{t1}")
    a(f"v_add_u32 v2, s{t0}, v2")
    a("v_mul_u32_u24 v2, 896, v2")
    a("v_lshrrev_b32 v3, 4, v0\nv_and_b32 v4, 7, v0\nv_xor_b32 v3, v3, v4\nv_lshlrev_b32 v3, 4, v3\nv_xor_b32 v4, 64, v3")
    a(f"v_add_u32 v{XA}, v2, v3\nv_add_u32 v{XA+1}, v2, v4\nv_add_u32 v{XA+1}, 7168, v{XA+1}")
    a(f"v_add_u32 v{XA+2}, 14336, v{XA}\nv_add_u32 v{XA+3}, 14336, v{XA+1}")
    a(f"s_and_b32 s{t0}, s{sG16}, 7\ns_mul_i32 s{t0}, s{t0}, 224\ns_add_u32 s{t0}, s{t0}, 896")
    a(f"s_mul_i32 s{t1}, s{sKQ}, {16*2688}\ns_add_u32 s{t0}, s{t0}, s{t1}")
    for n in range(4):
        if n: a(f"v_add_u32 v2, {64*n}, v0")
        f_ = "v2" if n else "v0"
        a(f"v_mul_u32_u24 v3, 4682, {f_}\nv_lshrrev_b32 v3, 16, v3")
        a(f"v_mul_u32_u24 v4, 14, v3\nv_sub_u32 v4, {f_}, v4")
        a("v_and_b32 v5, 1, v3\nv_lshlrev_b32 v5, 2, v5\nv_bfe_u32 v6, v3, 1, 2\nv_and_b32 v3, 0x78, v3\nv_or3_b32 v3, v3, v5, v6")
        a("v_mul_u32_u24 v3, 2688, v3\nv_lshl_add_u32 v3, v4, 4, v3")
        a(f"v_add_u32 v{WA+n}, s{t0}, v3")
    a(f"s_lshl_b32 s{sOX}, s{sCB}, 7\ns_mul_i32 s{sOW}, s{sCB}, {64*2688}")
    a("s_waitcnt lgkmcnt(0)")
    a(f"s_lshl_b32 s{sLX}, s{sKQ}, 12")
    a(f"s_mul_i32 s{sLW}, s{sKQ}, 3584")
    srd(a, S1, pX, X_BYTES)
    a(f"s_cmp_lt_u32 s{sG16}, 8")
    a(f"s_cselect_b32 s{S2}, s{pWA}, s{pWB}\ns_cselect_b32 s{S2+1}, s{pWA+1}, s{pWB+1}")
    a(f"s_mov_b32 s{S2+2}, {W_BYTES}\ns_mov_b32 s{S2+3}, 0x00020000")
    vm = Ctr(a, "vmcnt", 63)
    sOQ, sLQ = sFA, sTBt
    nq = [0]
    def issue(c):
        slot = (c % 3) * R_SLOT
        for n in range(4):
            a(f"s_add_u32 m0, s{sLX}, {slot + n*1024}\ns_nop 0")
            a(f"buffer_load_dwordx4 v{XA+n}, {sr(S1,4)}, s{sOX} offen lds"); vm.issue(c)
            a(f"s_add_u32 m0, s{sLW}, {slot + 16384 + n*1024}")
            a("s_mov_b32 exec_hi, 0" if n == 3 else "s_nop 0")
            a(f"buffer_load_dwordx4 v{WA+n}, {sr(S2,4)}, s{sOW} offen lds"); vm.issue(c)
        a("s_mov_b32 exec_hi, -1")
        a(f"s_add_u32 s{sOX}, s{sOX}, 128\ns_add_u32 s{sOW}, s{sOW}, {64*2688}\ns_cmp_eq_u32 s{sOX}, 896")
        a(f"s_cselect_b32 s{sOX}, 0, s{sOX}\ns_cselect_b32 s{sOW}, 0, s{sOW}")
    def wq(k):
        for _ in range(k):
            a(f"s_add_u32 m0, s{sLQ}, {nq[0]*1024}\ns_nop 0")
            a(f"buffer_load_dwordx4 v{WQA}, {sr(S3,4)}, s{sOQ} offen lds"); vm.issue("q")
            a(f"s_add_u32 s{sOQ}, s{sOQ}, 43008\ns_cmp_eq_u32 s{sOQ}, {28*43008}\ns_cselect_b32 s{sOQ}, 0, s{sOQ}")
            nq[0] += 1
    st(1)
    for c in range(UP): issue(c)
    srd(a, S3, pWB, W_BYTES)
    a("v_lshrrev_b32 v2, 2, v0\nv_mul_u32_u24 v2, 2688, v2\nv_and_b32 v3, 3, v0\nv_lshl_add_u32 v2, v3, 4, v2")
    a(f"s_mul_i32 s{t0}, s{sH}, 56\nv_add_u32 v{WQA}, s{t0}, v2")
    a(f"s_mul_i32 s{sLQ}, s{sKQ}, 7168\ns_add_u32 s{sLQ}, s{sLQ}, {L_WQB}")
    a(f"s_mul_i32 s{t0}, s{sKQ}, 7\ns_lshl_b32 s{t1}, s{sCB}, 2\ns_add_u32 s{t0}, s{t0}, s{t1}")
    a(f"s_cmp_ge_u32 s{t0}, 28\ns_cselect_b32 s{t1}, 28, 0\ns_sub_u32 s{t0}, s{t0}, s{t1}\ns_mul_i32 s{sOQ}, s{t0}, 43008")
    wq(WQAT[0])
    a(f"v_mov_b32 v2, {L_CNT}\nds_write_b32 v2, v{vZ}")
    srd(a, S4, pGW, 896)
    a(f"s_mul_i32 s{t0}, s{sKQ}, 112\ns_lshl_b32 s{t1}, s{sCB}, 6\ns_add_u32 s{t1}, s{t1}, s{t0}")
    a(f"v_min_u32 v2, 55, v0\nv_add_u32 v3, s{t1}, v2")
    a(f"v_add_u32 v2, s{t0}, v2\nv_lshlrev_b32 v2, 6, v2\nv_add_u32 v{GWR+4}, {L_WQB + 56}, v2")
    for i in range(2):
        a(f"v_add_u32 v4, {56*i}, v3\nv_subrev_u32 v5, 448, v4\nv_min_u32 v4, v4, v5\nv_lshlrev_b32 v4, 1, v4")
        a(f"buffer_load_ushort v{GWR+i}, v4, {sr(S4,4)}, 0 offen"); vm.issue("gw")
    srd(a, S4, pDBG, 256)
    a("s_waitcnt lgkmcnt(0)")
    for c in range(7):
        vm.wait(c)
        if c in (0, 3, 6): st(2 + c // 3)
        a("s_barrier")
        nx = c + 2 if UP == 2 else (c + 2 if c >= 1 else None)
        if nx is not None and nx <= 6: issue(nx)
        wq(WQAT[c + 1])
        if c == 5: a(f"buffer_load_dwordx2 {vr(vNON,2)}, v{vZ}, {sr(S4,4)}, 0 offen sc1"); vm.issue("n")
    assert nq[0] == 7
    get_nonce(True)
    for i in range(2): a(f"ds_write_b16 v{GWR+4}, v{GWR+i} offset:{56*64*i}")
    a("s_waitcnt lgkmcnt(0)")
    st(5)
    a("s_barrier")
    scalar_setup()
    phase2_setup()
    late_setup()
    mask_setup()
    for x in low_setup: a(x)
    a(f"v_and_b32 v{T+2}, 15, v0")
    a(f"s_lshr_b32 s{t0}, s{sH}, 2\ns_lshl_b32 s{t0}, s{t0}, 11\ns_add_u32 s{t0}, s{t0}, {FL1_OFF}")
    a(f"s_cmp_lt_u32 s{sKQ}, 2\ns_cbranch_scc1 L_pollB_setup")
    a(f"s_sub_i32 s{u0}, s{sTB}, 2\ns_max_i32 s{u0}, s{u0}, 0")
    a(f"v_max_u32 v{T+2}, s{u0}, v{T+2}\nv_min_u32 v{T+2}, s{sTB}, v{T+2}")
    a(f"v_bfe_u32 v{T}, v0, 4, 1\nv_lshl_add_u32 v{T+2}, v{T}, 6, v{T+2}")
    a(f"s_sub_u32 s{t0}, s{t0}, {8*2048 + 2*8192}")
    a.label("L_pollB_setup")
    a(f"v_lshlrev_b32 v{T}, 7, v{T+2}")
    a(f"s_lshl_b32 s{u1}, s{sKQ}, 11\ns_lshl_b32 s{t1}, s{sKQ}, 13\ns_add_u32 s{t0}, s{t0}, s{t1}\ns_add_u32 s{t0}, s{t0}, {8*2048}")
    a(f"s_add_u32 s{t1}, s{u1}, s{sKVB}\nv_add_u32 v{T+1}, s{t1}, v{vL16}")
    a("s_barrier")
    st(7)
    a(f"s_cmp_eq_u32 s{sKQ}, 3\ns_cbranch_scc1 L_polled")
    poll(T, f"s{t0}", None, S[1])
    st(6)
    a(f"s_cmp_eq_u32 s{sKQ}, 2\ns_cbranch_scc1 L_polled")
    for s in range(3):
        a(f"s_mov_b32 s{u0}, {s*4096}")
        for kq in range(4):
            a(f"s_add_u32 m0, s{u1}, {L_S[s] + kq*4096}\ns_nop 0")
            a(f"buffer_load_dwordx4 v{T+1}, {sr(SWS,4)}, s{u0} offen sc1 lds")
            a(f"buffer_load_dwordx4 v{T+1}, {sr(SWS,4)}, s{u0} offen offset:1024 sc1 lds")
            a(f"s_add_u32 s{u0}, s{u0}, 65536")
    a.label("L_polled")
    a("s_barrier")
    pre_phase2()
    a("s_waitcnt vmcnt(16)")
    a("s_branch L_pathL")

    a.label("L_compute")
    vST, vVC, XAD, WAD, WQD, GWD = 240, 241, 242, 246, 14, 15
    XR = 16; ACC = [128 + 16*u for u in range(4)]
    WF = [[192 + 16*b + 4*u for u in range(4)] for b in range(2)]
    PK = 192; DAC = 248; XAO = 216; vWQ = 247
    WF = [[192, 196], [204, 208]]; XO = [200, 212]
    a("v_and_b32 v9, 31, v0\nv_lshrrev_b32 v10, 5, v0\nv_bfe_u32 v11, v0, 1, 3")
    a(f"s_lshl_b32 s{t0}, s{sKQ}, 12")
    a(f"v_lshlrev_b32 v12, 7, v9\nv_add_u32 v12, s{t0}, v12")
    for ks in range(4):
        a(f"v_or_b32 v13, {2*ks}, v10\nv_xor_b32 v13, v13, v11\nv_lshl_add_u32 v{XAD+ks}, v13, 4, v12")
    a("v_bfe_u32 v12, v0, 4, 1\nv_lshlrev_b32 v12, 5, v12\nv_and_b32 v13, 3, v0\nv_lshl_add_u32 v12, v13, 3, v12")
    a("v_bfe_u32 v13, v0, 2, 2")
    a("v_lshl_add_u32 v11, v10, 2, v13")
    a(f"s_and_b32 s{t0}, s{sKQ}, 1\ns_mul_i32 s{t0}, s{t0}, 112")
    a(f"v_mul_u32_u24 v11, 448, v11\nv_add3_u32 v{WAD}, v11, v12, s{t0}")
    for ks in range(4): a(f"v_xor_b32 v{XAO+ks}, 4096, v{XAD+ks}")
    a("v_lshl_add_u32 v11, v10, 3, v13")
    a(f"v_lshl_add_u32 v11, v11, 6, v12\nv_add_u32 v{WQD}, {L_WQA}, v11")
    a(f"v_mov_b32 v{vVC}, 0")
    a("s_mov_b32 exec_lo, 0x10000000\ns_mov_b32 exec_hi, 0x10000000")
    a(f"v_mov_b32 v{vVC}, 0x3f803f80")
    a("s_mov_b64 exec, -1")
    a("v_and_b32 v11, 0x33, v0\nv_bfe_u32 v12, v0, 2, 1\nv_lshl_or_b32 v11, v12, 3, v11\nv_bfe_u32 v12, v0, 3, 1\nv_lshl_or_b32 v11, v12, 2, v11")
    a(f"v_lshlrev_b32 v{vST}, 4, v11")
    a("v_lshrrev_b32 v11, 2, v0\nv_mul_u32_u24 v11, 2688, v11\nv_and_b32 v12, 3, v0\nv_lshl_add_u32 v11, v12, 4, v11")
    a(f"s_mul_i32 s{t0}, s{sH}, 56\nv_add_u32 v{vWQ}, s{t0}, v11")
    a("s_waitcnt lgkmcnt(0)")
    a(f"s_mul_i32 s{t0}, s{sKQ}, 7\ns_lshl_b32 s{t1}, s{sCB}, 2\ns_add_u32 s{t0}, s{t0}, s{t1}")
    a(f"s_cmp_ge_u32 s{t0}, 28\ns_cselect_b32 s{t1}, 28, 0\ns_sub_u32 s{t0}, s{t0}, s{t1}\ns_mul_i32 s{sC0}, s{t0}, 43008")
    srd(a, S4, pDBG, 256)
    a(f"s_or_b32 s{t0}, s2, s{sKQ}\ns_cmp_lg_u32 s{t0}, 0\ns_cbranch_scc1 L_notag")
    a(f"s_memrealtime s[{sNON}:{sNON+1}]\ns_waitcnt lgkmcnt(0)")
    a(f"s_or_b32 s{sNON}, s{sNON}, 1\ns_xor_b32 s{sNON+1}, s{sNON+1}, 0x5bd1e995")
    a(f"v_mov_b32 v{vNON}, s{sNON}\nv_mov_b32 v{vNON+1}, s{sNON+1}")
    a("s_mov_b64 exec, 1")
    a(f"buffer_store_dwordx2 {vr(vNON,2)}, v{vZ}, {sr(S4,4)}, 0 offen sc1")
    a("s_mov_b64 exec, -1")
    a.label("L_notag")
    a("s_waitcnt vmcnt(0)")
    a(f"s_mov_b64 s[{pGW}:{pGW+1}], s[{pWA}:{pWA+1}]")
    scalar_setup()
    phase2_setup()
    late_setup()
    a(f"s_lshr_b32 s{t0}, s{sG16}, 3\ns_lshl_b32 s{t0}, s{t0}, 2\ns_and_b32 s{t1}, s{sG16}, 3\ns_add_u32 s{t0}, s{t0}, s{t1}")
    a(f"s_lshl_b32 s{t0}, s{t0}, 1\ns_and_b32 s{t1}, s{sKQ}, 1\ns_add_u32 s{t0}, s{t0}, s{t1}")
    a(f"s_lshl_b32 s{t0}, s{t0}, 7\ns_add_u32 s{t0}, s{t0}, s{sTAt}\ns_lshl_b32 s{u0}, s{t0}, 12")
    a(f"s_lshl_b32 s{u1}, s{sG16}, 4\ns_add_u32 s{u1}, s{u1}, s{sTB}\ns_lshl_b32 s{u1}, s{u1}, 7\ns_add_u32 s{u1}, s{u1}, {FL1_OFF}")
    a(f"s_bitcmp1_b32 s{sG16}, 2")
    a("s_cbranch_scc1 L_1a_V")
    def reads1a(g):
        b, ks = g & 1, g & 3
        tr = lambda u: [(f"ds_read_b64_tr_b16 {vr(WF[b][u]+2*e,2)}, v{WAD} offset:{16384 + ks*3584 + e*224 + u*56}") for e in range(2)]
        return ([(f"ds_read_b128 {vr(XR+4*g,4)}, v{XAD+ks}", 0)] + [(x, 0) for x in tr(0)] +
                [(f"ds_read_b128 {vr(XO[b],4)}, v{XAO+ks}", 1)] + [(x, 2) for x in tr(1)])
    PKS = [192, 216, 224, 232]
    def kvstore(u):
        so = [u0, t0, t1, t2][u]
        a(f"buffer_store_dwordx4 {vr(PKS[u],4)}, v{vST}, {sr(SWS,4)}, s{so} offen sc1")
        a(f"buffer_store_dwordx4 {vr(PKS[u]+4,4)}, v{vST}, {sr(SWS,4)}, s{so} offen offset:1024 sc1")
    for ty in "KV":
        a.label("L_1a_" + ty)
        if ty == "V": a(f"s_add_u32 s{u0}, s{u0}, 2048")
        st(1)
        a("s_barrier")
        st(2)
        lg = Ctr(a, "lgkmcnt", 15)
        def rd1a(g, lo, hi):
            for x, k in reads1a(g)[lo:hi]:
                a(x); lg.issue((g, k))
        rd1a(0, 0, 6)
        for g in range(28):
            b = g & 1
            edge = g + 1 < 28 and (g + 1) & 3 == 0
            cut = [0, 0, 0, 4, 6] if edge else [0, 3, 6, 6, 6]
            for u in range(4):
                if edge and u == 2:
                    c = (g + 1) >> 2
                    lg.wait_all()
                    if c == 6: get_nonce(True)
                    a("s_barrier")
                    if c in (3, 6): st(2 + c // 3)
                    d = R_SLOT if c % 3 else -2 * R_SLOT
                    for r in (XAD, WAD, XAO): a(f"v_add_u32 v{r}, {d & 0xffffffff}, v{r}")
                lg.wait([(g, u)])
                D = vr(ACC[u], 16); C = "0" if g == 0 else D
                X, W = vr(XO[b] if u & 1 else XR + 4*g, 4), vr(WF[b][u >> 1], 4)
                a(f"v_mfma_f32_32x32x16_bf16 {D}, {X}, {W}, {C}" if ty == "V" else f"v_mfma_f32_32x32x16_bf16 {D}, {W}, {X}, {C}")
                if g + 1 < 28: rd1a(g + 1, cut[u], cut[u+1])
                if edge and u == 3:
                    for r in (XAD + 1, XAO + 1): a(f"v_add_u32 v{r}, {d & 0xffffffff}, v{r}")
                    if c == 4: a(f"buffer_load_dwordx2 {vr(vNON,2)}, v{vZ}, {sr(S4,4)}, 0 offen sc1")
                if g >= 4 and g & 3 == 0 and u >= 2:
                    for r in (XAD + u, XAO + u): a(f"v_add_u32 v{r}, {d & 0xffffffff}, v{r}")
        st(5)
        a(f"s_xor_b32 s{t0}, s{u0}, 4096\ns_add_u32 s{t1}, s{u0}, 262144\ns_add_u32 s{t2}, s{t0}, 262144")
        if ty == "V": a(f"v_mov_b32 v{vST}, v{vL16}")
        else: a("s_nop 0")
        a(f"s_cmp_lt_u32 s{sG16}, {8 if ADEL else 0}")
        a("s_nop 3")
        for u in range(4):
            D = ACC[u]; P = PKS[u]
            for r in range(8): a(f"v_cvt_pk_bf16_f32 v{P+r}, v{D+2*r}, v{D+2*r+1}")
            if ty == "V":
                a("s_mov_b32 exec_lo, 0xf0000000\ns_mov_b32 exec_hi, 0xf0000000")
                for r in range(8): a(f"v_mov_b32 v{P+r}, v{vVC}")
            else:
                a(f"s_mov_b32 exec_lo, 0\nv_mov_b32 v{P+6}, 0\nv_mov_b32 v{P+7}, 0")
            a("s_mov_b64 exec, -1")
            L = lab("L_nost")
            a(f"s_cbranch_scc1 {L}")
            kvstore(u)
            a.label(L)
        if ty == "K": a("s_branch L_1a_join")
    a.label("L_1a_join")
    lg = Ctr(a, "lgkmcnt", 15)
    def sendflag():
        a(f"v_mov_b32 v{T}, {L_CNT}\nv_mov_b32 v{T+1}, 1")
        a("s_waitcnt vmcnt(0)")
        a(f"s_mov_b64 exec, 1\nds_add_rtn_u32 v{T+1}, v{T}, v{T+1}\ns_waitcnt lgkmcnt(0)")
        lg.q = []
        a(f"v_cmp_eq_u32 vcc, 3, v{T+1}\ns_cbranch_vccz L_noflag")
        a(f"buffer_store_dwordx2 {vr(vNON,2)}, v{vZ}, {sr(SWS,4)}, s{u1} offen sc1")
        a.label("L_noflag")
        a("s_mov_b64 exec, -1")
        st(7)
    a("s_barrier")
    st(6)
    NB = 8; LOOK = 6
    QBUF = [160 + 4*i for i in range(NB)]
    def rdq(g):
        for e in range(2):
            a(f"ds_read_b64_tr_b16 {vr(QBUF[g % NB]+2*e,2)}, v{WQD} offset:{L_WQB - L_WQA + g*1024 + e*256}"); lg.issue(g)
    for g in range(LOOK): rdq(g)
    D = ACC[1]
    for g in range(28):
        lg.wait(g)
        a(f"v_mfma_f32_32x32x16_bf16 {vr(D,16)}, {vr(QBUF[g % NB],4)}, {vr(XR+4*g,4)}, {'0' if g == 0 else vr(D,16)}")
        if g + LOOK < 28: rdq(g + LOOK)
    if "fine" in OPT: st(1)
    if ADEL == 1:
        a(f"s_cmp_lt_u32 s{sG16}, 8\ns_cbranch_scc0 L_stored")
        for u in range(4): kvstore(u)
        a.label("L_stored")
    sendflag()
    a("s_barrier")
    a(f"s_lshl_b32 s{t0}, s{sKQ}, 8\ns_add_u32 s{t0}, s{t0}, {L_G}")
    a(f"v_lshl_add_u32 v{DAC+2}, v{vN}, 3, s{t0}")
    a(f"s_lshl_b32 s{t0}, s{sKQ}, 11\ns_add_u32 s{t0}, s{t0}, {L_QX}")
    a(f"v_add_u32 v{DAC+3}, s{t0}, v{vL16}")
    a(f"v_mov_b32 v{T+2}, 0x{QSCALE:08x}")
    a(f"v_mov_b32 v{DAC}, v{D+12}")
    P = 208
    for r in range(0, 16, 2): a(f"v_pk_mul_f32 {vr(D+r,2)}, {vr(D+r,2)}, {vr(T+2,2)} op_sel_hi:[1,0]")
    for r in range(8): a(f"v_cvt_pk_bf16_f32 v{P+r}, v{D+2*r}, v{D+2*r+1}")
    a(f"s_mov_b32 exec_lo, 0\nv_mov_b32 v{P+6}, 0\nv_mov_b32 v{P+7}, 0\ns_mov_b64 exec, -1")
    a(f"ds_write_b128 v{DAC+3}, {vr(P,4)}")
    a(f"ds_write_b128 v{DAC+3}, {vr(P+4,4)} offset:1024")
    for x in [f"v_cvt_pk_bf16_f32 v{DAC}, v{DAC}, v{DAC}", f"v_lshlrev_b32 v{DAC}, 16, v{DAC}",
              f"v_mul_f32 v{DAC}, 0x{LOG2E ^ 0x80000000:08x}, v{DAC}", f"v_exp_f32 v{DAC}, v{DAC}", "s_nop 0",
              f"v_add_f32 v{DAC}, 1.0, v{DAC}", f"v_rcp_f32 v{DAC}, v{DAC}", "s_nop 0",
              f"v_cvt_pk_bf16_f32 v{DAC}, v{DAC}, v{DAC}", f"v_lshlrev_b32 v{DAC}, 16, v{DAC}",
              f"v_sub_f32 v{DAC+1}, 1.0, v{DAC}", f"v_cvt_pk_bf16_f32 v{DAC+1}, v{DAC+1}, v{DAC+1}", f"v_lshlrev_b32 v{DAC+1}, 16, v{DAC+1}",
              "s_mov_b32 exec_lo, 0", f"ds_write_b64 v{DAC+2}, {vr(DAC,2)}", "s_mov_b64 exec, -1"]: a(x)
    srd(a, S4, pGW, W_BYTES)
    a(f"s_mul_i32 s{u0}, s{sKQ}, 7168\ns_add_u32 s{u0}, s{u0}, {L_WQA}")
    a("s_waitcnt lgkmcnt(0)")
    if "fine" in OPT: st(4)
    a("s_barrier")
    pre_phase2()
    QLATE = int(OPT.get("qlate", 4))
    wqa = [f"s_add_u32 m0, s{u0}, {n*1024}\ns_nop 0\nbuffer_load_dwordx4 v{vWQ}, {sr(S4,4)}, s{sC0} offen lds\n"
           f"s_add_u32 s{sC0}, s{sC0}, 43008\ns_cmp_eq_u32 s{sC0}, {28*43008}\ns_cselect_b32 s{sC0}, 0, s{sC0}" for n in range(7)]
    for x in wqa[:7 - QLATE]: a(x)

    class St: pass
    cur = St()
    def btile(s, q): return dict(key=("B", s), Q=QB[q], O=O[f"B{q}"], mask=False, addr=vBA0, off=L_S[s % 4], s=S[q])
    def atile(i, m, sb): return dict(key=("A", i), Q=QA, O=O["A"], mask=m, addr=vAA, off=i * 4096, s=sb)
    Btiles = [btile(s, q) for s in range(16) for q in range(2)]
    At = [atile(i, i in (0, 8), [S[0], RED, S[1]][i % 3]) for i in range(9)]
    seqC = []
    for s in range(16):
        seqC += Btiles[2*s:2*s+2]
        if APOS <= s < APOS + 3: seqC += At[3*(s-APOS):3*(s-APOS)+3]
    seqs = [seqC, Btiles]
    FOFF = {"K0": 0, "K1": 1024, "V0": 2048, "V1": 3072}
    def load(lg, f, t):
        a(f"ds_read_b128 {vr(FR[f],4)}, v{t['addr']} offset:{t['off'] + FOFF[f]}"); lg.issue(f)
    def reload_after(lg, f, tiles, i):
        if i + 1 < len(tiles) and tiles[i+1]["key"] != tiles[i]["key"]: load(lg, f, tiles[i+1])

    def dmaB(s):
        return [f"s_add_u32 m0, s{sM0}, {L_S[s % 4]}\ns_add_u32 s{sOFF}, s{sOFF}, 4096",
                f"buffer_load_dwordx4 v{vDB}, {sr(SWS,4)}, s{sOFF} offen sc1 lds",
                f"buffer_load_dwordx4 v{vDB}, {sr(SWS,4)}, s{sOFF} offen offset:1024 sc1 lds"]
    def dmaA(i):
        return [f"s_add_u32 m0, s{sM0}, {L_AREG + i*16384}" + (f"\nv_add_u32 v{vDA}, 16384, v{vDA}" if i else "\ns_nop 0"),
                f"buffer_load_dwordx4 v{vDA}, {sr(SKA,4)}, 0 offen sc1 lds",
                f"buffer_load_dwordx4 v{vDA}, {sr(SKA,4)}, 0 offen offset:1024 sc1 lds"]
    def qk(lg, tiles, i, j):
        t = tiles[i]; D = vr(t["s"], 16)
        lg.wait([f"K{j}"] + (["M"] if t["mask"] else []))
        C = D if j == 1 else (vr(MASK, 16) if t["mask"] else "0")
        a(f"v_mfma_f32_32x32x16_bf16 {D}, {vr(FR[f'K{j}'],4)}, {vr(t['Q']+4*j,4)}, {C}")
        reload_after(lg, f"K{j}", tiles, i)
    def pv(lg, tiles, i, j, merge=()):
        t = tiles[i]
        lg.wait([f"V{j}"] + list(merge))
        a(f"v_smfmac_f32_32x32x32_bf16 {vr(t['O'],16)}, {vr(FR[f'V{j}'],4)}, {vr(t['s']+8*j,8)}, v{vIDX}")
        reload_after(lg, f"V{j}", tiles, i)
    def slot(lg, tiles, i, extra=(), late=()):
        s0 = tiles[i]["s"]
        at = {r: [] for r in range(16)}
        xp = (1, 3, 4, 6, 7, 9, 10, 11, 13, 14, 15)
        for k, x in enumerate(extra): at[xp[(2 * k + 1) * len(xp) // (2 * len(extra))]].append(x)
        for k, x in enumerate(late): at[13 + k * 3 // len(late)].append(x)
        isB1 = tiles[i]["key"][0] == "B" and tiles[i]["Q"] == QB[1]
        for r in range(16):
            if r == 2 and i > 0: pv(lg, tiles, i - 1, 1, merge=("K0", "K1") if isB1 else ())
            if r == 5 and i + 1 < len(tiles): qk(lg, tiles, i + 1, 0)
            if r == 8 and i + 1 < len(tiles): qk(lg, tiles, i + 1, 1)
            if r == 12: pv(lg, tiles, i, 0)
            for x in at[r]: x() if callable(x) else a(x)
            a(f"v_exp_f32 v{s0+r}, v{s0+r}")
    def finalize(tag, R, n, L, G, vP, sDst, pk):
        o = [f"v_rcp_f32 v{T+1}, v{L}", f"v_med3_f32 v{T+2}, v{L}, v{vLO}, s{sHI}", f"v_mul_f32 v{T}, v{T+1}, v{G}"]
        if pk: o += [f"v_pk_mul_f32 {vr(R+r,2)}, {vr(R+r,2)}, {vr(T,2)} op_sel_hi:[1,0]" for r in range(0, n, 2)]
        else: o += [f"v_mul_f32 v{R+r}, v{R+r}, v{T}" for r in range(n)]
        o += [f"v_mul_f32 v{T+1}, v{R}, v{R+1}"] + [f"v_fma_f32 v{T+1}, v{R+r}, v{R+r+1}, v{T+1}" for r in range(2, n, 2)]
        o += [f"v_fma_f32 v{T+1}, v{T+1}, 0, v{L}", f"v_cmp_neq_f32 vcc, v{T+1}, v{T+2}"]
        def br():
            a(f"s_cbranch_vccnz L_slow{tag}"); a.label(f"L_fin{tag}")
        o.append(br)
        o += [f"v_cvt_pk_bf16_f32 v{R+r}, v{R+2*r}, v{R+2*r+1}" for r in range(n // 2)]
        o += [f"v_and_b32 v{R+n//2-2}, v{vP}, v{R+n//2-2}", f"v_and_b32 v{R+n//2-1}, v{vP}, v{R+n//2-1}"]
        o += [f"buffer_store_dwordx4 {vr(R+4*j,4)}, v{vL16}, {sr(SWS,4)}, s{sDst} offen offset:{j*1024} sc1" for j in range(n // 8)]
        return o
    def pkadd(D, A_, B_, n=8): return [f"v_pk_add_f32 {vr(D+r,2)}, {vr(A_+r,2)}, {vr(B_+r,2)}" for r in range(0, n, 2)]
    def dmaW(n, base, SR):
        return f"s_add_u32 m0, s{sWM0}, {base + n*8192}\ns_mov_b32 s{t1}, {n*64*896}\nbuffer_load_dwordx4 v{vDW}, {sr(SR,4)}, s{t1} offen lds"
    DROP = OPT.get("drop", "").split(",")
    def V(x, tag):
        def f():
            if tag in DROP: return
            a(x); cur.vm.issue(tag)
        return f
    def Lg(x, tag):
        def f():
            if tag in DROP: return
            a(x); cur.lg.issue(tag)
        return f
    def trio(d, tag): return [d[0], V(d[1], tag), V(d[2], tag)]
    OFA = 16
    sOA2 = u1
    P = APOS
    OA = O["A"]
    def mk():
        return {(s, q): [] for s in range(16) for q in range(5)}
    sched = mk()
    for s in range(13): sched[s, 0] += trio(dmaB(s + 3), f"B{s+3}")
    for i in range(3): sched[P - 5 + i, 1] += trio(dmaA(i), "A")
    sched[P-1, 1] += [V(f"buffer_store_dwordx4 {vr(PO,4)}, v{vL16}, {sr(SWS,4)}, s{so} offen sc1", "po") for so in (sOA, sOB)]
    sched[P+1, 0] += [V(f"s_mov_b64 exec, s[{sW0}:{sW0+1}]\nbuffer_store_dwordx2 {vr(vNON,2)}, v{vZ}, {sr(SWS,4)}, s{sFA} offen sc1\ns_mov_b64 exec, -1", "f2")]
    def chk():
        cur.vm.wait("fl")
        if "fl" not in DROP: a(f"v_cmp_ne_u64 vcc, s[{sNON}:{sNON+1}], {vr(vLA+2,2)}\ns_cbranch_vccnz L_pflag_spin")
        a.label("L_pflag_ok")
    sched[12, 0] = [f"v_and_b32 v{vFL}, 15, v0", f"v_lshlrev_b32 v{vFL}, 7, v{vFL}",
                    V(f"buffer_load_dwordx2 {vr(vLA+2,2)}, v{vFL}, {sr(SWS,4)}, s{sFO} offen sc1", "fl")] + sched[12, 0]
    wo = [V(dmaW(k, L_WOB, S2), "wob") for k in (3, 4, 5, 6)] + [V(dmaW(k, L_WOA, S1), "woa") for k in range(7)]
    for (s_, q_), n in [((P+2, 1), 2), ((P+3, 1), 2), ((P+4, 1), 2), ((12, 1), 2), ((13, 0), 3)]:
        sched[s_, q_] += wo[:n]; wo = wo[n:]
    assert not wo
    ol = [V(f"buffer_load_dwordx4 {vr(OFA+4*kk,4)}, v{vL16}, {sr(SWS,4)}, s{sOO if kk < 4 else sOA2} offen offset:{(kk&3)*1024} sc1", "ofa") for kk in range(8)]
    sched[13, 1] += [chk] + ol[0:2]; sched[14, 0] += ol[2:4] + [f"s_add_u32 s{sOA2}, s{sOO}, 4096"]; sched[14, 1] += ol[4:6]; sched[15, 0] += ol[6:8]
    sched[15, 0] += [f"s_mul_i32 s{t0}, s{sQH}, 24576", f"v_add_u32 v{vBW}, s{t0}, v{vL16}",
                     f"s_add_u32 s{t0}, s{t0}, 1536", f"v_lshl_add_u32 v{vBL}, v{vN}, 4, s{t0}",
                     f"s_and_b32 s{t0}, s{sWM0}, 0x1800\ns_add_u32 s{t0}, s{t0}, {L_WOB + 16384}", f"v_lshl_add_u32 v{vBX}, v0, 2, s{t0}"]
    XR, WQD = 16, 14
    px = [mk(), mk()]
    def qrd(g):
        for e in range(2):
            a(f"ds_read_b64_tr_b16 {vr(WB[g % 3]+2*e,2)}, v{WQD} offset:{g*1024 + e*256}"); cur.lg.issue(("q", g))
    def qstep(g):
        def f_():
            cur.lg.wait([("q", g)])
            a(f"v_mfma_f32_32x32x16_bf16 {vr(OA,16)}, {vr(WB[g % 3],4)}, {vr(XR+4*g,4)}, {vr(OA,16)}")
            if g + 3 < 28: qrd(g + 3)
        return f_
    items = [lambda: [qrd(g) for g in range(3)]] + [qstep(g) for g in range(28)]
    for k, n in enumerate([3, 4, 3, 4, 4, 4, 3, 4]):
        if "pass" not in DROP: px[0][QW + k // 2, k & 1] += items[:n]
        items = items[n:]
    px[0][0, 1] += [V(x, "Q") for x in wqa[7 - QLATE:]]
    rdmask = lambda m: [Lg(f"ds_read_b128 {vr(MASK+4*k,4)}, v{vLA+1} offset:{m*4096 + k*1024}", "M") for k in range(4)]
    px[0][QW + 4, 0] += low_setup + [f"v_mov_b32 v{WB[0]+r}, 0" for r in range(4)] + [f"v_mul_f32 v{OA+r}, 0x{QSCALE:08x}, v{OA+r}" for r in range(8)]
    px[0][QW + 4, 1] += [f"v_mul_f32 v{OA+r}, 0x{QSCALE:08x}, v{OA+r}" for r in range(8, 16)]
    px[0][QW + 4, 1] += [f"v_cvt_pk_bf16_f32 v{QA+r}, v{OA+2*r}, v{OA+2*r+1}" for r in range(8)]
    px[0][QW + 5, 0] += [f"v_add_u32 v{vLA+1}, {L_MASK}, v{vL16}", f"v_and_b32 v{QA+6}, v{vPA}, v{QA+6}", f"v_and_b32 v{QA+7}, v{vPA}, v{QA+7}",
                         f"v_mfma_f32_32x32x16_bf16 {vr(OA,16)}, {vr(WB[0],4)}, {vr(WB[0],4)}, 0"] + rdmask(0)
    px[0][P + 1, 3] += rdmask(1)
    f = finalize("A", OA, 16, vLA, vGA, vPA, sOA, False)
    if "fin" in DROP: f = [lambda: a.label("L_finA")] + [f"v_mov_b32 v{OA+r}, 0" for r in range(8)] + f[-2:]
    f = [f"v_mov_b32 v{vLA}, v{OA+12}\nv_mov_b32 v{T}, v{OA+12}", "s_nop 0", f"v_permlane32_swap_b32 v{T}, v{vLA}"] + f
    h1 = len(f) // 2
    px[0][P + 3, 1] += f[:h1]; px[0][P + 4, 0] += f[h1:]
    for hf in range(2):
        px[hf][P + PFAT, 1] += [f"s_lshr_b32 s{t0}, s2, 3\ns_lshl_b32 s{t0}, s{t0}, 2\ns_add_u32 s{t0}, s{t0}, s{sKQ}\ns_mul_i32 s{t0}, s{t0}, {49*64}",
                             f"v_min_u32 v{T}, 24, v0", f"v_lshlrev_b32 v{T}, 7, v{T}", V(f"buffer_load_dword v{vFL}, v{T}, {sr([S1, S2][hf],4)}, s{t0} offen", "pf")]
    def merge(x, y):
        o = [((k + 0.5) / len(x), 0, k, v) for k, v in enumerate(x)] + [((k + 0.5) / len(y), 1, k, v) for k, v in enumerate(y)]
        return [v for *_, v in sorted(o, key=lambda t: t[:3])]
    def top(s, hf):
        cur.vm.wait(f"B{s+1}")
        if s == QW and hf == 0: cur.vm.wait("Q")
        if s == P: cur.vm.wait("A")
        if s == P + 1: cur.vm.wait("po")
        if s == 15: cur.vm.wait("woa")
        a("s_barrier")
        st.step(s - 1)
        if s == P: st(9)
        if s == 12: st(10)
        if "fine" in OPT and s in (0, 1): st(2 + s)
    states = []
    JOIN = P + 5
    for hf in range(2):
        if hf: a.label("L_pathL")
        tiles = seqs[hf]
        cur.lg = Ctr(a, "lgkmcnt", 15); cur.vm = Ctr(a, "vmcnt", 63)
        for k in (["Q"] * (7 - QLATE) if hf == 0 else ["B1"] * 8 + ["B2"] * 8): cur.vm.issue(k)
        st(8)
        a("s_barrier")
        for f_ in ("K0", "K1", "V0", "V1"): load(cur.lg, f_, tiles[0])
        qk(cur.lg, tiles, 0, 0); qk(cur.lg, tiles, 0, 1)
        a("s_nop 10")
        idx = 0
        for s in range(JOIN):
            top(s, hf)
            for q in range(5 if (hf == 0 and P <= s < P + 3) else 2):
                slot(cur.lg, tiles, idx, merge(sched[s, q], px[hf][s, q])); idx += 1
        states.append((list(cur.lg.q), list(cur.vm.q)))
        if hf == 0: a("s_branch L_B")
    assert states[0] == states[1], states
    a.label("L_B")
    for s in range(JOIN, 16):
        top(s, 1)
        slot(cur.lg, tiles, idx, sched[s, 0]); idx += 1
        if s < 15:
            slot(cur.lg, tiles, idx, sched[s, 1]); idx += 1
    assert idx == len(tiles) - 1
    lg = cur.lg
    RB, LB = 160, 184
    ACC3 = [128, 144]; W3 = [192, 200, 208, 216]; OFB = 72
    vT3 = [2, 3]; vT3b = [4, 5]; vOUT = 8
    addr3 = [f"v_bfe_u32 v{T}, v0, 2, 2", f"v_lshlrev_b32 v{T}, 7, v{T}", f"v_bfe_u32 v{T+1}, v0, 4, 1", f"v_lshl_add_u32 v{T}, v{T+1}, 5, v{T}",
             f"v_and_b32 v{T+1}, 3, v0", f"v_lshl_add_u32 v{T}, v{T+1}, 3, v{T}", f"v_bfe_u32 v{T+1}, v0, 3, 1", f"v_lshl_add_u32 v{T}, v{T+1}, 6, v{T}",
             f"s_mul_i32 s{t0}, s{sKQ}, 14336", f"s_add_u32 s{t0}, s{t0}, {L_WOA}",
             f"v_add_u32 v{vT3b[0]}, s{t0}, v{T}", f"v_xor_b32 v{vT3b[1]}, 64, v{vT3b[0]}"]
    addr3b = [f"v_lshrrev_b32 v{T+1}, 5, v0"] + [f"v_lshl_add_u32 v{vT3[c]}, v{T+1}, 9, v{vT3b[c]}" for c in range(2)]
    addr3b += [f"v_mul_u32_u24 v{vOUT}, 896, v{vN}", f"v_lshl_add_u32 v{vOUT}, v{T+1}, 4, v{vOUT}"]
    def oa_max():
        a(f"v_max3_u32 v{T+3}, v{OFA}, v{OFA+1}, v{OFA+2}")
        for r in range(3, 31, 2): a(f"v_max3_u32 v{T+3}, v{T+3}, v{OFA+r}, v{OFA+r+1}")
        a(f"v_max_u32 v{T+3}, v{T+3}, v{OFA+31}")
    for kq in range(1, 4):
        a(f"s_cmp_eq_u32 s{sKQ}, {kq}\ns_cbranch_scc1 L_tail{kq}")
    lg0 = lg
    for kq in range(4):
        if kq: a.label(f"L_tail{kq}")
        lg = lg0.clone(a)
        def wr(o):
            sl = kq if kq < o else kq - 1
            return [f"ds_write_b128 v{vBW}, {vr(O['B0']+8*o+4*k,4)} offset:{(o*3+sl)*2048 + k*1024}" for k in range(2)]
        wl = lambda: [f"ds_write_b32 v{vBX}, v{O['B0']+8*kq+4}"]
        ex = [x for o in range(2) if o != kq for x in wr(o)] + (wl() if kq == 1 else [])
        slot(lg, tiles, idx, [], ex)
        a("s_nop 1")
        pv(lg, tiles, len(tiles) - 1, 1)
        if kq == 0: st(11)
        for x in addr3: a(x)
        for x in [x for o in (2, 3) if o != kq for x in wr(o)] + (wl() if kq == 3 else []): a(x)
        for x in addr3b: a(x)
        a("s_waitcnt vmcnt(0)")
        oa_max()
        a("s_waitcnt lgkmcnt(0)")
        a("s_barrier")
        own = O['B0'] + 8*kq
        wlate = [dmaW(n, L_WOB, S2) for n in range(3)]
        for sl in range(3):
            for k in range(2):
                a(f"ds_read_b128 {vr(RB+8*sl+4*k,4)}, v{vBW} offset:{(kq*3+sl)*2048 + k*1024}")
        if kq & 1:
            for x in wlate: a(x)
            a("s_waitcnt lgkmcnt(4)")
            for x in pkadd(RB, RB, own): a(x)
            a("s_waitcnt lgkmcnt(0)")
            for x in pkadd(RB+8, RB+8, RB+16): a(x)
            for r in (4, 0, 2, 6):
                a(f"v_pk_add_f32 {vr(RB+r,2)}, {vr(RB+r,2)}, {vr(RB+8+r,2)}")
                if r == 4: a(f"v_mov_b32 v{LB}, v{RB+4}\nv_mov_b32 v{LB+1}, v{RB+4}")
            a(f"v_permlane32_swap_b32 v{LB+1}, v{LB}")
        else:
            for sl in range(3): a(f"ds_read_b32 v{LB+sl}, v{vBL} offset:{((kq+1)*3+sl)*2048}")
            a(f"v_or_b32 v{vBX}, 128, v{vBX}")
            a(f"ds_read_b32 v{LB+3}, v{vBX}")
            for x in wlate[:2]: a(x)
            a("s_waitcnt lgkmcnt(8)")
            for x in pkadd(RB, RB, own): a(x)
            a("s_waitcnt lgkmcnt(4)")
            for x in pkadd(RB+8, RB+8, RB+16) + pkadd(RB, RB, RB+8): a(x)
            a("s_waitcnt lgkmcnt(0)")
            a(wlate[2])
            a(f"v_add_f32 v{LB}, v{LB}, v{LB+3}\nv_add_f32 v{LB+1}, v{LB+1}, v{LB+2}\nv_add_f32 v{LB}, v{LB}, v{LB+1}")
        if kq < 3: a("s_branch L_tail_join")
    a.label("L_tail_join")
    def reads3(i):
        kk = i & 7; hd, j = kk >> 1, kk & 1
        for ct in range(2):
            for e in range(2):
                a(f"ds_read_b64_tr_b16 {vr(W3[i & 3]+4*ct+2*e,2)}, v{vT3b[ct] if (j == 1 and e == 1) else vT3[ct]} offset:{(28*hd+16*j+8*e)*128}")
    def oload(OF, kk):
        a(f"buffer_load_dwordx4 {vr(OF+4*kk,4)}, v{vL16}, {sr(SWS,4)}, s{sOO if kk < 4 else u0} offen offset:{(kk&3)*1024} sc1")
    def oloads(OF, lo):
        for kk in range(lo, 8): oload(OF, kk)
    for i in range(3): reads3(i)
    for x in finalize("B", RB, 8, LB, vGB, vPB, sOB, True):
        x() if callable(x) else a(x)
    a(f"s_cmp_eq_u32 s{sCB}, 7")
    a("s_cbranch_scc1 L_fini")
    st(12)
    a(f"s_mov_b32 s{sCNT}, {SPIN_MAX}")
    a.label("L_oa_chk")
    a(f"v_cmp_eq_u32 vcc, -1, v{T+3}\ns_cbranch_vccnz L_oa_retry")
    a.label("L_oa_ok")
    a(f"s_add_u32 s{sOO}, s{sOO}, 32768\ns_add_u32 s{u0}, s{sOO}, 4096\ns_mov_b32 s{sCNT}, {SPIN_MAX}")
    nob = 0
    for i in range(16):
        kk = i & 7
        OF = OFA if i < 8 else OFB
        if i == 8: st(13)
        if i >= 8:
            assert nob == 8
            a.label(f"L_ob{kk}")
            a(f"s_waitcnt vmcnt({7-kk})")
            f = OFB + 4*kk
            a(f"v_max3_u32 v{T}, v{f}, v{f+1}, v{f+2}\nv_max_u32 v{T}, v{T}, v{f+3}\nv_cmp_eq_u32 vcc, -1, v{T}")
            a(f"s_cbranch_vccnz L_retry{kk}")
            a.label(f"L_ob{kk}_go")
        a(f"s_waitcnt lgkmcnt({min(8, 4*(15-i))})")
        for ct in range(2):
            D = vr(ACC3[ct], 16)
            a(f"v_mfma_f32_32x32x16_bf16 {D}, {vr(W3[i&3]+4*ct,4)}, {vr(OF+4*kk,4)}, {'0' if i == 0 else D}")
        if i == 5:
            for r in vT3 + vT3b: a(f"v_add_u32 v{r}, {(L_WOB - L_WOA) & 0xffffffff}, v{r}")
            a(f"s_waitcnt vmcnt({1 + nob})")
            a("s_barrier")
        if i + 3 < 16: reads3(i + 3)
        if OBAT <= i < 8:
            for _ in range(OBN if i < 7 else 8):
                if nob < 8:
                    oload(OFB, nob); nob += 1
    st(14)
    for kq in range(1, 4):
        a(f"s_cmp_eq_u32 s{sKQ}, {kq}\ns_cbranch_scc1 L_fin3_{kq}")
    R = 16
    for kq in range(4):
        if kq: a.label(f"L_fin3_{kq}")
        a("s_nop 9")
        for o in range(4):
            if o == kq: continue
            sl = kq if kq < o else kq - 1
            for k in range(2):
                a(f"ds_write_b128 v{vBW}, {vr(ACC3[0]+8*o+4*k,4)} offset:{(o*3+sl)*2048 + k*1024}")
        a("s_waitcnt lgkmcnt(0)")
        a("s_barrier")
        for sl in range(3):
            for k in range(2):
                a(f"ds_read_b128 {vr(R+8*sl+4*k,4)}, v{vBW} offset:{(kq*3+sl)*2048 + k*1024}")
        a("s_waitcnt lgkmcnt(4)")
        for x in pkadd(R, R, ACC3[0]+8*kq): a(x)
        if kq < 3: a("s_branch L_fin3_join")
    a.label("L_fin3_join")
    a("s_waitcnt lgkmcnt(0)")
    for x in pkadd(R+8, R+8, R+16) + pkadd(R, R, R+8): a(x)
    for r in range(4): a(f"v_cvt_pk_bf16_f32 v{R+8+r}, v{R+2*r}, v{R+2*r+1}")
    a("s_nop 1")
    a(f"v_permlane32_swap_b32 v{R+8}, v{R+10}\nv_permlane32_swap_b32 v{R+9}, v{R+11}")
    a(f"buffer_store_dwordx4 {vr(R+8,4)}, v{vOUT}, {sr(S3,4)}, s{sOUT} offen {OST}")
    a.label("L_fini")
    a("s_waitcnt vmcnt(0)")
    st.dump()
    a.label("L_end")
    a("s_endpgm")
    a.label("L_pflag_spin")
    poll(vFL, f"s{sFO}", None, vLA + 2)
    a("s_branch L_pflag_ok")
    a.label("L_oa_retry")
    a(f"s_sub_u32 s{sCNT}, s{sCNT}, 1\ns_cbranch_scc1 L_oa_ok")
    a(f"s_add_u32 s{u0}, s{sOO}, 4096")
    oloads(OFA, 0)
    a("s_waitcnt vmcnt(0)")
    oa_max()
    a("s_branch L_oa_chk")
    for kk in range(8):
        a.label(f"L_retry{kk}")
        a(f"s_sub_u32 s{sCNT}, s{sCNT}, 1\ns_cbranch_scc1 L_giveup{kk}")
        a(f"s_waitcnt vmcnt(0)\ns_sleep {OPT.get('rsleep', 2)}")
        oloads(OFB, kk)
        a(f"s_branch L_ob{kk}")
        a.label(f"L_giveup{kk}")
        a(f"s_mov_b32 s{sCNT}, 0\ns_branch L_ob{kk}_go")

    def slow(tag, R, L, G, sTile, mat):
        SS, OO, KF, VF, Q, M, DL, NI = 72, 88, 104, 112, 120, 240, 241, 243
        sT, sT1, sKO, sT0 = t0, t1, u0, u1
        SK = SKA if mat == 0 else SWS
        a.label(f"L_slow{tag}")
        if mat == 0:
            for r in range(8): a(f"v_mov_b32 v{Q+r}, v{QA+r}")
            a(f"s_sub_i32 s{sT0}, s{sTile}, 8\ns_max_i32 s{sT0}, s{sT0}, 0\ns_add_u32 s{sT1}, s{sTile}, 1")
        else:
            for r in range(8): a(f"v_mov_b32 v{Q+r}, v{QB[0]+r}")
            a(f"s_bitcmp1_b32 s{sKQ}, 1\ns_cbranch_scc0 L_slowB_q")
            for r in range(8): a(f"v_mov_b32 v{Q+r}, v{QB[1]+r}")
            a.label("L_slowB_q")
            a(f"s_mov_b32 s{sT0}, 0\ns_mov_b32 s{sT1}, 64")
        a(f"v_mov_b32 v{M}, 0xff800000\nv_mov_b32 v{NI}, 0xff800000")
        for r in range(16): a(f"v_mov_b32 v{OO+r}, 0")
        for p in range(2):
            a(f"s_mov_b32 s{sT}, s{sT0}")
            a.label(f"L_slow{tag}_p{p}")
            a(f"s_lshl_b32 s{sKO}, s{sT}, 12")
            if mat == 1: a(f"s_add_u32 s{sKO}, s{sKO}, s{sKVB}")
            for j in range(2):
                a(f"buffer_load_dwordx4 {vr(KF+4*j,4)}, v{vL16}, {sr(SK,4)}, s{sKO} offen offset:{j*1024} sc1")
            if p == 1:
                for j in range(2):
                    a(f"buffer_load_dwordx4 {vr(VF+4*j,4)}, v{vL16}, {sr(SK,4)}, s{sKO} offen offset:{2048+j*1024} sc1")
            if mat == 0:
                a(f"s_sub_u32 s{t2}, s{sTile}, s{sT}\ns_lshl_b32 s{t2}, s{t2}, 5")
                a(f"v_lshrrev_b32 v{DL}, 5, v0\nv_lshlrev_b32 v{DL}, 3, v{DL}\nv_sub_u32 v{DL}, v{vN}, v{DL}")
                a(f"v_add_u32 v{DL}, s{t2}, v{DL}")
            a("s_waitcnt vmcnt(0)")
            a(f"v_mfma_f32_32x32x16_bf16 {vr(SS,16)}, {vr(KF,4)}, {vr(Q,4)}, 0")
            a(f"v_mfma_f32_32x32x16_bf16 {vr(SS,16)}, {vr(KF+4,4)}, {vr(Q+4,4)}, {vr(SS,16)}")
            a("s_nop 15")
            if mat == 0:
                for r in range(16):
                    a(f"v_subrev_u32 v{DL+1}, {16*(r>>3)+(r&7)}, v{DL}")
                    a(f"v_cmp_gt_u32 vcc, 0x100, v{DL+1}")
                    a("s_nop 1")
                    a(f"v_cndmask_b32 v{SS+r}, v{NI}, v{SS+r}, vcc")
            if p == 0:
                for r in range(16): a(f"v_max_f32 v{M}, v{M}, v{SS+r}")
            else:
                for r in range(16): a(f"v_sub_f32 v{SS+r}, v{SS+r}, v{M}")
                for r in range(16): a(f"v_exp_f32 v{SS+r}, v{SS+r}")
                a("s_nop 1")
                for j in range(2):
                    a(f"v_smfmac_f32_32x32x32_bf16 {vr(OO,16)}, {vr(VF+4*j,4)}, {vr(SS+8*j,8)}, v{vIDX}")
            a(f"s_add_u32 s{sT}, s{sT}, 1\ns_cmp_lt_u32 s{sT}, s{sT1}")
            a(f"s_cbranch_scc1 L_slow{tag}_p{p}")
            if p == 0:
                a(f"v_mov_b32 v{DL}, v{M}\ns_nop 1\nv_permlane32_swap_b32 v{M}, v{DL}\ns_nop 1\nv_max_f32 v{M}, v{M}, v{DL}")
        a("s_nop 15")
        a(f"v_mov_b32 v{DL}, v{OO+12}\nv_mov_b32 v{L}, v{OO+12}\ns_nop 1")
        a(f"v_permlane32_swap_b32 v{DL}, v{L}\ns_nop 1")
        a(f"v_rcp_f32 v{L}, v{L}\ns_nop 0\nv_mul_f32 v{L}, v{L}, v{G}")
        if mat == 0:
            for r in range(16): a(f"v_mul_f32 v{R+r}, v{OO+r}, v{L}")
            a(f"s_branch L_fin{tag}")
        else:
            a(f"s_bitcmp1_b32 s{sKQ}, 0\ns_cbranch_scc1 L_slow{tag}_odd")
            for r in range(8): a(f"v_mul_f32 v{R+r}, v{OO+r}, v{L}")
            a(f"s_branch L_fin{tag}")
            a.label(f"L_slow{tag}_odd")
            for r in range(8): a(f"v_mul_f32 v{R+r}, v{OO+8+r}, v{L}")
            a(f"s_branch L_fin{tag}")
    slow("A", OA, vLA, vGA, sTAt, 0)
    slow("B", RB, LB, vGB, sTBt, 1)
    a.label("L_code_end")
    return K, 256

def main(out):
    a = Asm()
    hdr = open("cdna_kernels/" + NAME + ".s.ref").read().split("; Override launch")[0]
    a.raw(hdr.rstrip())
    a.raw(f"; @launch grid=(256,1,1) block=(512,1,1) lds={LDS}")
    a.raw('.amdgcn_target "amdgcn-amd-amdhsa--gfx950"')
    a.raw(".text")
    K, v = kernel(a)
    a.raw('.section .rodata,"a"')
    a.raw(".p2align 6")
    a.raw(descriptor(K, v))
    open(out, "w").write(a.text())

if __name__ == "__main__":
    pos = [x for x in sys.argv[1:] if not x.startswith("--")]
    main(pos[0] if pos else "f.s")
```

```python
import sys, struct, math
from asmlib import *

NAME = "gated_mix__sliding_block__softmax_full_mha__prompt"
KV_OFF = 0
OF_OFF = 8 << 20
FL1_OFF = 12 << 20
FLO_OFF = FL1_OFF + 32768
WS_SIZE = FLO_OFF + 32768
X_BYTES = 2048 * 896
W_BYTES = 448 * 2688
WO_BYTES = 448 * 896
def f32bits(x): return struct.unpack("<I", struct.pack("<f", x))[0]
QSCALE = f32bits(math.log2(math.e) / math.sqrt(28.0))
LOG2E = f32bits(math.log2(math.e))
SPIN_MAX = 200000

OPT = dict(a.lstrip("-").split("=") if "=" in a else (a.lstrip("-"), "1") for a in sys.argv[1:] if a.startswith("--"))
STAMPS = "stamps" in OPT
RT = "rt" in OPT
ROT = int(OPT.get("rot", 1))
FLAGAT = int(OPT.get("flagat", 28))
OBAT = int(OPT.get("obat", 6))
OBN = int(OPT.get("obn", 4))
OST = OPT.get("ost", "")
SPF = int(OPT.get("spf", 1))
NQA = [int(x) for x in OPT.get("nqa", "1,0,0,0,0,0,2,0").split(",")]
PK2 = int(OPT.get("pk", 1))
QPF = int(OPT.get("qpf", -1))
UP = int(OPT.get("up", 2))
ST_OFF = 32 << 20

R_SLOT = 30720
L_S = [0, 16384, 32768, 49152]
L_QX = 65536
L_WQA, L_WQB = 135168, 106496
L_AREG = 106496
L_MASK, L_G, L_CNT = 77824, 73728, 98304
L_WOA, L_WOB = 106496, 49152
L_SCRA = 65536
LDS = 163840
PFAT = int(OPT.get("pfat", 1))
CPF = int(OPT.get("cpf", 1))
MIX = int(OPT.get("mix", 2))
NPRE = int(OPT.get("npre", 4))
WAAT = int(OPT.get("waat", 6))
ADEL = int(OPT.get("adel", 3))
QW = int(OPT.get("qw", 2))
APOS = int(OPT.get("apos", 7))
WQAT = [int(x) for x in OPT.get("wqat", "1,0,0,1,1,2,2,0").split(",")]

pX, pWA, pWOA, pWB, pWOB, pGW, pOUT, pDBG, pWS = 4, 6, 8, 12, 14, 16, 18, 20, 22
SWS, SKA, S1, S2, S3, S4 = 24, 28, 32, 36, 40, 44
sH, sTB, sWV, sQH, sKQ, sG16, sNON, sM0, sOFF, sTBt, sTAt, sOA, sOB, sFA, sCB = 48, 49, 50, 51, 52, 53, 54, 56, 57, 58, 59, 60, 61, 62, 63
t0, t1, t2, t3 = 64, 65, 66, 67
u0, u1 = 10, 11
sCNT = 3
sC0, sKVB = 0, 1
sFO, sOO, sOUT, sWM0 = 4, 5, 6, 7
sA1, sFC, sFK, sAS = 9, 18, 19, 16
sK0, sK1, sK2 = 17, 20, 21
sHI, sQM, sW0 = 8, 12, 14

class Stamper:
    def __init__(self, a): self.a = a
    def start(self):
        if STAMPS:
            self.a("s_memrealtime s[100:101]"); self.a("s_memtime s[68:69]")
        if RT:
            for i in range(1, 16): self.a(f"s_mov_b32 s{68+2*i}, 0")
            self.a("s_memrealtime s[68:69]")
    def step(self, s):
        if "steps" in OPT and 1 <= s <= 14: self.a(f"s_mem{'real' if OPT['stamps'] == 'r' else ''}time s[{68+2*s}:{69+2*s}]")
    def __call__(self, i):
        if "steps" in OPT: return
        if STAMPS: self.a(f"s_mem{'real' if OPT['stamps'] == 'r' else ''}time s[{68+2*i}:{69+2*i}]")
        if RT: self.a(f"s_memrealtime s[{68+2*i}:{69+2*i}]")
    def dump(self):
        a = self.a
        if RT and "echo" in OPT:
            i = int(OPT["echo"])
            a("s_waitcnt vmcnt(0)\ns_memrealtime s[98:99]\ns_waitcnt lgkmcnt(0)")
            a(f"s_cmp_lt_u32 s{sWV}, 4\ns_cbranch_scc0 L_end")
            a(f"s_cmp_eq_u32 s{68+2*i}, 0\ns_cbranch_scc1 L_end")
            a(f"s_sub_u32 s64, s{68+2*i}, s68\ns_lshl_b32 s64, s64, 2\ns_min_u32 s64, s64, 100000")
            a.label("L_echo")
            a("s_memrealtime s[66:67]\ns_waitcnt lgkmcnt(0)\ns_sub_u32 s65, s66, s98\ns_cmp_lt_u32 s65, s64\ns_cbranch_scc1 L_echo")
            return
        if not STAMPS: return
        a("s_waitcnt vmcnt(0)")
        a("s_memtime s[98:99]"); a("s_memrealtime s[66:67]")
        a("s_waitcnt lgkmcnt(0)")
        a("s_mov_b64 exec, -1")
        srd(a, S4, pWS, 0x100000, add=ST_OFF)
        a(f"s_lshl_b32 s64, s2, 4\ns_add_u32 s64, s64, s{sWV}\ns_lshl_b32 s64, s64, 7")
        a("v_mov_b32 v1, 0")
        for i in range(16):
            a(f"v_mov_b32 v2, s{68+2*i}")
            a(f"buffer_store_dword v2, v1, {sr(S4,4)}, s64 offen offset:{4*i}")
        a(f"v_mov_b32 v2, s100\nbuffer_store_dword v2, v1, {sr(S4,4)}, s64 offen offset:64")
        a(f"v_mov_b32 v2, s66\nbuffer_store_dword v2, v1, {sr(S4,4)}, s64 offen offset:68")
        a(f"s_getreg_b32 s65, hwreg(HW_REG_XCC_ID)\nv_mov_b32 v2, s65\nbuffer_store_dword v2, v1, {sr(S4,4)}, s64 offen offset:72")

def g16_table():
    v = 0
    for hq in range(4):
        hs = sorted(range(4*hq, 4*hq+4), key=lambda h: 0 if (56*h) % 128 > 64 else 1)
        if MIX:
            sa, sb = hq & 1, 2 + (hq & 1)
            q2, q3 = (0, 1) if hq < 2 else (3, 2)
            gs = [4*sa + q2, 4*sa + q3, 4*sb + q2, 4*sb + q3] if MIX == 2 else [4*sa + q2, 4*sb + q2, 4*sa + q3, 4*sb + q3]
        else:
            gs = [4*hq + q for q in (0, 3, 1, 2)]
        for h, g in zip(hs, gs): v |= g << (4*h)
    return v

def kernel(a):
    K = NAME + "_kernel"
    kernel_begin(a, K)
    st = Stamper(a)
    uid = [0]
    def lab(p):
        uid[0] += 1; return f"{p}_{uid[0]}"
    vL16 = 1
    a("s_cmp_ge_u32 s2, 256")
    a("s_cbranch_scc1 L_end")
    st.start()
    a("s_load_dwordx8 s[4:11], s[0:1], 0")
    a("s_load_dwordx8 s[12:19], s[0:1], 32")
    a("s_load_dwordx4 s[20:23], s[0:1], 64")
    if CPF:
        a(f"s_getpc_b64 s[{SWS}:{SWS+1}]")
        a.label("L_pc")
        a(f"s_lshr_b32 s{t0}, s2, 3\ns_mul_i32 s{t0}, s{t0}, 10\nv_min_u32 v2, 9, v0\nv_add_lshl_u32 v2, v2, s{t0}, 7")
        a(f"v_min_u32 v2, L_code_end-L_pc-4, v2")
        a(f"v_cmp_gt_u32 vcc, 64, v0\ns_cbranch_vccz L_nocpf")
        a(f"global_load_dword v3, v2, s[{SWS}:{SWS+1}]")
        a.label("L_nocpf")
    a("v_lshrrev_b32 v1, 6, v0")
    a("v_and_b32 v0, 63, v0")
    a(f"v_readfirstlane_b32 s{sWV}, v1")
    a(f"v_lshlrev_b32 v{vL16}, 4, v0")
    a(f"s_and_b32 s{t0}, s2, 6\ns_lshl_b32 s{t0}, s{t0}, 1\ns_lshr_b32 s{t1}, s2, 6\ns_add_u32 s{sH}, s{t0}, s{t1}")
    a(f"s_and_b32 s{t0}, s2, 1\ns_lshl_b32 s{t0}, s{t0}, 3\ns_bfe_u32 s{t2}, s2, 0x30003\ns_add_u32 s{sTB}, s{t0}, s{t2}")
    a(f"s_lshl_b32 s{t1}, s{t1}, 1\ns_add_u32 s{sCB}, s{t1}, s{t2}")
    a(f"s_cmp_ge_u32 s{sCB}, 7\ns_cselect_b32 s{t1}, 7, 0\ns_sub_u32 s{sCB}, s{sCB}, s{t1}")
    if not ROT: a(f"s_mov_b32 s{sCB}, 0")
    if ROT == 2:
        a(f"s_lshr_b32 s{t1}, s2, 6\ns_add_u32 s{t1}, s{t1}, s{t2}\ns_and_b32 s{t1}, s{t1}, 1\ns_mul_i32 s{sCB}, s{t1}, 3")
    if ROT == 3:
        a(f"s_lshr_b32 s{t1}, s2, 6\ns_add_u32 s{t1}, s{t1}, s{t2}\ns_and_b32 s{t1}, s{t1}, 3\ns_lshl_b32 s{sCB}, s{t1}, 1")
    if ROT == 4:
        a(f"s_lshr_b32 s{t1}, s2, 6\ns_add_u32 s{t1}, s{t1}, s{t2}\ns_and_b32 s{t1}, s{t1}, 1\ns_lshl_b32 s{sCB}, s{t1}, 1")
    if ROT == 5:
        a(f"s_lshr_b32 s{t1}, s2, 6\ns_add_u32 s{t1}, s{t1}, s{t2}\ns_and_b32 s{sCB}, s{t1}, 3")
    tb = g16_table()
    a(f"s_mov_b32 s{t2}, 0x{tb & 0xffffffff:08x}\ns_mov_b32 s{t3}, 0x{tb >> 32:08x}")
    a(f"s_lshl_b32 s{t0}, s{sH}, 2\ns_lshr_b64 s[{t2}:{t3}], s[{t2}:{t3}], s{t0}\ns_and_b32 s{sG16}, s{t2}, 15")
    a(f"s_lshr_b32 s{sQH}, s{sWV}, 2")
    a(f"s_and_b32 s{sKQ}, s{sWV}, 3")

    vDB, vBA0, vDA, vAA, vIDX, vN, vGA, vGB = 2, 3, 4, 5, 6, 7, 8, 9
    T = 10
    vDW = 254; vZ = 255
    QB = [128, 136]
    FR = {"K0": 144, "K1": 148, "V0": 152, "V1": 156}
    S = [160, 176]
    O = {"B0": 72, "B1": 88, "A": 104}
    WB = [240, 244, 248]
    vNON = 252
    vPA = 15
    MASK, QA, RED = 16, 32, 40
    vPB, vLO, vLA, vAF = 56, 57, 58, 62
    PO = 64
    vBW, vBL, vBX, vFL = 68, 69, 70, 71

    def scalar_setup():
        srd(a, SWS, pWS, WS_SIZE)
        a(f"s_lshl_b32 s{t0}, s{sH}, 18")
        srd(a, SKA, pWS, 262144, add=f"s{t0}")
        a(f"s_add_u32 s{sKVB}, s{t0}, {16 << 18}")
        a(f"s_lshl_b32 s{sM0}, s{sWV}, 11")
        a(f"s_lshl_b32 s{t1}, s{sTB}, 2")
        a(f"s_lshl_b32 s{t0}, s{sQH}, 1\ns_add_u32 s{t0}, s{t0}, s{t1}\ns_lshr_b32 s{t2}, s{sKQ}, 1")
        a(f"s_add_u32 s{sTBt}, s{t0}, s{t2}")
        a(f"s_add_u32 s{sTAt}, s{t1}, s{sKQ}")
        a(f"s_lshl_b32 s{t0}, s{sTAt}, 5\ns_add_u32 s{t0}, s{t0}, s{sH}\ns_lshl_b32 s{t0}, s{t0}, 1\ns_add_u32 s{t0}, s{t0}, s{sQH}")
        a(f"s_lshl_b32 s{t0}, s{t0}, 10\ns_add_u32 s{sOA}, s{t0}, {OF_OFF}")
        a(f"s_lshl_b32 s{t0}, s{sTBt}, 5\ns_add_u32 s{t0}, s{t0}, s{sH}\ns_lshl_b32 s{t0}, s{t0}, 1\ns_and_b32 s{t1}, s{sKQ}, 1\ns_add_u32 s{t0}, s{t0}, s{t1}")
        a(f"s_lshl_b32 s{t0}, s{t0}, 10\ns_add_u32 s{sOB}, s{t0}, {OF_OFF + 32768}")
        a(f"s_lshl_b32 s{t0}, s{sTB}, 4\ns_add_u32 s{t0}, s{t0}, s{sH}\ns_lshl_b32 s{t0}, s{t0}, 7\ns_add_u32 s{sFA}, s{t0}, {FLO_OFF}")
        a(f"s_mov_b32 s{sOFF}, {(NPRE - 1) * 4096}")

    def late_setup():
        srd(a, S1, pWOA, WO_BYTES); srd(a, S2, pWOB, WO_BYTES); srd(a, S3, pOUT, X_BYTES)
        a(f"s_and_b32 s{t0}, s2, 7\ns_lshl_b32 s{t0}, s{t0}, 2\ns_bfe_u32 s{t1}, s2, 0x20003\ns_add_u32 s{t0}, s{t0}, s{t1}\ns_lshr_b32 s{sCB}, s2, 5")
        a(f"s_lshl_b32 s{t0}, s{t0}, 1\ns_add_u32 s{t2}, s{t0}, s{sQH}")
        a(f"s_lshr_b32 s{t0}, s{t2}, 2\ns_lshl_b32 s{t0}, s{t0}, 11\ns_add_u32 s{sFO}, s{t0}, {FLO_OFF}")
        a(f"s_lshl_b32 s{t0}, s{t2}, 16\ns_lshl_b32 s{t1}, s{sKQ}, 13\ns_add_u32 s{t0}, s{t0}, s{t1}\ns_add_u32 s{sOO}, s{t0}, {OF_OFF}")
        a(f"s_mul_i32 s{t0}, s{t2}, {32*896}\ns_lshl_b32 s{t1}, s{sCB}, 7\ns_add_u32 s{t0}, s{t0}, s{t1}\ns_lshl_b32 s{t1}, s{sKQ}, 5\ns_add_u32 s{sOUT}, s{t0}, s{t1}")
        a(f"s_lshl_b32 s{sWM0}, s{sWV}, 10")
        a(f"s_mov_b32 s{sHI}, 0x{f32bits(2.0**60):08x}\ns_and_b32 s{sA1}, s{sKQ}, 1\ns_sub_u32 s{sA1}, s{sA1}, 1")
        a(f"s_cmp_eq_u32 s{sWV}, 0\ns_cselect_b64 s[{sW0}:{sW0+1}], 1, 0")
        a(f"s_lshr_b32 s{t0}, s{sG16}, 3\ns_or_b32 s{t0}, s{t0}, s{sWV}\ns_cmp_eq_u32 s{t0}, 0\ns_cselect_b64 s[{sQM}:{sQM+1}], 1, 0")
        a(f"s_lshr_b32 s{t0}, s{sG16}, 3\ns_or_b32 s{sAS}, s{t0}, s{sQH}")
        a(f"s_lshl_b32 s{t0}, s{sG16}, 4\ns_add_u32 s{t0}, s{t0}, s{sTB}\ns_lshl_b32 s{t0}, s{t0}, 7\ns_add_u32 s{sFK}, s{t0}, {FL1_OFF}")
        a(f"s_lshr_b32 s{t0}, s{sH}, 2\ns_lshl_b32 s{t0}, s{t0}, 11\ns_add_u32 s{sFC}, s{t0}, {FL1_OFF}")
        a(f"v_lshrrev_b32 v{T}, 3, v0\ns_lshl_b32 s{t0}, s{sWV}, 3\nv_add_u32 v{T}, s{t0}, v{T}\nv_mul_u32_u24 v{T}, 896, v{T}")
        a(f"v_bfe_u32 v{T+1}, v0, 4, 1\nv_lshlrev_b32 v{T+1}, 2, v{T+1}\nv_and_b32 v{T+2}, 7, v0\nv_xor_b32 v{T+1}, v{T+1}, v{T+2}")
        a(f"v_lshl_add_u32 v{T}, v{T+1}, 4, v{T}\ns_min_u32 s{t0}, s{sCB}, 6\ns_lshl_b32 s{t0}, s{t0}, 7\nv_add_u32 v{vDW}, s{t0}, v{T}")

    def phase2_setup():
        a(f"s_lshr_b32 s{t0}, s{sWV}, 1\ns_lshl_b32 s{t0}, s{t0}, 16\ns_and_b32 s{t1}, s{sWV}, 1\ns_lshl_b32 s{t1}, s{t1}, 11\ns_add_u32 s{t0}, s{t0}, s{t1}\ns_add_u32 s{t0}, s{t0}, s{sKVB}")
        a(f"v_add_u32 v{vDB}, s{t0}, v{vL16}")
        a(f"s_lshl_b32 s{t0}, s{sKQ}, 12\ns_add_u32 s{t0}, s{t0}, {L_S[0]}")
        a(f"v_add_u32 v{vBA0}, s{t0}, v{vL16}")
        a(f"s_lshl_b32 s{t0}, s{sTB}, 14\ns_sub_u32 s{t0}, s{t0}, 32768\ns_add_u32 s{t0}, s{t0}, s{sM0}")
        a(f"v_add_u32 v{vDA}, s{t0}, v{vL16}")
        a(f"v_add_u32 v{vAA}, {L_AREG}, v{vBA0}")
        a(f"v_lshrrev_b32 v{vPA}, 5, v0\nv_add_u32 v{vPA}, -1, v{vPA}")
        a(f"v_mov_b32 v{vIDX}, 0xdddddddd")
        a(f"v_and_b32 v{vN}, 31, v0")

    low_setup = [f"s_sub_i32 s{t1}, s{sTB}, 2", f"s_max_i32 s{t1}, s{t1}, 0", f"v_and_b32 v{vAF}, 15, v0", f"v_max_u32 v{vAF}, s{t1}, v{vAF}",
                 f"v_min_u32 v{vAF}, s{sTB}, v{vAF}", f"v_bfe_u32 v{vLO}, v0, 4, 1", f"v_lshl_add_u32 v{vAF}, v{vLO}, 6, v{vAF}", f"v_lshlrev_b32 v{vAF}, 7, v{vAF}",
                 f"v_add_u32 v{vLA+1}, {L_MASK}, v{vL16}"]
    low_setup += [f"v_mov_b32 v{PO+r}, -1" for r in range(4)] + [f"v_or_b32 v{vPB}, s{sA1}, v{vPA}", f"v_mov_b32 v{vLO}, 0x{f32bits(2.0**-40):08x}"]

    def mask_setup():
        L = lab("L_nomask")
        a(f"s_cmp_lg_u32 s{sKQ}, 3\ns_cbranch_scc1 {L}")
        a(f"v_lshrrev_b32 v{T}, 5, v0\nv_lshlrev_b32 v{T}, 3, v{T}\nv_sub_u32 v{T}, v{vN}, v{T}")
        a(f"v_mov_b32 v{T+1}, 0xff800000")
        for r in range(0, 16, 2):
            a(f"v_cmp_le_i32 s[{t2}:{t3}], {16*(r>>3) + (r&7)}, v{T}")
            a(f"v_cmp_le_i32 s[{u0}:{u1}], {16*(r>>3) + (r&7) + 1}, v{T}")
            a("s_nop 0")
            a(f"v_cndmask_b32 v{MASK+r}, v{T+1}, 0, s[{t2}:{t3}]")
            a(f"v_cndmask_b32 v{MASK+r+1}, v{T+1}, 0, s[{u0}:{u1}]")
        for r in range(16): a(f"v_xor_b32 v{RED+r}, v{T+1}, v{MASK+r}")
        a(f"v_add_u32 v{T}, {L_MASK}, v{vL16}")
        for k in range(4):
            a(f"ds_write_b128 v{T}, {vr(RED+4*k,4)} offset:{k*1024}")
            a(f"ds_write_b128 v{T}, {vr(MASK+4*k,4)} offset:{4096 + k*1024}")
        a("s_waitcnt lgkmcnt(0)")
        a.label(L)

    def zero_acc():
        for k in ("B0", "B1", "A"): a(f"v_mfma_f32_32x32x16_bf16 {vr(O[k],16)}, {vr(S[1],4)}, {vr(S[1],4)}, 0")
    def pre_phase2(zero=True):
        a(f"s_lshl_b32 s{t0}, s{sQH}, 12\ns_add_u32 s{t0}, s{t0}, {L_QX}\nv_add_u32 v{T}, s{t0}, v{vL16}")
        for k in range(4): a(f"ds_read_b128 {vr(QB[0]+4*k,4)}, v{T} offset:{k*1024}")
        a(f"s_lshl_b32 s{t0}, s{sKQ}, 8\ns_add_u32 s{t0}, s{t0}, {L_G}\nv_lshl_add_u32 v{T+1}, v{vN}, 3, s{t0}")
        a(f"ds_read_b32 v{vGA}, v{T+1}")
        a(f"s_and_b32 s{t0}, s{sTBt}, 3\ns_lshl_b32 s{t0}, s{t0}, 8\ns_add_u32 s{t0}, s{t0}, {L_G + 4}\nv_lshl_add_u32 v{T+1}, v{vN}, 3, s{t0}")
        a(f"ds_read_b32 v{vGB}, v{T+1}")
        for r in range(4): a(f"v_mov_b32 v{S[1]+r}, 0")
        a("s_nop 1")
        if zero: zero_acc()
        a("s_waitcnt lgkmcnt(0)")

    def get_nonce(issued):
        L, D = lab("L_non"), lab("L_non_done")
        a(f"s_mov_b32 s{sCNT}, {SPIN_MAX}")
        if issued: a(f"s_branch {L}_chk")
        a.label(L)
        a(f"buffer_load_dwordx2 {vr(vNON,2)}, v{vZ}, {sr(S4,4)}, 0 offen sc1")
        a.label(L + "_chk")
        a("s_waitcnt vmcnt(0)")
        a(f"v_readfirstlane_b32 s{sNON}, v{vNON}\nv_readfirstlane_b32 s{sNON+1}, v{vNON+1}")
        a(f"s_sub_u32 s{sCNT}, s{sCNT}, 1\ns_cbranch_scc1 {D}")
        a(f"s_cmp_eq_u32 s{sNON}, 0\ns_cbranch_scc1 {L}")
        a.label(D)

    def poll(vaddr, soff, need, tmp):
        L, D = lab("L_poll"), lab("L_poll_done")
        a(f"s_mov_b32 s{sCNT}, {SPIN_MAX}")
        a.label(L)
        a(f"buffer_load_dwordx2 {vr(tmp,2)}, v{vaddr}, {sr(SWS,4)}, {soff} offen sc1")
        a("s_waitcnt vmcnt(0)")
        a(f"v_cmp_eq_u64 vcc, s[{sNON}:{sNON+1}], {vr(tmp,2)}")
        if need is not None: a(f"s_orn2_b64 vcc, vcc, s[{need}:{need+1}]")
        a(f"s_cmp_eq_u64 vcc, -1\ns_cbranch_scc1 {D}")
        a(f"s_sleep {OPT.get('sleep', 4)}")
        a(f"s_sub_u32 s{sCNT}, s{sCNT}, 1\ns_cbranch_scc0 {L}")
        a.label(D)

    def poll2(vaddr, soff, tmp):
        L, D = lab("L_poll"), lab("L_poll_done")
        ld = lambda k: a(f"buffer_load_dwordx2 {vr(tmp+2*k,2)}, v{vaddr}, {sr(SWS,4)}, {soff} offen sc1")
        a(f"s_mov_b32 s{sCNT}, {SPIN_MAX}")
        ld(0)
        a(f"s_sleep {OPT.get('p2sleep', 4)}")
        a.label(L)
        for k in range(2):
            ld(1 - k)
            a("s_waitcnt vmcnt(1)")
            a(f"v_cmp_ne_u64 vcc, s[{sNON}:{sNON+1}], {vr(tmp+2*k,2)}\ns_cbranch_vccz {D}")
        a(f"s_sub_u32 s{sCNT}, s{sCNT}, 1\ns_cbranch_scc0 {L}")
        a.label(D)

    def flag_store(soff):
        return f"s_mov_b64 exec, 1\nbuffer_store_dwordx2 {vr(vNON,2)}, v{vZ}, {sr(SWS,4)}, {soff} offen sc1\ns_mov_b64 exec, -1"

    a(f"v_mov_b32 v{vZ}, 0")
    a(f"s_cmp_lt_u32 s{sWV}, 4")
    a("s_cbranch_scc1 L_compute")
    XA, WA, WQA, GWR = 192, 196, 200, 202
    sLX, sLW, sOX, sOW = u0, u1, sOA, sOB
    a("v_lshrrev_b32 v2, 3, v0")
    a(f"s_lshl_b32 s{t0}, s{sTB}, 7\ns_lshl_b32 s{t1}, s{sKQ}, 5\ns_add_u32 s{t0}, s{t0}, s{t1}")
    a(f"v_add_u32 v2, s{t0}, v2")
    a("v_mul_u32_u24 v2, 896, v2")
    a("v_lshrrev_b32 v3, 4, v0\nv_and_b32 v4, 7, v0\nv_xor_b32 v3, v3, v4\nv_lshlrev_b32 v3, 4, v3\nv_xor_b32 v4, 64, v3")
    a(f"v_add_u32 v{XA}, v2, v3\nv_add_u32 v{XA+1}, v2, v4\nv_add_u32 v{XA+1}, 7168, v{XA+1}")
    a(f"v_add_u32 v{XA+2}, 14336, v{XA}\nv_add_u32 v{XA+3}, 14336, v{XA+1}")
    a(f"s_and_b32 s{t0}, s{sG16}, 7\ns_mul_i32 s{t0}, s{t0}, 224\ns_add_u32 s{t0}, s{t0}, 896")
    a(f"s_mul_i32 s{t1}, s{sKQ}, {16*2688}\ns_add_u32 s{t0}, s{t0}, s{t1}")
    for n in range(4):
        if n: a(f"v_add_u32 v2, {64*n}, v0")
        f_ = "v2" if n else "v0"
        a(f"v_mul_u32_u24 v3, 4682, {f_}\nv_lshrrev_b32 v3, 16, v3")
        a(f"v_mul_u32_u24 v4, 14, v3\nv_sub_u32 v4, {f_}, v4")
        a("v_and_b32 v5, 1, v3\nv_lshlrev_b32 v5, 2, v5\nv_bfe_u32 v6, v3, 1, 2\nv_and_b32 v3, 0x78, v3\nv_or3_b32 v3, v3, v5, v6")
        a("v_mul_u32_u24 v3, 2688, v3\nv_lshl_add_u32 v3, v4, 4, v3")
        a(f"v_add_u32 v{WA+n}, s{t0}, v3")
    a(f"s_lshl_b32 s{sOX}, s{sCB}, 7\ns_mul_i32 s{sOW}, s{sCB}, {64*2688}")
    a("s_waitcnt lgkmcnt(0)")
    a(f"s_lshl_b32 s{sLX}, s{sKQ}, 12")
    a(f"s_mul_i32 s{sLW}, s{sKQ}, 3584")
    srd(a, S1, pX, X_BYTES)
    a(f"s_cmp_lt_u32 s{sG16}, 8")
    a(f"s_cselect_b32 s{S2}, s{pWA}, s{pWB}\ns_cselect_b32 s{S2+1}, s{pWA+1}, s{pWB+1}")
    a(f"s_mov_b32 s{S2+2}, {W_BYTES}\ns_mov_b32 s{S2+3}, 0x00020000")
    vm = Ctr(a, "vmcnt", 63)
    sOQ, sLQ = sFA, sTBt
    nq = [0]
    def issue(c):
        slot = (c % 3) * R_SLOT
        for n in range(4):
            a(f"s_add_u32 m0, s{sLX}, {slot + n*1024}\ns_nop 0")
            a(f"buffer_load_dwordx4 v{XA+n}, {sr(S1,4)}, s{sOX} offen lds"); vm.issue(c)
            a(f"s_add_u32 m0, s{sLW}, {slot + 16384 + n*1024}")
            a("s_mov_b32 exec_hi, 0" if n == 3 else "s_nop 0")
            a(f"buffer_load_dwordx4 v{WA+n}, {sr(S2,4)}, s{sOW} offen lds"); vm.issue(c)
        a("s_mov_b32 exec_hi, -1")
        a(f"s_add_u32 s{sOX}, s{sOX}, 128\ns_add_u32 s{sOW}, s{sOW}, {64*2688}\ns_cmp_eq_u32 s{sOX}, 896")
        a(f"s_cselect_b32 s{sOX}, 0, s{sOX}\ns_cselect_b32 s{sOW}, 0, s{sOW}")
    def wq(k):
        for _ in range(k):
            a(f"s_add_u32 m0, s{sLQ}, {nq[0]*1024}\ns_nop 0")
            a(f"buffer_load_dwordx4 v{WQA}, {sr(S3,4)}, s{sOQ} offen lds"); vm.issue("q")
            a(f"s_add_u32 s{sOQ}, s{sOQ}, 43008\ns_cmp_eq_u32 s{sOQ}, {28*43008}\ns_cselect_b32 s{sOQ}, 0, s{sOQ}")
            nq[0] += 1
    st(1)
    for c in range(UP): issue(c)
    srd(a, S3, pWB, W_BYTES)
    a("v_lshrrev_b32 v2, 2, v0\nv_mul_u32_u24 v2, 2688, v2\nv_and_b32 v3, 3, v0\nv_lshl_add_u32 v2, v3, 4, v2")
    a(f"s_mul_i32 s{t0}, s{sH}, 56\nv_add_u32 v{WQA}, s{t0}, v2")
    a(f"s_mul_i32 s{sLQ}, s{sKQ}, 7168\ns_add_u32 s{sLQ}, s{sLQ}, {L_WQB}")
    a(f"s_mul_i32 s{t0}, s{sKQ}, 7\ns_lshl_b32 s{t1}, s{sCB}, 2\ns_add_u32 s{t0}, s{t0}, s{t1}")
    a(f"s_cmp_ge_u32 s{t0}, 28\ns_cselect_b32 s{t1}, 28, 0\ns_sub_u32 s{t0}, s{t0}, s{t1}\ns_mul_i32 s{sOQ}, s{t0}, 43008")
    a(f"s_mov_b32 s{sC0}, s{sOQ}")
    wq(WQAT[0])
    srd(a, SKA, pWA, W_BYTES)
    def wqa(SR, sL, off, lo=0, hi=7):
        for n in range(lo, hi):
            a(f"s_add_u32 m0, s{sL}, {n*1024 + off}\ns_nop 0")
            a(f"buffer_load_dwordx4 v{WQA}, {sr(SR,4)}, s{sC0} offen lds")
            a(f"s_add_u32 s{sC0}, s{sC0}, 43008\ns_cmp_eq_u32 s{sC0}, {28*43008}\ns_cselect_b32 s{sC0}, 0, s{sC0}")
    WAS = [int(x) for x in OPT.get("was", "0,0,1,0,0,0,0,0,2").split(",")]
    nwa = [0]
    def early_wqa(k):
        if k <= 0: return
        L = lab("L_wqa_later")
        a(f"s_cmp_lt_u32 s{sG16}, 8\ns_cbranch_scc0 {L}")
        wqa(SKA, sLQ, L_WQA - L_WQB, nwa[0], nwa[0] + k)
        a.label(L)
        nwa[0] += k
    early_wqa(WAS[0])
    a(f"v_mov_b32 v2, {L_CNT}\nds_write_b32 v2, v{vZ}")
    srd(a, S4, pGW, 896)
    a(f"s_mul_i32 s{t0}, s{sKQ}, 112\ns_lshl_b32 s{t1}, s{sCB}, 6\ns_add_u32 s{t1}, s{t1}, s{t0}")
    a(f"v_min_u32 v2, 55, v0\nv_add_u32 v3, s{t1}, v2")
    a(f"v_add_u32 v2, s{t0}, v2\nv_lshlrev_b32 v2, 6, v2\nv_add_u32 v{GWR+4}, {L_WQB + 56}, v2")
    for i in range(2):
        a(f"v_add_u32 v4, {56*i}, v3\nv_subrev_u32 v5, 448, v4\nv_min_u32 v4, v4, v5\nv_lshlrev_b32 v4, 1, v4")
        a(f"buffer_load_ushort v{GWR+i}, v4, {sr(S4,4)}, 0 offen"); vm.issue("gw")
    srd(a, S4, pDBG, 256)
    a("s_waitcnt lgkmcnt(0)")
    for c in range(7):
        vm.wait(c)
        if c in (0, 3, 6): st(2 + c // 3)
        a("s_barrier")
        nx = c + 2 if UP == 2 else (c + 2 if c >= 1 else None)
        if nx is not None and nx <= 6: issue(nx)
        wq(WQAT[c + 1])
        early_wqa(WAS[c + 1])
        if c == 5: a(f"buffer_load_dwordx2 {vr(vNON,2)}, v{vZ}, {sr(S4,4)}, 0 offen sc1"); vm.issue("n")
    assert nq[0] == 7
    get_nonce(True)
    for i in range(2): a(f"ds_write_b16 v{GWR+4}, v{GWR+i} offset:{56*64*i}")
    a("s_waitcnt lgkmcnt(0)")
    early_wqa(WAS[8])
    st(5)
    a("s_barrier")
    early_wqa(7 - nwa[0])
    srd(a, S4, pWA, W_BYTES)
    scalar_setup()
    phase2_setup()
    late_setup()
    mask_setup()
    for x in low_setup: a(x)
    a(f"v_mov_b32 v240, v{vL16}")
    a(f"v_and_b32 v{XA}, 15, v0\nv_lshlrev_b32 v{XA}, 7, v{XA}")
    a(f"s_lshl_b32 s{u1}, s{sKQ}, 11\ns_lshl_b32 s{t1}, s{sKQ}, 13\ns_add_u32 s{t3}, s{sFC}, s{t1}\ns_add_u32 s{t3}, s{t3}, {8*2048}")
    a(f"s_add_u32 s{t1}, s{u1}, s{sKVB}\nv_add_u32 v{XA+1}, s{t1}, v{vL16}")
    a(f"s_mul_i32 s{t2}, s{sKQ}, 7168\ns_cmp_lt_u32 s{sG16}, 8")
    a("s_barrier")
    a("s_cbranch_scc1 L_wqa_done")
    wqa(S4, t2, L_WQA)
    a.label("L_wqa_done")
    a("s_waitcnt vmcnt(0)")
    st(7)
    a("s_barrier")
    a(f"s_cmp_ge_u32 s{sKQ}, 2\ns_cbranch_scc1 L_polled")
    poll(XA, f"s{t3}", None, XA + 2)
    st(6)
    for s in range(NPRE):
        a(f"s_mov_b32 s{u0}, {s*4096}")
        for kq in range(4):
            a(f"s_add_u32 m0, s{u1}, {L_S[s] + kq*4096}\ns_nop 0")
            a(f"buffer_load_dwordx4 v{XA+1}, {sr(SWS,4)}, s{u0} offen sc1 lds")
            a(f"buffer_load_dwordx4 v{XA+1}, {sr(SWS,4)}, s{u0} offen offset:1024 sc1 lds")
            a(f"s_add_u32 s{u0}, s{u0}, 65536")
    a.label("L_polled")
    pre_phase2()
    a(f"s_waitcnt vmcnt({8*(NPRE-1)})")
    a("s_branch L_phase2")

    a.label("L_compute")
    vST, vVC, XAD, WAD, WQD, GWD = 240, 241, 242, 246, 14, 15
    XR = 16; ACC = [128 + 16*u for u in range(4)]
    WF = [[192 + 16*b + 4*u for u in range(4)] for b in range(2)]
    PK = 192; DAC = 248; XAO = 216; vWQ = 13
    WF = [[192, 196], [204, 208]]; XO = [200, 212]
    a("v_and_b32 v9, 31, v0\nv_lshrrev_b32 v10, 5, v0\nv_bfe_u32 v11, v0, 1, 3")
    a(f"s_lshl_b32 s{t0}, s{sKQ}, 12")
    a(f"v_lshlrev_b32 v12, 7, v9\nv_add_u32 v12, s{t0}, v12")
    for ks in range(4):
        a(f"v_or_b32 v13, {2*ks}, v10\nv_xor_b32 v13, v13, v11\nv_lshl_add_u32 v{XAD+ks}, v13, 4, v12")
    a("v_bfe_u32 v12, v0, 4, 1\nv_lshlrev_b32 v12, 5, v12\nv_and_b32 v13, 3, v0\nv_lshl_add_u32 v12, v13, 3, v12")
    a("v_bfe_u32 v13, v0, 2, 2")
    a("v_lshl_add_u32 v11, v10, 2, v13")
    a(f"s_and_b32 s{t0}, s{sKQ}, 1\ns_mul_i32 s{t0}, s{t0}, 112")
    a(f"v_mul_u32_u24 v11, 448, v11\nv_add3_u32 v{WAD}, v11, v12, s{t0}")
    for ks in range(4): a(f"v_xor_b32 v{XAO+ks}, 4096, v{XAD+ks}")
    a("v_lshl_add_u32 v11, v10, 3, v13")
    a(f"v_lshl_add_u32 v11, v11, 6, v12\nv_add_u32 v{WQD}, {L_WQB}, v11")
    a(f"v_mov_b32 v{vVC}, 0")
    a("s_mov_b32 exec_lo, 0x10000000\ns_mov_b32 exec_hi, 0x10000000")
    a(f"v_mov_b32 v{vVC}, 0x3f803f80")
    a("s_mov_b64 exec, -1")
    a("v_and_b32 v11, 0x33, v0\nv_bfe_u32 v12, v0, 2, 1\nv_lshl_or_b32 v11, v12, 3, v11\nv_bfe_u32 v12, v0, 3, 1\nv_lshl_or_b32 v11, v12, 2, v11")
    a(f"v_lshlrev_b32 v{vST}, 4, v11")
    a("s_waitcnt lgkmcnt(0)")
    srd(a, S4, pDBG, 256)
    a(f"s_or_b32 s{t0}, s2, s{sKQ}\ns_cmp_lg_u32 s{t0}, 0\ns_cbranch_scc1 L_notag")
    a(f"s_memrealtime s[{sNON}:{sNON+1}]\ns_waitcnt lgkmcnt(0)")
    a(f"s_or_b32 s{sNON}, s{sNON}, 1\ns_xor_b32 s{sNON+1}, s{sNON+1}, 0x5bd1e995")
    a(f"v_mov_b32 v{vNON}, s{sNON}\nv_mov_b32 v{vNON+1}, s{sNON+1}")
    a("s_mov_b64 exec, 1")
    a(f"buffer_store_dwordx2 {vr(vNON,2)}, v{vZ}, {sr(S4,4)}, 0 offen sc1")
    a("s_mov_b64 exec, -1")
    a.label("L_notag")
    a("s_waitcnt vmcnt(0)")
    scalar_setup()
    phase2_setup()
    late_setup()
    a(f"s_lshr_b32 s{t0}, s{sG16}, 3\ns_lshl_b32 s{t0}, s{t0}, 2\ns_and_b32 s{t1}, s{sG16}, 3\ns_add_u32 s{t0}, s{t0}, s{t1}")
    a(f"s_lshl_b32 s{t0}, s{t0}, 1\ns_and_b32 s{t1}, s{sKQ}, 1\ns_add_u32 s{t0}, s{t0}, s{t1}")
    a(f"s_lshl_b32 s{t0}, s{t0}, 7\ns_add_u32 s{t0}, s{t0}, s{sTAt}\ns_lshl_b32 s{u0}, s{t0}, 12")
    a(f"s_bitcmp1_b32 s{sG16}, 2")
    a("s_cbranch_scc1 L_1a_V")
    def reads1a(g):
        b, ks = g & 1, g & 3
        tr = lambda u: [(f"ds_read_b64_tr_b16 {vr(WF[b][u]+2*e,2)}, v{WAD} offset:{16384 + ks*3584 + e*224 + u*56}") for e in range(2)]
        return ([(f"ds_read_b128 {vr(XR+4*g,4)}, v{XAD+ks}", 0)] + [(x, 0) for x in tr(0)] +
                [(f"ds_read_b128 {vr(XO[b],4)}, v{XAO+ks}", 1)] + [(x, 2) for x in tr(1)])
    PKS = [192, 216, 224, 232]
    def kvstore(u, offs=(u0, t0, t1, t2)):
        so = offs[u]
        a(f"buffer_store_dwordx4 {vr(PKS[u],4)}, v{vST}, {sr(SWS,4)}, s{so} offen sc1")
        a(f"buffer_store_dwordx4 {vr(PKS[u]+4,4)}, v{vST}, {sr(SWS,4)}, s{so} offen offset:1024 sc1")
    for ty in "KV":
        a.label("L_1a_" + ty)
        if ty == "V": a(f"s_add_u32 s{u0}, s{u0}, 2048")
        st(1)
        a("s_barrier")
        st(2)
        lg = Ctr(a, "lgkmcnt", 15)
        def rd1a(g, lo, hi):
            for x, k in reads1a(g)[lo:hi]:
                a(x); lg.issue((g, k))
        rd1a(0, 0, 6)
        for g in range(28):
            b = g & 1
            edge = g + 1 < 28 and (g + 1) & 3 == 0
            cut = [0, 0, 0, 4, 6] if edge else [0, 3, 6, 6, 6]
            for u in range(4):
                if edge and u == 2:
                    c = (g + 1) >> 2
                    lg.wait_all()
                    if c == 6: get_nonce(True)
                    a("s_barrier")
                    if c in (3, 6): st(2 + c // 3)
                    d = R_SLOT if c % 3 else -2 * R_SLOT
                    for r in (XAD, WAD, XAO): a(f"v_add_u32 v{r}, {d & 0xffffffff}, v{r}")
                lg.wait([(g, u)])
                D = vr(ACC[u], 16); C = "0" if g == 0 else D
                X, W = vr(XO[b] if u & 1 else XR + 4*g, 4), vr(WF[b][u >> 1], 4)
                a(f"v_mfma_f32_32x32x16_bf16 {D}, {X}, {W}, {C}" if ty == "V" else f"v_mfma_f32_32x32x16_bf16 {D}, {W}, {X}, {C}")
                if g + 1 < 28: rd1a(g + 1, cut[u], cut[u+1])
                if edge and u == 3:
                    for r in (XAD + 1, XAO + 1): a(f"v_add_u32 v{r}, {d & 0xffffffff}, v{r}")
                    if c == 4: a(f"buffer_load_dwordx2 {vr(vNON,2)}, v{vZ}, {sr(S4,4)}, 0 offen sc1")
                if g >= 4 and g & 3 == 0 and u >= 2:
                    for r in (XAD + u, XAO + u): a(f"v_add_u32 v{r}, {d & 0xffffffff}, v{r}")
        st(5)
        a(f"s_xor_b32 s{t0}, s{u0}, 4096\ns_add_u32 s{t1}, s{u0}, 262144\ns_add_u32 s{t2}, s{t0}, 262144")
        if ty == "V": a(f"v_mov_b32 v{vST}, v{vL16}")
        else: a("s_nop 0")
        a(f"s_cmp_lt_u32 s{sG16}, {8 if ADEL else 0}")
        a("s_nop 3")
        for u in range(4):
            D = ACC[u]; P = PKS[u]
            for r in range(8): a(f"v_cvt_pk_bf16_f32 v{P+r}, v{D+2*r}, v{D+2*r+1}")
            if ty == "V":
                a("s_mov_b32 exec_lo, 0xf0000000\ns_mov_b32 exec_hi, 0xf0000000")
                for r in range(8): a(f"v_mov_b32 v{P+r}, v{vVC}")
            else:
                a(f"s_mov_b32 exec_lo, 0\nv_mov_b32 v{P+6}, 0\nv_mov_b32 v{P+7}, 0")
            a("s_mov_b64 exec, -1")
            L = lab("L_nost")
            a(f"s_cbranch_scc1 {L}")
            kvstore(u)
            a.label(L)
        if ty == "K": a("s_branch L_1a_join")
    a.label("L_1a_join")
    lg = Ctr(a, "lgkmcnt", 15)
    def sendflag():
        a(f"v_mov_b32 v{T}, {L_CNT}\nv_mov_b32 v{T+1}, 1")
        a("s_waitcnt vmcnt(0)")
        a(f"s_mov_b64 exec, 1\nds_add_rtn_u32 v{T+1}, v{T}, v{T+1}\ns_waitcnt lgkmcnt(0)")
        lg.q = []
        a(f"v_cmp_eq_u32 vcc, 3, v{T+1}\ns_cbranch_vccz L_noflag")
        a(f"buffer_store_dwordx2 {vr(vNON,2)}, v{vZ}, {sr(SWS,4)}, s{sFK} offen sc1")
        a.label("L_noflag")
        a("s_mov_b64 exec, -1")
        st(7)
    a("s_barrier")
    st(6)
    NB = 8; LOOK = 6
    QBUF = [160 + 4*i for i in range(NB)]
    def qpass(D, off):
        def rdq(g):
            for e in range(2):
                a(f"ds_read_b64_tr_b16 {vr(QBUF[g % NB]+2*e,2)}, v{WQD} offset:{off + g*1024 + e*256}"); lg.issue(g)
        for g in range(LOOK): rdq(g)
        for g in range(28):
            lg.wait(g)
            a(f"v_mfma_f32_32x32x16_bf16 {vr(D,16)}, {vr(QBUF[g % NB],4)}, {vr(XR+4*g,4)}, {'0' if g == 0 else vr(D,16)}")
            if g + LOOK < 28: rdq(g + LOOK)
    D = ACC[1]
    qpass(D, 0)
    if "fine" in OPT: st(1)
    if ADEL == 1:
        a(f"s_cmp_lt_u32 s{sG16}, 8\ns_cbranch_scc0 L_stored")
        for u in range(4): kvstore(u)
        a.label("L_stored")
    if ADEL == 3: a(f"s_cmp_lt_u32 s{sG16}, 8\ns_cbranch_scc1 L_noflag2")
    sendflag()
    a.label("L_noflag2")
    a("s_nop 7")
    a("s_barrier")
    a(f"s_lshl_b32 s{t0}, s{sKQ}, 8\ns_add_u32 s{t0}, s{t0}, {L_G}")
    a(f"v_lshl_add_u32 v{DAC+2}, v{vN}, 3, s{t0}")
    a(f"s_lshl_b32 s{t0}, s{sKQ}, 11\ns_add_u32 s{t0}, s{t0}, {L_QX}")
    a(f"v_add_u32 v{DAC+3}, s{t0}, v{vL16}")
    a(f"v_mov_b32 v{T+2}, 0x{QSCALE:08x}")
    a(f"v_mov_b32 v{DAC}, v{D+12}")
    P = 208
    for r in range(0, 16, 2): a(f"v_pk_mul_f32 {vr(D+r,2)}, {vr(D+r,2)}, {vr(T+2,2)} op_sel_hi:[1,0]")
    for r in range(8): a(f"v_cvt_pk_bf16_f32 v{P+r}, v{D+2*r}, v{D+2*r+1}")
    a(f"s_mov_b32 exec_lo, 0\nv_mov_b32 v{P+6}, 0\nv_mov_b32 v{P+7}, 0\ns_mov_b64 exec, -1")
    a(f"ds_write_b128 v{DAC+3}, {vr(P,4)}")
    a(f"ds_write_b128 v{DAC+3}, {vr(P+4,4)} offset:1024")
    for x in [f"v_cvt_pk_bf16_f32 v{DAC}, v{DAC}, v{DAC}", f"v_lshlrev_b32 v{DAC}, 16, v{DAC}",
              f"v_mul_f32 v{DAC}, 0x{LOG2E ^ 0x80000000:08x}, v{DAC}", f"v_exp_f32 v{DAC}, v{DAC}", "s_nop 0",
              f"v_add_f32 v{DAC}, 1.0, v{DAC}", f"v_rcp_f32 v{DAC}, v{DAC}", "s_nop 0",
              f"v_cvt_pk_bf16_f32 v{DAC}, v{DAC}, v{DAC}", f"v_lshlrev_b32 v{DAC}, 16, v{DAC}",
              f"v_sub_f32 v{DAC+1}, 1.0, v{DAC}", f"v_cvt_pk_bf16_f32 v{DAC+1}, v{DAC+1}, v{DAC+1}", f"v_lshlrev_b32 v{DAC+1}, 16, v{DAC+1}",
              "s_mov_b32 exec_lo, 0", f"ds_write_b64 v{DAC+2}, {vr(DAC,2)}", "s_mov_b64 exec, -1"]: a(x)
    a("s_waitcnt lgkmcnt(0)")
    a("s_barrier")
    if "fine" in OPT: st(4)
    qpass(D, L_WQA - L_WQB)
    for x in low_setup: a(x)
    for r in range(0, 16, 2): a(f"v_pk_mul_f32 {vr(D+r,2)}, {vr(D+r,2)}, {vr(T+2,2)} op_sel_hi:[1,0]")
    for r in range(8): a(f"v_cvt_pk_bf16_f32 v{QA+r}, v{D+2*r}, v{D+2*r+1}")
    a(f"v_and_b32 v{QA+6}, v{vPA}, v{QA+6}\nv_and_b32 v{QA+7}, v{vPA}, v{QA+7}")
    for k in range(4): a(f"ds_read_b128 {vr(MASK+4*k,4)}, v{vLA+1} offset:{k*1024}")
    pre_phase2()
    a(f"s_xor_b32 s{sK0}, s{u0}, 4096\ns_add_u32 s{sK1}, s{u0}, 262144\ns_add_u32 s{sK2}, s{sK0}, 262144")

    class St: pass
    cur = St()
    def btile(s, q): return dict(key=("B", s), Q=QB[q], O=O[f"B{q}"], mask=False, addr=vBA0, off=L_S[s % 4], s=S[q])
    def atile(i, m, sb): return dict(key=("A", i), Q=QA, O=O["A"], mask=m, addr=vAA, off=i * 4096, s=sb)
    Btiles = [btile(s, q) for s in range(16) for q in range(2)]
    At = [atile(i, i in (0, 8), [S[0], RED, S[1]][i % 3]) for i in range(9)]
    seqC = []
    for s in range(16):
        seqC += Btiles[2*s:2*s+2]
        if APOS <= s < APOS + 3: seqC += At[3*(s-APOS):3*(s-APOS)+3]
    seqs = [seqC, Btiles]
    FOFF = {"K0": 0, "K1": 1024, "V0": 2048, "V1": 3072}
    def load(lg, f, t):
        a(f"ds_read_b128 {vr(FR[f],4)}, v{t['addr']} offset:{t['off'] + FOFF[f]}"); lg.issue(f)
    def reload_after(lg, f, tiles, i):
        if i + 1 < len(tiles) and tiles[i+1]["key"] != tiles[i]["key"]: load(lg, f, tiles[i+1])

    def dmaB(s):
        return [f"s_add_u32 m0, s{sM0}, {L_S[s % 4]}\ns_add_u32 s{sOFF}, s{sOFF}, 4096",
                f"buffer_load_dwordx4 v{vDB}, {sr(SWS,4)}, s{sOFF} offen sc1 lds",
                f"buffer_load_dwordx4 v{vDB}, {sr(SWS,4)}, s{sOFF} offen offset:1024 sc1 lds"]
    def dmaA(i):
        return [f"s_add_u32 m0, s{sM0}, {L_AREG + i*16384}" + (f"\nv_add_u32 v{vDA}, 16384, v{vDA}" if i else "\ns_nop 0"),
                f"buffer_load_dwordx4 v{vDA}, {sr(SKA,4)}, 0 offen sc1 lds",
                f"buffer_load_dwordx4 v{vDA}, {sr(SKA,4)}, 0 offen offset:1024 sc1 lds"]
    def qk(lg, tiles, i, j):
        t = tiles[i]; D = vr(t["s"], 16)
        lg.wait([f"K{j}"] + (["M"] if t["mask"] else []))
        C = D if j == 1 else (vr(MASK, 16) if t["mask"] else "0")
        a(f"v_mfma_f32_32x32x16_bf16 {D}, {vr(FR[f'K{j}'],4)}, {vr(t['Q']+4*j,4)}, {C}")
        reload_after(lg, f"K{j}", tiles, i)
    def pv(lg, tiles, i, j, merge=()):
        t = tiles[i]
        lg.wait([f"V{j}"] + list(merge))
        a(f"v_smfmac_f32_32x32x32_bf16 {vr(t['O'],16)}, {vr(FR[f'V{j}'],4)}, {vr(t['s']+8*j,8)}, v{vIDX}")
        reload_after(lg, f"V{j}", tiles, i)
    def slot(lg, tiles, i, extra=(), late=()):
        s0 = tiles[i]["s"]
        at = {r: [] for r in range(16)}
        xp = (1, 3, 4, 6, 7, 9, 10, 11, 13, 14, 15)
        for k, x in enumerate(extra): at[xp[(2 * k + 1) * len(xp) // (2 * len(extra))]].append(x)
        for k, x in enumerate(late): at[13 + k * 3 // len(late)].append(x)
        isB1 = tiles[i]["key"][0] == "B" and tiles[i]["Q"] == QB[1]
        for r in range(16):
            if r == 2 and i > 0: pv(lg, tiles, i - 1, 1, merge=("K0", "K1") if isB1 else ())
            if r == 5 and i + 1 < len(tiles): qk(lg, tiles, i + 1, 0)
            if r == 8 and i + 1 < len(tiles): qk(lg, tiles, i + 1, 1)
            if r == 12: pv(lg, tiles, i, 0)
            for x in at[r]: x() if callable(x) else a(x)
            a(f"v_exp_f32 v{s0+r}, v{s0+r}")
    def finalize(tag, R, n, L, G, vP, sDst, pk):
        o = [f"v_rcp_f32 v{T+1}, v{L}", f"v_med3_f32 v{T+2}, v{L}, v{vLO}, s{sHI}", f"v_mul_f32 v{T}, v{T+1}, v{G}"]
        if pk: o += [f"v_pk_mul_f32 {vr(R+r,2)}, {vr(R+r,2)}, {vr(T,2)} op_sel_hi:[1,0]" for r in range(0, n, 2)]
        else: o += [f"v_mul_f32 v{R+r}, v{R+r}, v{T}" for r in range(n)]
        o += [f"v_mul_f32 v{T+1}, v{R}, v{R+1}"] + [f"v_fma_f32 v{T+1}, v{R+r}, v{R+r+1}, v{T+1}" for r in range(2, n, 2)]
        o += [f"v_fma_f32 v{T+1}, v{T+1}, 0, v{L}", f"v_cmp_neq_f32 vcc, v{T+1}, v{T+2}"]
        def br():
            a(f"s_cbranch_vccnz L_slow{tag}"); a.label(f"L_fin{tag}")
        o.append(br)
        o += [f"v_cvt_pk_bf16_f32 v{R+r}, v{R+2*r}, v{R+2*r+1}" for r in range(n // 2)]
        o += [f"v_and_b32 v{R+n//2-2}, v{vP}, v{R+n//2-2}", f"v_and_b32 v{R+n//2-1}, v{vP}, v{R+n//2-1}"]
        o += [f"buffer_store_dwordx4 {vr(R+4*j,4)}, v{vL16}, {sr(SWS,4)}, s{sDst} offen offset:{j*1024} sc1" for j in range(n // 8)]
        return o
    def pkadd(D, A_, B_, n=8): return [f"v_pk_add_f32 {vr(D+r,2)}, {vr(A_+r,2)}, {vr(B_+r,2)}" for r in range(0, n, 2)]
    def dmaW(n, base, SR):
        return f"s_add_u32 m0, s{sWM0}, {base + n*8192}\ns_mov_b32 s{t1}, {n*64*896}\nbuffer_load_dwordx4 v{vDW}, {sr(SR,4)}, s{t1} offen lds"
    DROP = OPT.get("drop", "").split(",")
    def V(x, tag):
        def f():
            if tag in DROP: return
            a(x); cur.vm.issue(tag)
        return f
    def Lg(x, tag):
        def f():
            if tag in DROP: return
            a(x); cur.lg.issue(tag)
        return f
    def trio(d, tag): return [d[0], V(d[1], tag), V(d[2], tag)]
    OFA = 16
    sOA2 = u1
    P = APOS
    OA = O["A"]
    def mk():
        return {(s, q): [] for s in range(16) for q in range(5)}
    sched = mk()
    for s in range(NPRE - 3, 13): sched[s, 0] += trio(dmaB(s + 3), f"B{s+3}")
    AC = int(OPT.get("ac", 5))
    if P - AC >= 3:
        for i in range(3): sched[AC + i, 1] += trio(dmaA(i), f"A{i}")
    else:
        sched[AC, 0] += trio(dmaA(0), "A0"); sched[AC, 1] += trio(dmaA(1), "A1"); sched[AC + 1, 1] += trio(dmaA(2), "A2")
    POS = int(OPT.get("pos", P - 1))
    sched[POS, 1] += [V(f"buffer_store_dwordx4 {vr(PO,4)}, v{vL16}, {sr(SWS,4)}, s{so} offen sc1", "po") for so in (sOA, sOB)]
    sched[POS+2, 0] += [V(f"s_mov_b64 exec, s[{sW0}:{sW0+1}]\nbuffer_store_dwordx2 {vr(vNON,2)}, v{vZ}, {sr(SWS,4)}, s{sFA} offen sc1\ns_mov_b64 exec, -1", "f2")]
    def chk():
        cur.vm.wait("fl")
        if "fl" not in DROP: a(f"v_cmp_ne_u64 vcc, s[{sNON}:{sNON+1}], {vr(vLA+2,2)}\ns_cbranch_vccnz L_pflag_spin")
        a.label("L_pflag_ok")
    sched[12, 0] = [f"v_and_b32 v{vFL}, 15, v0", f"v_lshlrev_b32 v{vFL}, 7, v{vFL}",
                    V(f"buffer_load_dwordx2 {vr(vLA+2,2)}, v{vFL}, {sr(SWS,4)}, s{sFO} offen sc1", "fl")] + sched[12, 0]
    wo = [V(dmaW(k, L_WOB, S2), "wob") for k in (3, 4, 5, 6)] + [V(dmaW(k, L_WOA, S1), "woa") for k in range(7)]
    for (s_, q_), n in [((P+2, 1), 2), ((P+3, 1), 2), ((P+4, 1), 2), ((P+5, 1), 2), ((12, 1) if P < 7 else (13, 0), 3)] if P < 8 else [((10, 1), 2), ((11, 1), 2), ((12, 1), 3), ((13, 0), 4)]:
        sched[s_, q_] += wo[:n]; wo = wo[n:]
    assert not wo
    ol = [V(f"buffer_load_dwordx4 {vr(OFA+4*kk,4)}, v{vL16}, {sr(SWS,4)}, s{sOO if kk < 4 else sOA2} offen offset:{(kk&3)*1024} sc1", "ofa") for kk in range(8)]
    if P < 8:
        sched[13, 1] += [chk] + ol[0:2]; sched[14, 0] += ol[2:4] + [f"s_add_u32 s{sOA2}, s{sOO}, 4096"]; sched[14, 1] += ol[4:6]; sched[15, 0] += ol[6:8]
    else:
        sched[13, 1] += [chk]; sched[14, 0] += ol[0:2]; sched[14, 1] += ol[2:4] + [f"s_add_u32 s{sOA2}, s{sOO}, 4096"] + ol[4:5]; sched[15, 0] += ol[5:8]
    sched[15, 0] += [f"s_mul_i32 s{t0}, s{sQH}, 24576", f"v_add_u32 v{vBW}, s{t0}, v{vL16}",
                     f"s_add_u32 s{t0}, s{t0}, 1536", f"v_lshl_add_u32 v{vBL}, v{vN}, 4, s{t0}",
                     f"s_and_b32 s{t0}, s{sWM0}, 0x1800\ns_add_u32 s{t0}, s{t0}, {L_WOB + 16384}", f"v_lshl_add_u32 v{vBX}, v0, 2, s{t0}"]
    px = [mk(), mk()]
    def held(us):
        def f_():
            L = lab("L_held")
            a(f"s_cmp_lg_u32 s{sAS}, 0\ns_cbranch_scc1 {L}")
            for u in us: kvstore(u, (u0, sK0, sK1, sK2))
            a.label(L)
        return f_
    assert NPRE == 4
    sched[0, 0] += [held([0]), held([1])]; sched[0, 1] += [held([2]), held([3])]
    sched[2, 0] += [V(f"s_mov_b64 exec, s[{sQM}:{sQM+1}]\nbuffer_store_dwordx2 {vr(vNON,2)}, v{vZ}, {sr(SWS,4)}, s{sFK} offen sc1\ns_mov_b64 exec, -1", "f1")]
    def chka():
        cur.vm.wait("af")
        a(f"v_cmp_ne_u64 vcc, s[{sNON}:{sNON+1}], {vr(vLA+2,2)}\ns_cbranch_vccnz L_aflag_spin")
        a.label("L_aflag_ok")
    sched[AC-1, 0] = [V(f"buffer_load_dwordx2 {vr(vLA+2,2)}, v{vAF}, {sr(SWS,4)}, s{sFC} offen sc1", "af")] + sched[AC-1, 0]
    sched[AC, 0] = [chka] + sched[AC, 0]
    rdmask = lambda m: [Lg(f"ds_read_b128 {vr(MASK+4*k,4)}, v{vLA+1} offset:{m*4096 + k*1024}", "M") for k in range(4)]
    px[0][P, 3] += rdmask(1)
    f = finalize("A", OA, 16, vLA, vGA, vPA, sOA, False)
    if "fin" in DROP: f = [lambda: a.label("L_finA")] + [f"v_mov_b32 v{OA+r}, 0" for r in range(8)] + f[-2:]
    f = [f"v_mov_b32 v{vLA}, v{OA+12}\nv_mov_b32 v{T}, v{OA+12}", "s_nop 0", f"v_permlane32_swap_b32 v{T}, v{vLA}"] + f
    h1 = len(f) // 2
    px[0][P + 3, 1] += f[:h1]; px[0][P + 4, 0] += f[h1:]
    for hf in range(2):
        px[hf][P + PFAT, 1] += [f"s_lshr_b32 s{t0}, s2, 3\ns_lshl_b32 s{t0}, s{t0}, 2\ns_add_u32 s{t0}, s{t0}, s{sKQ}\ns_mul_i32 s{t0}, s{t0}, {49*64}",
                             f"v_min_u32 v{T}, 24, v0", f"v_lshlrev_b32 v{T}, 7, v{T}", V(f"buffer_load_dword v{vFL}, v{T}, {sr([S1, S2][hf],4)}, s{t0} offen", "pf")]
    def merge(x, y):
        o = [((k + 0.5) / len(x), 0, k, v) for k, v in enumerate(x)] + [((k + 0.5) / len(y), 1, k, v) for k, v in enumerate(y)]
        return [v for *_, v in sorted(o, key=lambda t: t[:3])]
    def top(s):
        cur.vm.wait(f"B{s+1}")
        if s == P: cur.vm.wait("A1")
        if s == P + 1: cur.vm.wait("A2")
        if s == POS + 2: cur.vm.wait("po")
        if s == P + 2: cur.lg.wait("M")
        if s == 15: cur.vm.wait("woa")
        a("s_barrier")
        st.step(s + (1 if "early" in OPT else -1))
        if s == P: st(9)
        if s == 12: st(10)
        if "fine" in OPT and s in (0, 1): st(2 + s)
    a.label("L_phase2")
    cur.lg = Ctr(a, "lgkmcnt", 15); cur.vm = Ctr(a, "vmcnt", 63)
    for k in range(1, NPRE):
        for _ in range(8): cur.vm.issue(f"B{k}")
    st(8)
    a("s_barrier")
    tiles = seqs[1]
    for f_ in ("K0", "K1", "V0", "V1"): load(cur.lg, f_, tiles[0])
    qk(cur.lg, tiles, 0, 0); qk(cur.lg, tiles, 0, 1)
    a("s_nop 9")
    for s in range(P):
        top(s)
        for q in range(2): slot(cur.lg, tiles, 2*s + q, sched[s, q])
    a(f"s_cmp_lg_u32 s{sQH}, 0\ns_cbranch_scc1 L_pathL")
    states = []
    JOIN = P + 5
    lg0, vm0 = cur.lg, cur.vm
    for hf in range(2):
        if hf: a.label("L_pathL")
        tiles = seqs[hf]
        cur.lg, cur.vm = lg0.clone(a), vm0.clone(a)
        idx = 2 * P
        for s in range(P, JOIN):
            top(s)
            for q in range(5 if (hf == 0 and P <= s < P + 3) else 2):
                slot(cur.lg, tiles, idx, merge(sched[s, q], px[hf][s, q])); idx += 1
        states.append((list(cur.lg.q), list(cur.vm.q)))
        if hf == 0: a("s_branch L_B")
    assert states[0] == states[1], states
    a.label("L_B")
    for s in range(JOIN, 16):
        top(s)
        slot(cur.lg, tiles, idx, sched[s, 0]); idx += 1
        if s < 15:
            slot(cur.lg, tiles, idx, sched[s, 1]); idx += 1
    assert idx == len(tiles) - 1
    lg = cur.lg
    RB, LB = 160, 184
    ACC3 = [128, 144]; W3 = [72, 80, 88, 96]; OFB = 192
    vT3 = [2, 3]; vT3b = [4, 5]; vOUT = 8
    addr3 = [f"v_bfe_u32 v{T}, v0, 2, 2", f"v_lshlrev_b32 v{T}, 7, v{T}", f"v_bfe_u32 v{T+1}, v0, 4, 1", f"v_lshl_add_u32 v{T}, v{T+1}, 5, v{T}",
             f"v_and_b32 v{T+1}, 3, v0", f"v_lshl_add_u32 v{T}, v{T+1}, 3, v{T}", f"v_bfe_u32 v{T+1}, v0, 3, 1", f"v_lshl_add_u32 v{T}, v{T+1}, 6, v{T}",
             f"s_mul_i32 s{t0}, s{sKQ}, 14336", f"s_add_u32 s{t0}, s{t0}, {L_WOA}",
             f"v_add_u32 v{vT3b[0]}, s{t0}, v{T}", f"v_xor_b32 v{vT3b[1]}, 64, v{vT3b[0]}"]
    addr3b = [f"v_lshrrev_b32 v{T+1}, 5, v0"] + [f"v_lshl_add_u32 v{vT3[c]}, v{T+1}, 9, v{vT3b[c]}" for c in range(2)]
    addr3b += [f"v_mul_u32_u24 v{vOUT}, 896, v{vN}", f"v_lshl_add_u32 v{vOUT}, v{T+1}, 4, v{vOUT}"]
    def oa_max():
        a(f"v_max3_u32 v{T+3}, v{OFA}, v{OFA+1}, v{OFA+2}")
        for r in range(3, 31, 2): a(f"v_max3_u32 v{T+3}, v{T+3}, v{OFA+r}, v{OFA+r+1}")
        a(f"v_max_u32 v{T+3}, v{T+3}, v{OFA+31}")
    for kq in range(1, 4):
        a(f"s_cmp_eq_u32 s{sKQ}, {kq}\ns_cbranch_scc1 L_tail{kq}")
    lg0 = lg
    for kq in range(4):
        if kq: a.label(f"L_tail{kq}")
        lg = lg0.clone(a)
        def wr(o):
            sl = kq if kq < o else kq - 1
            return [f"ds_write_b128 v{vBW}, {vr(O['B0']+8*o+4*k,4)} offset:{(o*3+sl)*2048 + k*1024}" for k in range(2)]
        wl = lambda: [f"ds_write_b32 v{vBX}, v{O['B0']+8*kq+4}"]
        ex = [x for o in range(2) if o != kq for x in wr(o)] + (wl() if kq == 1 else [])
        slot(lg, tiles, idx, [], ex)
        a("s_nop 1")
        pv(lg, tiles, len(tiles) - 1, 1)
        if kq == 0: st(11)
        for x in addr3: a(x)
        for x in [x for o in (2, 3) if o != kq for x in wr(o)] + (wl() if kq == 3 else []): a(x)
        for x in addr3b: a(x)
        a("s_waitcnt vmcnt(0)")
        oa_max()
        a("s_waitcnt lgkmcnt(0)")
        a("s_barrier")
        own = O['B0'] + 8*kq
        wlate = [dmaW(n, L_WOB, S2) for n in range(3)]
        for sl in range(3):
            for k in range(2):
                a(f"ds_read_b128 {vr(RB+8*sl+4*k,4)}, v{vBW} offset:{(kq*3+sl)*2048 + k*1024}")
        if kq & 1:
            for x in wlate: a(x)
            a("s_waitcnt lgkmcnt(4)")
            for x in pkadd(RB, RB, own): a(x)
            a("s_waitcnt lgkmcnt(0)")
            for x in pkadd(RB+8, RB+8, RB+16): a(x)
            for r in (4, 0, 2, 6):
                a(f"v_pk_add_f32 {vr(RB+r,2)}, {vr(RB+r,2)}, {vr(RB+8+r,2)}")
                if r == 4: a(f"v_mov_b32 v{LB}, v{RB+4}\nv_mov_b32 v{LB+1}, v{RB+4}")
            a(f"v_permlane32_swap_b32 v{LB+1}, v{LB}")
        else:
            for sl in range(3): a(f"ds_read_b32 v{LB+sl}, v{vBL} offset:{((kq+1)*3+sl)*2048}")
            a(f"v_or_b32 v{vBX}, 128, v{vBX}")
            a(f"ds_read_b32 v{LB+3}, v{vBX}")
            for x in wlate[:2]: a(x)
            a("s_waitcnt lgkmcnt(8)")
            for x in pkadd(RB, RB, own): a(x)
            a("s_waitcnt lgkmcnt(4)")
            for x in pkadd(RB+8, RB+8, RB+16) + pkadd(RB, RB, RB+8): a(x)
            a("s_waitcnt lgkmcnt(0)")
            a(wlate[2])
            a(f"v_add_f32 v{LB}, v{LB}, v{LB+3}\nv_add_f32 v{LB+1}, v{LB+1}, v{LB+2}\nv_add_f32 v{LB}, v{LB}, v{LB+1}")
        if kq < 3: a("s_branch L_tail_join")
    a.label("L_tail_join")
    def reads3(i):
        kk = i & 7; hd, j = kk >> 1, kk & 1
        for ct in range(2):
            for e in range(2):
                a(f"ds_read_b64_tr_b16 {vr(W3[i & 3]+4*ct+2*e,2)}, v{vT3b[ct] if (j == 1 and e == 1) else vT3[ct]} offset:{(28*hd+16*j+8*e)*128}")
    def oload(OF, kk):
        a(f"buffer_load_dwordx4 {vr(OF+4*kk,4)}, v{vL16}, {sr(SWS,4)}, s{sOO if kk < 4 else u0} offen offset:{(kk&3)*1024} sc1")
    def oloads(OF, lo):
        for kk in range(lo, 8): oload(OF, kk)
    for i in range(3): reads3(i)
    for x in finalize("B", RB, 8, LB, vGB, vPB, sOB, True):
        x() if callable(x) else a(x)
    a(f"s_cmp_eq_u32 s{sCB}, 7")
    a("s_cbranch_scc1 L_fini")
    st(12)
    a(f"s_mov_b32 s{sCNT}, {SPIN_MAX}")
    a.label("L_oa_chk")
    a(f"v_cmp_eq_u32 vcc, -1, v{T+3}\ns_cbranch_vccnz L_oa_retry")
    a.label("L_oa_ok")
    a(f"s_add_u32 s{sOO}, s{sOO}, 32768\ns_add_u32 s{u0}, s{sOO}, 4096\ns_mov_b32 s{sCNT}, {SPIN_MAX}")
    nob = 0
    for i in range(16):
        kk = i & 7
        OF = OFA if i < 8 else OFB
        if i == 8: st(13)
        if i >= 8:
            assert nob == 8
            a.label(f"L_ob{kk}")
            a(f"s_waitcnt vmcnt({7-kk})")
            f = OFB + 4*kk
            a(f"v_max3_u32 v{T}, v{f}, v{f+1}, v{f+2}\nv_max_u32 v{T}, v{T}, v{f+3}\nv_cmp_eq_u32 vcc, -1, v{T}")
            a(f"s_cbranch_vccnz L_retry{kk}")
            a.label(f"L_ob{kk}_go")
        a(f"s_waitcnt lgkmcnt({min(8, 4*(15-i))})")
        for ct in range(2):
            D = vr(ACC3[ct], 16)
            a(f"v_mfma_f32_32x32x16_bf16 {D}, {vr(W3[i&3]+4*ct,4)}, {vr(OF+4*kk,4)}, {'0' if i == 0 else D}")
        if i == 5:
            for r in vT3 + vT3b: a(f"v_add_u32 v{r}, {(L_WOB - L_WOA) & 0xffffffff}, v{r}")
            a(f"s_waitcnt vmcnt({1 + nob})")
            a("s_barrier")
        if i + 3 < 16: reads3(i + 3)
        if OBAT <= i < 8:
            for _ in range(OBN if i < 7 else 8):
                if nob < 8:
                    oload(OFB, nob); nob += 1
    st(14)
    for kq in range(1, 4):
        a(f"s_cmp_eq_u32 s{sKQ}, {kq}\ns_cbranch_scc1 L_fin3_{kq}")
    R = 16
    for kq in range(4):
        if kq: a.label(f"L_fin3_{kq}")
        a("s_nop 9")
        for o in range(4):
            if o == kq: continue
            sl = kq if kq < o else kq - 1
            for k in range(2):
                a(f"ds_write_b128 v{vBW}, {vr(ACC3[0]+8*o+4*k,4)} offset:{(o*3+sl)*2048 + k*1024}")
        a("s_waitcnt lgkmcnt(0)")
        a("s_barrier")
        for sl in range(3):
            for k in range(2):
                a(f"ds_read_b128 {vr(R+8*sl+4*k,4)}, v{vBW} offset:{(kq*3+sl)*2048 + k*1024}")
        a("s_waitcnt lgkmcnt(4)")
        for x in pkadd(R, R, ACC3[0]+8*kq): a(x)
        if kq < 3: a("s_branch L_fin3_join")
    a.label("L_fin3_join")
    a("s_waitcnt lgkmcnt(0)")
    for x in pkadd(R+8, R+8, R+16) + pkadd(R, R, R+8): a(x)
    for r in range(4): a(f"v_cvt_pk_bf16_f32 v{R+8+r}, v{R+2*r}, v{R+2*r+1}")
    a("s_nop 1")
    a(f"v_permlane32_swap_b32 v{R+8}, v{R+10}\nv_permlane32_swap_b32 v{R+9}, v{R+11}")
    a(f"buffer_store_dwordx4 {vr(R+8,4)}, v{vOUT}, {sr(S3,4)}, s{sOUT} offen {OST}")
    a.label("L_fini")
    a("s_waitcnt vmcnt(0)")
    st.dump()
    a.label("L_end")
    a("s_endpgm")
    a.label("L_pflag_spin")
    poll(vFL, f"s{sFO}", None, vLA + 2)
    a("s_branch L_pflag_ok")
    a.label("L_aflag_spin")
    poll(vAF, f"s{sFC}", None, vLA + 2)
    a("s_branch L_aflag_ok")
    a.label("L_oa_retry")
    a(f"s_sub_u32 s{sCNT}, s{sCNT}, 1\ns_cbranch_scc1 L_oa_ok")
    a(f"s_add_u32 s{u0}, s{sOO}, 4096")
    oloads(OFA, 0)
    a("s_waitcnt vmcnt(0)")
    oa_max()
    a("s_branch L_oa_chk")
    for kk in range(8):
        a.label(f"L_retry{kk}")
        a(f"s_sub_u32 s{sCNT}, s{sCNT}, 1\ns_cbranch_scc1 L_giveup{kk}")
        a(f"s_waitcnt vmcnt(0)\ns_sleep {OPT.get('rsleep', 2)}")
        oloads(OFB, kk)
        a(f"s_branch L_ob{kk}")
        a.label(f"L_giveup{kk}")
        a(f"s_mov_b32 s{sCNT}, 0\ns_branch L_ob{kk}_go")

    def slow(tag, R, L, G, sTile, mat):
        SS, OO, KF, VF, Q, M, DL, NI = 192, 208, 224, 232, 240, 248, 249, 251
        sT, sT1, sKO, sT0 = t0, t1, u0, u1
        SK = SKA if mat == 0 else SWS
        a.label(f"L_slow{tag}")
        if mat == 0:
            for r in range(8): a(f"v_mov_b32 v{Q+r}, v{QA+r}")
            a(f"s_sub_i32 s{sT0}, s{sTile}, 8\ns_max_i32 s{sT0}, s{sT0}, 0\ns_add_u32 s{sT1}, s{sTile}, 1")
        else:
            for r in range(8): a(f"v_mov_b32 v{Q+r}, v{QB[0]+r}")
            a(f"s_bitcmp1_b32 s{sKQ}, 1\ns_cbranch_scc0 L_slowB_q")
            for r in range(8): a(f"v_mov_b32 v{Q+r}, v{QB[1]+r}")
            a.label("L_slowB_q")
            a(f"s_mov_b32 s{sT0}, 0\ns_mov_b32 s{sT1}, 64")
        a(f"v_mov_b32 v{M}, 0xff800000\nv_mov_b32 v{NI}, 0xff800000")
        for r in range(16): a(f"v_mov_b32 v{OO+r}, 0")
        for p in range(2):
            a(f"s_mov_b32 s{sT}, s{sT0}")
            a.label(f"L_slow{tag}_p{p}")
            a(f"s_lshl_b32 s{sKO}, s{sT}, 12")
            if mat == 1: a(f"s_add_u32 s{sKO}, s{sKO}, s{sKVB}")
            for j in range(2):
                a(f"buffer_load_dwordx4 {vr(KF+4*j,4)}, v{vL16}, {sr(SK,4)}, s{sKO} offen offset:{j*1024} sc1")
            if p == 1:
                for j in range(2):
                    a(f"buffer_load_dwordx4 {vr(VF+4*j,4)}, v{vL16}, {sr(SK,4)}, s{sKO} offen offset:{2048+j*1024} sc1")
            if mat == 0:
                a(f"s_sub_u32 s{t2}, s{sTile}, s{sT}\ns_lshl_b32 s{t2}, s{t2}, 5")
                a(f"v_lshrrev_b32 v{DL}, 5, v0\nv_lshlrev_b32 v{DL}, 3, v{DL}\nv_sub_u32 v{DL}, v{vN}, v{DL}")
                a(f"v_add_u32 v{DL}, s{t2}, v{DL}")
            a("s_waitcnt vmcnt(0)")
            a(f"v_mfma_f32_32x32x16_bf16 {vr(SS,16)}, {vr(KF,4)}, {vr(Q,4)}, 0")
            a(f"v_mfma_f32_32x32x16_bf16 {vr(SS,16)}, {vr(KF+4,4)}, {vr(Q+4,4)}, {vr(SS,16)}")
            a("s_nop 15")
            if mat == 0:
                for r in range(16):
                    a(f"v_subrev_u32 v{DL+1}, {16*(r>>3)+(r&7)}, v{DL}")
                    a(f"v_cmp_gt_u32 vcc, 0x100, v{DL+1}")
                    a("s_nop 1")
                    a(f"v_cndmask_b32 v{SS+r}, v{NI}, v{SS+r}, vcc")
            if p == 0:
                for r in range(16): a(f"v_max_f32 v{M}, v{M}, v{SS+r}")
            else:
                for r in range(16): a(f"v_sub_f32 v{SS+r}, v{SS+r}, v{M}")
                for r in range(16): a(f"v_exp_f32 v{SS+r}, v{SS+r}")
                a("s_nop 1")
                for j in range(2):
                    a(f"v_smfmac_f32_32x32x32_bf16 {vr(OO,16)}, {vr(VF+4*j,4)}, {vr(SS+8*j,8)}, v{vIDX}")
            a(f"s_add_u32 s{sT}, s{sT}, 1\ns_cmp_lt_u32 s{sT}, s{sT1}")
            a(f"s_cbranch_scc1 L_slow{tag}_p{p}")
            if p == 0:
                a(f"v_mov_b32 v{DL}, v{M}\ns_nop 1\nv_permlane32_swap_b32 v{M}, v{DL}\ns_nop 1\nv_max_f32 v{M}, v{M}, v{DL}")
        a("s_nop 15")
        a(f"v_mov_b32 v{DL}, v{OO+12}\nv_mov_b32 v{L}, v{OO+12}\ns_nop 1")
        a(f"v_permlane32_swap_b32 v{DL}, v{L}\ns_nop 1")
        a(f"v_rcp_f32 v{L}, v{L}\ns_nop 0\nv_mul_f32 v{L}, v{L}, v{G}")
        if mat == 0:
            for r in range(16): a(f"v_mul_f32 v{R+r}, v{OO+r}, v{L}")
            a(f"s_branch L_fin{tag}")
        else:
            a(f"s_bitcmp1_b32 s{sKQ}, 0\ns_cbranch_scc1 L_slow{tag}_odd")
            for r in range(8): a(f"v_mul_f32 v{R+r}, v{OO+r}, v{L}")
            a(f"s_branch L_fin{tag}")
            a.label(f"L_slow{tag}_odd")
            for r in range(8): a(f"v_mul_f32 v{R+r}, v{OO+8+r}, v{L}")
            a(f"s_branch L_fin{tag}")
    slow("A", OA, vLA, vGA, sTAt, 0)
    slow("B", RB, LB, vGB, sTBt, 1)
    a.label("L_code_end")
    return K, 256

def main(out):
    a = Asm()
    hdr = open("cdna_kernels/" + NAME + ".s.ref").read().split("; Override launch")[0]
    a.raw(hdr.rstrip())
    a.raw(f"; @launch grid=(256,1,1) block=(512,1,1) lds={LDS}")
    a.raw('.amdgcn_target "amdgcn-amd-amdhsa--gfx950"')
    a.raw(".text")
    K, v = kernel(a)
    a.raw('.section .rodata,"a"')
    a.raw(".p2align 6")
    a.raw(descriptor(K, v))
    open(out, "w").write(a.text())

if __name__ == "__main__":
    pos = [x for x in sys.argv[1:] if not x.startswith("--")]
    main(pos[0] if pos else "f.s")
```

```python
import sys, struct, math
from asmlib import *

NAME = "gated_mix__sliding_block__softmax_full_mha__prompt"
KV_OFF = 0
OF_OFF = 8 << 20
FL1_OFF = 12 << 20
FLO_OFF = FL1_OFF + 32768
WS_SIZE = FLO_OFF + 32768
X_BYTES = 2048 * 896
W_BYTES = 448 * 2688
WO_BYTES = 448 * 896
def f32bits(x): return struct.unpack("<I", struct.pack("<f", x))[0]
QSCALE = f32bits(math.log2(math.e) / math.sqrt(28.0))
LOG2E = f32bits(math.log2(math.e))
SPIN_MAX = 200000

OPT = dict(a.lstrip("-").split("=") if "=" in a else (a.lstrip("-"), "1") for a in sys.argv[1:] if a.startswith("--"))
STAMPS = "stamps" in OPT
RT = "rt" in OPT
ROT = int(OPT.get("rot", 1))
FLAGAT = int(OPT.get("flagat", 28))
OBAT = int(OPT.get("obat", 6))
OBN = int(OPT.get("obn", 4))
OST = OPT.get("ost", "")
SPF = int(OPT.get("spf", 1))
NQA = [int(x) for x in OPT.get("nqa", "1,0,0,0,0,0,2,0").split(",")]
PK2 = int(OPT.get("pk", 1))
QPF = int(OPT.get("qpf", -1))
UP = int(OPT.get("up", 2))
ST_OFF = 32 << 20

R_SLOT = 30720
L_S = [0, 16384, 32768, 49152]
L_QX = 65536
L_WQA, L_WQB = 135168, 106496
L_AREG = 106496
L_MASK, L_G, L_CNT = 77824, 73728, 98304
L_WOA, L_WOB = 106496, 49152
L_SCRA = 65536
LDS = 163840
PFAT = int(OPT.get("pfat", 1))
SPEC = int(OPT.get("spec", 0))
CPF = int(OPT.get("cpf", 1))
MIX = int(OPT.get("mix", 1))
NPRE = int(OPT.get("npre", 4))
WAAT = int(OPT.get("waat", 6))
ADEL = int(OPT.get("adel", 3))
QW = int(OPT.get("qw", 2))
APOS = int(OPT.get("apos", 7))
WQAT = [int(x) for x in OPT.get("wqat", "1,0,0,1,1,2,2,0").split(",")]

pX, pWA, pWOA, pWB, pWOB, pGW, pOUT, pDBG, pWS = 4, 6, 8, 12, 14, 16, 18, 20, 22
SWS, SKA, S1, S2, S3, S4 = 24, 28, 32, 36, 40, 44
sH, sTB, sWV, sQH, sKQ, sG16, sNON, sM0, sOFF, sTBt, sTAt, sOA, sOB, sFA, sCB = 48, 49, 50, 51, 52, 53, 54, 56, 57, 58, 59, 60, 61, 62, 63
t0, t1, t2, t3 = 64, 65, 66, 67
u0, u1 = 10, 11
sCNT = 3
sC0, sKVB = 0, 1
sFO, sOO, sOUT, sWM0 = 4, 5, 6, 7
sA1, sFC, sFK, sAS = 9, 18, 19, 16
sK0, sK1, sK2 = 17, 20, 21
sHI, sQM, sW0 = 8, 12, 14

class Stamper:
    def __init__(self, a): self.a = a
    def start(self):
        if STAMPS:
            self.a("s_memrealtime s[100:101]"); self.a("s_memtime s[68:69]")
        if RT:
            for i in range(1, 16): self.a(f"s_mov_b32 s{68+2*i}, 0")
            self.a("s_memrealtime s[68:69]")
    def step(self, s):
        if "steps" in OPT and 1 <= s <= 14: self.a(f"s_mem{'real' if OPT['stamps'] == 'r' else ''}time s[{68+2*s}:{69+2*s}]")
    def __call__(self, i):
        if "steps" in OPT: return
        if STAMPS: self.a(f"s_mem{'real' if OPT['stamps'] == 'r' else ''}time s[{68+2*i}:{69+2*i}]")
        if RT: self.a(f"s_memrealtime s[{68+2*i}:{69+2*i}]")
    def dump(self):
        a = self.a
        if RT and "echo" in OPT:
            i = int(OPT["echo"])
            a("s_waitcnt vmcnt(0)\ns_memrealtime s[98:99]\ns_waitcnt lgkmcnt(0)")
            a(f"s_cmp_lt_u32 s{sWV}, 4\ns_cbranch_scc0 L_end")
            a(f"s_cmp_eq_u32 s{68+2*i}, 0\ns_cbranch_scc1 L_end")
            a(f"s_sub_u32 s64, s{68+2*i}, s68\ns_lshl_b32 s64, s64, 2\ns_min_u32 s64, s64, 100000")
            a.label("L_echo")
            a("s_memrealtime s[66:67]\ns_waitcnt lgkmcnt(0)\ns_sub_u32 s65, s66, s98\ns_cmp_lt_u32 s65, s64\ns_cbranch_scc1 L_echo")
            return
        if not STAMPS: return
        a("s_waitcnt vmcnt(0)")
        a("s_memtime s[98:99]"); a("s_memrealtime s[66:67]")
        a("s_waitcnt lgkmcnt(0)")
        a("s_mov_b64 exec, -1")
        srd(a, S4, pWS, 0x100000, add=ST_OFF)
        a(f"s_lshl_b32 s64, s2, 4\ns_add_u32 s64, s64, s{sWV}\ns_lshl_b32 s64, s64, 7")
        a("v_mov_b32 v1, 0")
        for i in range(16):
            a(f"v_mov_b32 v2, s{68+2*i}")
            a(f"buffer_store_dword v2, v1, {sr(S4,4)}, s64 offen offset:{4*i}")
        a(f"v_mov_b32 v2, s100\nbuffer_store_dword v2, v1, {sr(S4,4)}, s64 offen offset:64")
        a(f"v_mov_b32 v2, s66\nbuffer_store_dword v2, v1, {sr(S4,4)}, s64 offen offset:68")
        a(f"s_getreg_b32 s65, hwreg(HW_REG_XCC_ID)\nv_mov_b32 v2, s65\nbuffer_store_dword v2, v1, {sr(S4,4)}, s64 offen offset:72")

def g16_table():
    v = 0
    for hq in range(4):
        hs = sorted(range(4*hq, 4*hq+4), key=lambda h: 0 if (56*h) % 128 > 64 else 1)
        if MIX:
            sa, sb = hq & 1, 2 + (hq & 1)
            q2, q3 = (0, 1) if hq < 2 else (3, 2)
            gs = [4*sa + q2, 4*sa + q3, 4*sb + q2, 4*sb + q3] if MIX == 2 else [4*sa + q2, 4*sb + q2, 4*sa + q3, 4*sb + q3]
        else:
            gs = [4*hq + q for q in (0, 3, 1, 2)]
        for h, g in zip(hs, gs): v |= g << (4*h)
    return v

def kernel(a):
    K = NAME + "_kernel"
    kernel_begin(a, K)
    st = Stamper(a)
    uid = [0]
    def lab(p):
        uid[0] += 1; return f"{p}_{uid[0]}"
    vL16 = 1
    a("s_cmp_ge_u32 s2, 256")
    a("s_cbranch_scc1 L_end")
    st.start()
    a("s_load_dwordx8 s[4:11], s[0:1], 0")
    a("s_load_dwordx8 s[12:19], s[0:1], 32")
    a("s_load_dwordx4 s[20:23], s[0:1], 64")
    if CPF:
        a(f"s_getpc_b64 s[{SWS}:{SWS+1}]")
        a.label("L_pc")
        a(f"s_lshr_b32 s{t0}, s2, 3\ns_mul_i32 s{t0}, s{t0}, 10\nv_min_u32 v2, 9, v0\nv_add_lshl_u32 v2, v2, s{t0}, 7")
        a(f"v_min_u32 v2, L_code_end-L_pc-4, v2")
        a(f"v_cmp_gt_u32 vcc, 64, v0\ns_cbranch_vccz L_nocpf")
        a(f"global_load_dword v3, v2, s[{SWS}:{SWS+1}]")
        a.label("L_nocpf")
    a("v_lshrrev_b32 v1, 6, v0")
    a("v_and_b32 v0, 63, v0")
    a(f"v_readfirstlane_b32 s{sWV}, v1")
    a(f"v_lshlrev_b32 v{vL16}, 4, v0")
    a(f"s_and_b32 s{t0}, s2, 6\ns_lshl_b32 s{t0}, s{t0}, 1\ns_lshr_b32 s{t1}, s2, 6\ns_add_u32 s{sH}, s{t0}, s{t1}")
    a(f"s_and_b32 s{t0}, s2, 1\ns_lshl_b32 s{t0}, s{t0}, 3\ns_bfe_u32 s{t2}, s2, 0x30003\ns_add_u32 s{sTB}, s{t0}, s{t2}")
    if "flip" in OPT: a(f"s_xor_b32 s{sTB}, s{sTB}, 8")
    a(f"s_lshl_b32 s{t1}, s{t1}, 1\ns_add_u32 s{sCB}, s{t1}, s{t2}")
    a(f"s_cmp_ge_u32 s{sCB}, 7\ns_cselect_b32 s{t1}, 7, 0\ns_sub_u32 s{sCB}, s{sCB}, s{t1}")
    if not ROT: a(f"s_mov_b32 s{sCB}, 0")
    if ROT == 2:
        a(f"s_lshr_b32 s{t1}, s2, 6\ns_add_u32 s{t1}, s{t1}, s{t2}\ns_and_b32 s{t1}, s{t1}, 1\ns_mul_i32 s{sCB}, s{t1}, 3")
    if ROT == 3:
        a(f"s_lshr_b32 s{t1}, s2, 6\ns_add_u32 s{t1}, s{t1}, s{t2}\ns_and_b32 s{t1}, s{t1}, 3\ns_lshl_b32 s{sCB}, s{t1}, 1")
    if ROT == 4:
        a(f"s_lshr_b32 s{t1}, s2, 6\ns_add_u32 s{t1}, s{t1}, s{t2}\ns_and_b32 s{t1}, s{t1}, 1\ns_lshl_b32 s{sCB}, s{t1}, 1")
    if ROT == 5:
        a(f"s_lshr_b32 s{t1}, s2, 6\ns_add_u32 s{t1}, s{t1}, s{t2}\ns_and_b32 s{sCB}, s{t1}, 3")
    tb = g16_table()
    a(f"s_mov_b32 s{t2}, 0x{tb & 0xffffffff:08x}\ns_mov_b32 s{t3}, 0x{tb >> 32:08x}")
    a(f"s_lshl_b32 s{t0}, s{sH}, 2\ns_lshr_b64 s[{t2}:{t3}], s[{t2}:{t3}], s{t0}\ns_and_b32 s{sG16}, s{t2}, 15")
    a(f"s_lshr_b32 s{sQH}, s{sWV}, 2")
    a(f"s_and_b32 s{sKQ}, s{sWV}, 3")

    vDB, vBA0, vDA, vAA, vIDX, vN, vGA, vGB = 2, 3, 4, 5, 6, 7, 8, 9
    T = 10
    vDW = 254; vZ = 255
    QB = [128, 136]
    FR = {"K0": 144, "K1": 148, "V0": 152, "V1": 156}
    S = [160, 176]
    O = {"B0": 72, "B1": 88, "A": 104}
    WB = [240, 244, 248]
    vNON = 252
    vPA = 15
    MASK, QA, RED = 16, 32, 40
    vPB, vLO, vLA, vAF = 56, 57, 58, 62
    PO = 64
    vBW, vBL, vBX, vFL = 68, 69, 70, 71

    def scalar_setup():
        srd(a, SWS, pWS, WS_SIZE)
        a(f"s_lshl_b32 s{t0}, s{sH}, 18")
        srd(a, SKA, pWS, 262144, add=f"s{t0}")
        a(f"s_add_u32 s{sKVB}, s{t0}, {16 << 18}")
        a(f"s_lshl_b32 s{sM0}, s{sWV}, 11")
        a(f"s_lshl_b32 s{t1}, s{sTB}, 2")
        a(f"s_lshl_b32 s{t0}, s{sQH}, 1\ns_add_u32 s{t0}, s{t0}, s{t1}\ns_lshr_b32 s{t2}, s{sKQ}, 1")
        a(f"s_add_u32 s{sTBt}, s{t0}, s{t2}")
        a(f"s_add_u32 s{sTAt}, s{t1}, s{sKQ}")
        a(f"s_lshl_b32 s{t0}, s{sTAt}, 5\ns_add_u32 s{t0}, s{t0}, s{sH}\ns_lshl_b32 s{t0}, s{t0}, 1\ns_add_u32 s{t0}, s{t0}, s{sQH}")
        a(f"s_lshl_b32 s{t0}, s{t0}, 10\ns_add_u32 s{sOA}, s{t0}, {OF_OFF}")
        a(f"s_lshl_b32 s{t0}, s{sTBt}, 5\ns_add_u32 s{t0}, s{t0}, s{sH}\ns_lshl_b32 s{t0}, s{t0}, 1\ns_and_b32 s{t1}, s{sKQ}, 1\ns_add_u32 s{t0}, s{t0}, s{t1}")
        a(f"s_lshl_b32 s{t0}, s{t0}, 10\ns_add_u32 s{sOB}, s{t0}, {OF_OFF + 32768}")
        a(f"s_lshl_b32 s{t0}, s{sTB}, 4\ns_add_u32 s{t0}, s{t0}, s{sH}\ns_lshl_b32 s{t0}, s{t0}, 7\ns_add_u32 s{sFA}, s{t0}, {FLO_OFF}")
        a(f"s_mov_b32 s{sOFF}, {(NPRE - 1) * 4096}")

    def late_setup():
        srd(a, S1, pWOA, WO_BYTES); srd(a, S2, pWOB, WO_BYTES); srd(a, S3, pOUT, X_BYTES)
        a(f"s_and_b32 s{t0}, s2, 7\ns_lshl_b32 s{t0}, s{t0}, 2\ns_bfe_u32 s{t1}, s2, 0x20003\ns_add_u32 s{t0}, s{t0}, s{t1}\ns_lshr_b32 s{sCB}, s2, 5")
        a(f"s_lshl_b32 s{t0}, s{t0}, 1\ns_add_u32 s{t2}, s{t0}, s{sQH}")
        a(f"s_lshr_b32 s{t0}, s{t2}, 2\ns_lshl_b32 s{t0}, s{t0}, 11\ns_add_u32 s{sFO}, s{t0}, {FLO_OFF}")
        a(f"s_lshl_b32 s{t0}, s{t2}, 16\ns_lshl_b32 s{t1}, s{sKQ}, 13\ns_add_u32 s{t0}, s{t0}, s{t1}\ns_add_u32 s{sOO}, s{t0}, {OF_OFF}")
        a(f"s_mul_i32 s{t0}, s{t2}, {32*896}\ns_lshl_b32 s{t1}, s{sCB}, 7\ns_add_u32 s{t0}, s{t0}, s{t1}\ns_lshl_b32 s{t1}, s{sKQ}, 5\ns_add_u32 s{sOUT}, s{t0}, s{t1}")
        a(f"s_lshl_b32 s{sWM0}, s{sWV}, 10")
        a(f"s_mov_b32 s{sHI}, 0x{f32bits(2.0**60):08x}\ns_and_b32 s{sA1}, s{sKQ}, 1\ns_sub_u32 s{sA1}, s{sA1}, 1")
        a(f"s_cmp_eq_u32 s{sWV}, 0\ns_cselect_b64 s[{sW0}:{sW0+1}], 1, 0")
        a(f"s_lshr_b32 s{t0}, s{sG16}, 3\ns_or_b32 s{t0}, s{t0}, s{sWV}\ns_cmp_eq_u32 s{t0}, 0\ns_cselect_b64 s[{sQM}:{sQM+1}], 1, 0")
        a(f"s_lshr_b32 s{t0}, s{sG16}, 3\ns_or_b32 s{sAS}, s{t0}, s{sQH}")
        a(f"s_lshl_b32 s{t0}, s{sG16}, 4\ns_add_u32 s{t0}, s{t0}, s{sTB}\ns_lshl_b32 s{t0}, s{t0}, 7\ns_add_u32 s{sFK}, s{t0}, {FL1_OFF}")
        a(f"s_lshr_b32 s{t0}, s{sH}, 2\ns_lshl_b32 s{t0}, s{t0}, 11\ns_add_u32 s{sFC}, s{t0}, {FL1_OFF}")
        a(f"v_lshrrev_b32 v{T}, 3, v0\ns_lshl_b32 s{t0}, s{sWV}, 3\nv_add_u32 v{T}, s{t0}, v{T}\nv_mul_u32_u24 v{T}, 896, v{T}")
        a(f"v_bfe_u32 v{T+1}, v0, 4, 1\nv_lshlrev_b32 v{T+1}, 2, v{T+1}\nv_and_b32 v{T+2}, 7, v0\nv_xor_b32 v{T+1}, v{T+1}, v{T+2}")
        a(f"v_lshl_add_u32 v{T}, v{T+1}, 4, v{T}\ns_min_u32 s{t0}, s{sCB}, 6\ns_lshl_b32 s{t0}, s{t0}, 7\nv_add_u32 v{vDW}, s{t0}, v{T}")

    def phase2_setup():
        a(f"s_lshr_b32 s{t0}, s{sWV}, 1\ns_lshl_b32 s{t0}, s{t0}, 16\ns_and_b32 s{t1}, s{sWV}, 1\ns_lshl_b32 s{t1}, s{t1}, 11\ns_add_u32 s{t0}, s{t0}, s{t1}\ns_add_u32 s{t0}, s{t0}, s{sKVB}")
        a(f"v_add_u32 v{vDB}, s{t0}, v{vL16}")
        a(f"s_lshl_b32 s{t0}, s{sKQ}, 12\ns_add_u32 s{t0}, s{t0}, {L_S[0]}")
        a(f"v_add_u32 v{vBA0}, s{t0}, v{vL16}")
        a(f"s_lshl_b32 s{t0}, s{sTB}, 14\ns_sub_u32 s{t0}, s{t0}, 32768\ns_add_u32 s{t0}, s{t0}, s{sM0}")
        a(f"v_add_u32 v{vDA}, s{t0}, v{vL16}")
        a(f"v_add_u32 v{vAA}, {L_AREG}, v{vBA0}")
        a(f"v_lshrrev_b32 v{vPA}, 5, v0\nv_add_u32 v{vPA}, -1, v{vPA}")
        a(f"v_mov_b32 v{vIDX}, 0xdddddddd")
        a(f"v_and_b32 v{vN}, 31, v0")

    low_setup = [f"s_sub_i32 s{t1}, s{sTB}, 2", f"s_max_i32 s{t1}, s{t1}, 0", f"v_and_b32 v{vAF}, 15, v0", f"v_max_u32 v{vAF}, s{t1}, v{vAF}",
                 f"v_min_u32 v{vAF}, s{sTB}, v{vAF}", f"v_bfe_u32 v{vLO}, v0, 4, 1", f"v_lshl_add_u32 v{vAF}, v{vLO}, 6, v{vAF}", f"v_lshlrev_b32 v{vAF}, 7, v{vAF}",
                 f"v_add_u32 v{vLA+1}, {L_MASK}, v{vL16}"]
    low_setup += [f"v_mov_b32 v{PO+r}, -1" for r in range(4)] + [f"v_or_b32 v{vPB}, s{sA1}, v{vPA}", f"v_mov_b32 v{vLO}, 0x{f32bits(2.0**-40):08x}"]

    def mask_setup():
        L = lab("L_nomask")
        a(f"s_cmp_lg_u32 s{sKQ}, 3\ns_cbranch_scc1 {L}")
        a(f"v_lshrrev_b32 v{T}, 5, v0\nv_lshlrev_b32 v{T}, 3, v{T}\nv_sub_u32 v{T}, v{vN}, v{T}")
        a(f"v_mov_b32 v{T+1}, 0xff800000")
        for r in range(0, 16, 2):
            a(f"v_cmp_le_i32 s[{t2}:{t3}], {16*(r>>3) + (r&7)}, v{T}")
            a(f"v_cmp_le_i32 s[{u0}:{u1}], {16*(r>>3) + (r&7) + 1}, v{T}")
            a("s_nop 0")
            a(f"v_cndmask_b32 v{MASK+r}, v{T+1}, 0, s[{t2}:{t3}]")
            a(f"v_cndmask_b32 v{MASK+r+1}, v{T+1}, 0, s[{u0}:{u1}]")
        for r in range(16): a(f"v_xor_b32 v{RED+r}, v{T+1}, v{MASK+r}")
        a(f"v_add_u32 v{T}, {L_MASK}, v{vL16}")
        for k in range(4):
            a(f"ds_write_b128 v{T}, {vr(RED+4*k,4)} offset:{k*1024}")
            a(f"ds_write_b128 v{T}, {vr(MASK+4*k,4)} offset:{4096 + k*1024}")
        a("s_waitcnt lgkmcnt(0)")
        a.label(L)

    def zero_acc():
        for k in ("B0", "B1", "A"): a(f"v_mfma_f32_32x32x16_bf16 {vr(O[k],16)}, {vr(S[1],4)}, {vr(S[1],4)}, 0")
    def pre_phase2(zero=True):
        a(f"s_lshl_b32 s{t0}, s{sQH}, 12\ns_add_u32 s{t0}, s{t0}, {L_QX}\nv_add_u32 v{T}, s{t0}, v{vL16}")
        for k in range(4): a(f"ds_read_b128 {vr(QB[0]+4*k,4)}, v{T} offset:{k*1024}")
        a(f"s_lshl_b32 s{t0}, s{sKQ}, 8\ns_add_u32 s{t0}, s{t0}, {L_G}\nv_lshl_add_u32 v{T+1}, v{vN}, 3, s{t0}")
        a(f"ds_read_b32 v{vGA}, v{T+1}")
        a(f"s_and_b32 s{t0}, s{sTBt}, 3\ns_lshl_b32 s{t0}, s{t0}, 8\ns_add_u32 s{t0}, s{t0}, {L_G + 4}\nv_lshl_add_u32 v{T+1}, v{vN}, 3, s{t0}")
        a(f"ds_read_b32 v{vGB}, v{T+1}")
        for r in range(4): a(f"v_mov_b32 v{S[1]+r}, 0")
        a("s_nop 1")
        if zero: zero_acc()
        a("s_waitcnt lgkmcnt(0)")

    def get_nonce(issued):
        L, D = lab("L_non"), lab("L_non_done")
        a(f"s_mov_b32 s{sCNT}, {SPIN_MAX}")
        if issued: a(f"s_branch {L}_chk")
        a.label(L)
        a(f"buffer_load_dwordx2 {vr(vNON,2)}, v{vZ}, {sr(S4,4)}, 0 offen sc1")
        a.label(L + "_chk")
        a("s_waitcnt vmcnt(0)")
        a(f"v_readfirstlane_b32 s{sNON}, v{vNON}\nv_readfirstlane_b32 s{sNON+1}, v{vNON+1}")
        a(f"s_sub_u32 s{sCNT}, s{sCNT}, 1\ns_cbranch_scc1 {D}")
        a(f"s_cmp_eq_u32 s{sNON}, 0\ns_cbranch_scc1 {L}")
        a.label(D)

    def poll(vaddr, soff, need, tmp):
        L, D = lab("L_poll"), lab("L_poll_done")
        a(f"s_mov_b32 s{sCNT}, {SPIN_MAX}")
        a.label(L)
        a(f"buffer_load_dwordx2 {vr(tmp,2)}, v{vaddr}, {sr(SWS,4)}, {soff} offen sc1")
        a("s_waitcnt vmcnt(0)")
        a(f"v_cmp_eq_u64 vcc, s[{sNON}:{sNON+1}], {vr(tmp,2)}")
        if need is not None: a(f"s_orn2_b64 vcc, vcc, s[{need}:{need+1}]")
        a(f"s_cmp_eq_u64 vcc, -1\ns_cbranch_scc1 {D}")
        a(f"s_sleep {OPT.get('sleep', 4)}")
        a(f"s_sub_u32 s{sCNT}, s{sCNT}, 1\ns_cbranch_scc0 {L}")
        a.label(D)

    def poll2(vaddr, soff, tmp):
        L, D = lab("L_poll"), lab("L_poll_done")
        ld = lambda k: a(f"buffer_load_dwordx2 {vr(tmp+2*k,2)}, v{vaddr}, {sr(SWS,4)}, {soff} offen sc1")
        a(f"s_mov_b32 s{sCNT}, {SPIN_MAX}")
        ld(0)
        a(f"s_sleep {OPT.get('p2sleep', 4)}")
        a.label(L)
        for k in range(2):
            ld(1 - k)
            a("s_waitcnt vmcnt(1)")
            a(f"v_cmp_ne_u64 vcc, s[{sNON}:{sNON+1}], {vr(tmp+2*k,2)}\ns_cbranch_vccz {D}")
        a(f"s_sub_u32 s{sCNT}, s{sCNT}, 1\ns_cbranch_scc0 {L}")
        a.label(D)

    def flag_store(soff):
        return f"s_mov_b64 exec, 1\nbuffer_store_dwordx2 {vr(vNON,2)}, v{vZ}, {sr(SWS,4)}, {soff} offen sc1\ns_mov_b64 exec, -1"

    a(f"v_mov_b32 v{vZ}, 0")
    a(f"s_cmp_lt_u32 s{sWV}, 4")
    a("s_cbranch_scc1 L_compute")
    XA, WA, WQA, GWR = 192, 196, 200, 202
    sLX, sLW, sOX, sOW = u0, u1, sOA, sOB
    a("v_lshrrev_b32 v2, 3, v0")
    a(f"s_lshl_b32 s{t0}, s{sTB}, 7\ns_lshl_b32 s{t1}, s{sKQ}, 5\ns_add_u32 s{t0}, s{t0}, s{t1}")
    a(f"v_add_u32 v2, s{t0}, v2")
    a("v_mul_u32_u24 v2, 896, v2")
    a("v_lshrrev_b32 v3, 4, v0\nv_and_b32 v4, 7, v0\nv_xor_b32 v3, v3, v4\nv_lshlrev_b32 v3, 4, v3\nv_xor_b32 v4, 64, v3")
    a(f"v_add_u32 v{XA}, v2, v3\nv_add_u32 v{XA+1}, v2, v4\nv_add_u32 v{XA+1}, 7168, v{XA+1}")
    a(f"v_add_u32 v{XA+2}, 14336, v{XA}\nv_add_u32 v{XA+3}, 14336, v{XA+1}")
    a(f"s_and_b32 s{t0}, s{sG16}, 7\ns_mul_i32 s{t0}, s{t0}, 224\ns_add_u32 s{t0}, s{t0}, 896")
    a(f"s_mul_i32 s{t1}, s{sKQ}, {16*2688}\ns_add_u32 s{t0}, s{t0}, s{t1}")
    for n in range(4):
        if n: a(f"v_add_u32 v2, {64*n}, v0")
        f_ = "v2" if n else "v0"
        a(f"v_mul_u32_u24 v3, 4682, {f_}\nv_lshrrev_b32 v3, 16, v3")
        a(f"v_mul_u32_u24 v4, 14, v3\nv_sub_u32 v4, {f_}, v4")
        a("v_and_b32 v5, 1, v3\nv_lshlrev_b32 v5, 2, v5\nv_bfe_u32 v6, v3, 1, 2\nv_and_b32 v3, 0x78, v3\nv_or3_b32 v3, v3, v5, v6")
        a("v_mul_u32_u24 v3, 2688, v3\nv_lshl_add_u32 v3, v4, 4, v3")
        a(f"v_add_u32 v{WA+n}, s{t0}, v3")
    a(f"s_lshl_b32 s{sOX}, s{sCB}, 7\ns_mul_i32 s{sOW}, s{sCB}, {64*2688}")
    a("s_waitcnt lgkmcnt(0)")
    a(f"s_lshl_b32 s{sLX}, s{sKQ}, 12")
    a(f"s_mul_i32 s{sLW}, s{sKQ}, 3584")
    srd(a, S1, pX, X_BYTES)
    a(f"s_cmp_lt_u32 s{sG16}, 8")
    a(f"s_cselect_b32 s{S2}, s{pWA}, s{pWB}\ns_cselect_b32 s{S2+1}, s{pWA+1}, s{pWB+1}")
    a(f"s_mov_b32 s{S2+2}, {W_BYTES}\ns_mov_b32 s{S2+3}, 0x00020000")
    vm = Ctr(a, "vmcnt", 63)
    sOQ, sLQ = sFA, sTBt
    nq = [0]
    def issue(c):
        slot = (c % 3) * R_SLOT
        for n in range(4):
            a(f"s_add_u32 m0, s{sLX}, {slot + n*1024}\ns_nop 0")
            a(f"buffer_load_dwordx4 v{XA+n}, {sr(S1,4)}, s{sOX} offen lds"); vm.issue(c)
            a(f"s_add_u32 m0, s{sLW}, {slot + 16384 + n*1024}")
            a("s_mov_b32 exec_hi, 0" if n == 3 else "s_nop 0")
            a(f"buffer_load_dwordx4 v{WA+n}, {sr(S2,4)}, s{sOW} offen lds"); vm.issue(c)
        a("s_mov_b32 exec_hi, -1")
        a(f"s_add_u32 s{sOX}, s{sOX}, 128\ns_add_u32 s{sOW}, s{sOW}, {64*2688}\ns_cmp_eq_u32 s{sOX}, 896")
        a(f"s_cselect_b32 s{sOX}, 0, s{sOX}\ns_cselect_b32 s{sOW}, 0, s{sOW}")
    def wq(k):
        for _ in range(k):
            a(f"s_add_u32 m0, s{sLQ}, {nq[0]*1024}\ns_nop 0")
            a(f"buffer_load_dwordx4 v{WQA}, {sr(S3,4)}, s{sOQ} offen lds"); vm.issue("q")
            a(f"s_add_u32 s{sOQ}, s{sOQ}, 43008\ns_cmp_eq_u32 s{sOQ}, {28*43008}\ns_cselect_b32 s{sOQ}, 0, s{sOQ}")
            nq[0] += 1
    st(1)
    for c in range(UP): issue(c)
    srd(a, S3, pWB, W_BYTES)
    a("v_lshrrev_b32 v2, 2, v0\nv_mul_u32_u24 v2, 2688, v2\nv_and_b32 v3, 3, v0\nv_lshl_add_u32 v2, v3, 4, v2")
    a(f"s_mul_i32 s{t0}, s{sH}, 56\nv_add_u32 v{WQA}, s{t0}, v2")
    a(f"s_mul_i32 s{sLQ}, s{sKQ}, 7168\ns_add_u32 s{sLQ}, s{sLQ}, {L_WQB}")
    a(f"s_mul_i32 s{t0}, s{sKQ}, 7\ns_lshl_b32 s{t1}, s{sCB}, 2\ns_add_u32 s{t0}, s{t0}, s{t1}")
    a(f"s_cmp_ge_u32 s{t0}, 28\ns_cselect_b32 s{t1}, 28, 0\ns_sub_u32 s{t0}, s{t0}, s{t1}\ns_mul_i32 s{sOQ}, s{t0}, 43008")
    a(f"s_mov_b32 s{sC0}, s{sOQ}")
    wq(WQAT[0])
    srd(a, SKA, pWA, W_BYTES)
    def wqa(SR, sL, off, lo=0, hi=7):
        for n in range(lo, hi):
            a(f"s_add_u32 m0, s{sL}, {n*1024 + off}\ns_nop 0")
            a(f"buffer_load_dwordx4 v{WQA}, {sr(SR,4)}, s{sC0} offen lds")
            a(f"s_add_u32 s{sC0}, s{sC0}, 43008\ns_cmp_eq_u32 s{sC0}, {28*43008}\ns_cselect_b32 s{sC0}, 0, s{sC0}")
    WAS = [int(x) for x in OPT.get("was", "0,0,1,0,0,0,0,0,2").split(",")]
    nwa = [0]
    def early_wqa(k):
        if k <= 0: return
        L = lab("L_wqa_later")
        a(f"s_cmp_lt_u32 s{sG16}, 8\ns_cbranch_scc0 {L}")
        wqa(SKA, sLQ, L_WQA - L_WQB, nwa[0], nwa[0] + k)
        a.label(L)
        nwa[0] += k
    early_wqa(WAS[0])
    a(f"v_mov_b32 v2, {L_CNT}\nds_write_b32 v2, v{vZ}")
    srd(a, S4, pGW, 896)
    a(f"s_mul_i32 s{t0}, s{sKQ}, 112\ns_lshl_b32 s{t1}, s{sCB}, 6\ns_add_u32 s{t1}, s{t1}, s{t0}")
    a(f"v_min_u32 v2, 55, v0\nv_add_u32 v3, s{t1}, v2")
    a(f"v_add_u32 v2, s{t0}, v2\nv_lshlrev_b32 v2, 6, v2\nv_add_u32 v{GWR+4}, {L_WQB + 56}, v2")
    for i in range(2):
        a(f"v_add_u32 v4, {56*i}, v3\nv_subrev_u32 v5, 448, v4\nv_min_u32 v4, v4, v5\nv_lshlrev_b32 v4, 1, v4")
        a(f"buffer_load_ushort v{GWR+i}, v4, {sr(S4,4)}, 0 offen"); vm.issue("gw")
    srd(a, S4, pDBG, 256)
    a("s_waitcnt lgkmcnt(0)")
    for c in range(7):
        vm.wait(c)
        if c in (0, 3, 6): st(2 + c // 3)
        a("s_barrier")
        nx = c + 2 if UP == 2 else (c + 2 if c >= 1 else None)
        if nx is not None and nx <= 6: issue(nx)
        wq(WQAT[c + 1])
        early_wqa(WAS[c + 1])
        if c == 5: a(f"buffer_load_dwordx2 {vr(vNON,2)}, v{vZ}, {sr(S4,4)}, 0 offen sc1"); vm.issue("n")
    assert nq[0] == 7
    get_nonce(True)
    for i in range(2): a(f"ds_write_b16 v{GWR+4}, v{GWR+i} offset:{56*64*i}")
    a("s_waitcnt lgkmcnt(0)")
    early_wqa(WAS[8])
    st(5)
    a("s_barrier")
    early_wqa(7 - nwa[0])
    srd(a, S4, pWA, W_BYTES)
    scalar_setup()
    phase2_setup()
    late_setup()
    mask_setup()
    for x in low_setup: a(x)
    a(f"v_mov_b32 v240, v{vL16}")
    a(f"v_and_b32 v{XA}, 15, v0\nv_lshlrev_b32 v{XA}, 7, v{XA}")
    a(f"s_lshl_b32 s{u1}, s{sKQ}, 11\ns_lshl_b32 s{t1}, s{sKQ}, 13\ns_add_u32 s{t3}, s{sFC}, s{t1}\ns_add_u32 s{t3}, s{t3}, {8*2048}")
    a(f"s_add_u32 s{t1}, s{u1}, s{sKVB}\nv_add_u32 v{XA+1}, s{t1}, v{vL16}")
    a(f"s_mul_i32 s{t2}, s{sKQ}, 7168\ns_cmp_lt_u32 s{sG16}, 8")
    a("s_barrier")
    a("s_cbranch_scc1 L_wqa_done")
    wqa(S4, t2, L_WQA)
    a.label("L_wqa_done")
    a("s_waitcnt vmcnt(0)")
    st(7)
    a("s_barrier")
    if "pre1" in OPT: pre_phase2()
    a(f"s_cmp_ge_u32 s{sKQ}, 2\ns_cbranch_scc1 L_touch")
    poll(XA, f"s{t3}", None, XA + 2)
    st(6)
    for s in range(NPRE):
        a(f"s_mov_b32 s{u0}, {s*4096}")
        for kq in range(4):
            a(f"s_add_u32 m0, s{u1}, {L_S[s] + kq*4096}\ns_nop 0")
            a(f"buffer_load_dwordx4 v{XA+1}, {sr(SWS,4)}, s{u0} offen sc1 lds")
            a(f"buffer_load_dwordx4 v{XA+1}, {sr(SWS,4)}, s{u0} offen offset:1024 sc1 lds")
            a(f"s_add_u32 s{u0}, s{u0}, 65536")
    a("s_branch L_polled")
    a.label("L_touch")
    if SPEC:
        a(f"v_and_b32 v{XA}, 31, v0\nv_lshlrev_b32 v{XA}, 7, v{XA}\nv_lshrrev_b32 v{XA+1}, 5, v0\nv_lshl_add_u32 v{XA}, v{XA+1}, 16, v{XA}")
        a(f"s_and_b32 s{t0}, s{sKQ}, 1\ns_lshl_b32 s{t0}, s{t0}, 17\ns_add_u32 s{t0}, s{t0}, s{sKVB}")
        for k in range(SPEC):
            a(f"buffer_load_dword v{XA+2+k}, v{XA}, {sr(SWS,4)}, s{t0} offen sc1")
            if k + 1 < SPEC: a(f"s_add_u32 s{t0}, s{t0}, 4096")
    a.label("L_polled")
    if "pre1" not in OPT: pre_phase2()
    a(f"s_waitcnt vmcnt({8*(NPRE-1)})")
    a("s_branch L_phase2")

    a.label("L_compute")
    vST, vVC, XAD, WAD, WQD, GWD = 240, 241, 242, 246, 14, 15
    XR = 16; ACC = [128 + 16*u for u in range(4)]
    WF = [[192 + 16*b + 4*u for u in range(4)] for b in range(2)]
    PK = 192; DAC = 248; XAO = 216; vWQ = 13
    WF = [[192, 196], [204, 208]]; XO = [200, 212]
    a("v_and_b32 v9, 31, v0\nv_lshrrev_b32 v10, 5, v0\nv_bfe_u32 v11, v0, 1, 3")
    a(f"s_lshl_b32 s{t0}, s{sKQ}, 12")
    a(f"v_lshlrev_b32 v12, 7, v9\nv_add_u32 v12, s{t0}, v12")
    for ks in range(4):
        a(f"v_or_b32 v13, {2*ks}, v10\nv_xor_b32 v13, v13, v11\nv_lshl_add_u32 v{XAD+ks}, v13, 4, v12")
    a("v_bfe_u32 v12, v0, 4, 1\nv_lshlrev_b32 v12, 5, v12\nv_and_b32 v13, 3, v0\nv_lshl_add_u32 v12, v13, 3, v12")
    a("v_bfe_u32 v13, v0, 2, 2")
    a("v_lshl_add_u32 v11, v10, 2, v13")
    a(f"s_and_b32 s{t0}, s{sKQ}, 1\ns_mul_i32 s{t0}, s{t0}, 112")
    a(f"v_mul_u32_u24 v11, 448, v11\nv_add3_u32 v{WAD}, v11, v12, s{t0}")
    for ks in range(4): a(f"v_xor_b32 v{XAO+ks}, 4096, v{XAD+ks}")
    a("v_lshl_add_u32 v11, v10, 3, v13")
    a(f"v_lshl_add_u32 v11, v11, 6, v12\nv_add_u32 v{WQD}, {L_WQB}, v11")
    a(f"v_mov_b32 v{vVC}, 0")
    a("s_mov_b32 exec_lo, 0x10000000\ns_mov_b32 exec_hi, 0x10000000")
    a(f"v_mov_b32 v{vVC}, 0x3f803f80")
    a("s_mov_b64 exec, -1")
    a("v_and_b32 v11, 0x33, v0\nv_bfe_u32 v12, v0, 2, 1\nv_lshl_or_b32 v11, v12, 3, v11\nv_bfe_u32 v12, v0, 3, 1\nv_lshl_or_b32 v11, v12, 2, v11")
    a(f"v_lshlrev_b32 v{vST}, 4, v11")
    a("s_waitcnt lgkmcnt(0)")
    srd(a, S4, pDBG, 256)
    a(f"s_or_b32 s{t0}, s2, s{sKQ}\ns_cmp_lg_u32 s{t0}, 0\ns_cbranch_scc1 L_notag")
    a(f"s_memrealtime s[{sNON}:{sNON+1}]\ns_waitcnt lgkmcnt(0)")
    a(f"s_or_b32 s{sNON}, s{sNON}, 1\ns_xor_b32 s{sNON+1}, s{sNON+1}, 0x5bd1e995")
    a(f"v_mov_b32 v{vNON}, s{sNON}\nv_mov_b32 v{vNON+1}, s{sNON+1}")
    a("s_mov_b64 exec, 1")
    a(f"buffer_store_dwordx2 {vr(vNON,2)}, v{vZ}, {sr(S4,4)}, 0 offen sc1")
    a("s_mov_b64 exec, -1")
    a.label("L_notag")
    a("s_waitcnt vmcnt(0)")
    scalar_setup()
    phase2_setup()
    late_setup()
    a(f"s_lshr_b32 s{t0}, s{sG16}, 3\ns_lshl_b32 s{t0}, s{t0}, 2\ns_and_b32 s{t1}, s{sG16}, 3\ns_add_u32 s{t0}, s{t0}, s{t1}")
    a(f"s_lshl_b32 s{t0}, s{t0}, 1\ns_and_b32 s{t1}, s{sKQ}, 1\ns_add_u32 s{t0}, s{t0}, s{t1}")
    a(f"s_lshl_b32 s{t0}, s{t0}, 7\ns_add_u32 s{t0}, s{t0}, s{sTAt}\ns_lshl_b32 s{u0}, s{t0}, 12")
    a(f"s_bitcmp1_b32 s{sG16}, 2")
    a("s_cbranch_scc1 L_1a_V")
    def reads1a(g):
        b, ks = g & 1, g & 3
        tr = lambda u: [(f"ds_read_b64_tr_b16 {vr(WF[b][u]+2*e,2)}, v{WAD} offset:{16384 + ks*3584 + e*224 + u*56}") for e in range(2)]
        return ([(f"ds_read_b128 {vr(XR+4*g,4)}, v{XAD+ks}", 0)] + [(x, 0) for x in tr(0)] +
                [(f"ds_read_b128 {vr(XO[b],4)}, v{XAO+ks}", 1)] + [(x, 2) for x in tr(1)])
    PKS = [(216, 244), (192, 196), (200, 204), (220, 224)]
    vVM = 13
    def kvstore(u, offs=(u0, sK0, sK1, sK2)):
        so = offs[u]
        a(f"buffer_store_dwordx4 {vr(PKS[u][0],4)}, v{vST}, {sr(SWS,4)}, s{so} offen sc1")
        a(f"buffer_store_dwordx4 {vr(PKS[u][1],4)}, v{vST}, {sr(SWS,4)}, s{so} offen offset:1024 sc1")
    LW = [[192, 196, 200, 204], [208, 212, 236, 248]]; LX = [220, 224, 228, 232]
    def lastreads():
        tr = lambda u, ks: [(f"ds_read_b64_tr_b16 {vr(LW[u][ks]+2*e,2)}, v{WAD} offset:{16384 + ks*3584 + e*224 + u*56}") for e in range(2)]
        r = []
        for ks in range(4): r += [(f"ds_read_b128 {vr(XR+4*(24+ks),4)}, v{XAD+ks}", ("l", 0, ks))] + [(x, ("l", 0, ks)) for x in tr(0, ks)]
        for ks in range(4): r += [(f"ds_read_b128 {vr(LX[ks],4)}, v{XAO+ks}", ("l", 1, ks))]
        for ks in range(4): r += [(x, ("l", 2, ks)) for x in tr(1, ks)]
        return r
    for ty in "KV":
        a.label("L_1a_" + ty)
        if ty == "V":
            a(f"s_add_u32 s{u0}, s{u0}, 2048\nv_mov_b32 v{vST}, v{vL16}")
            a(f"v_add_u32 v{vVM}, 4, v{vN}\nv_lshrrev_b32 v{vVM}, 5, v{vVM}\nv_add_u32 v{vVM}, -1, v{vVM}")
        a(f"s_xor_b32 s{sK0}, s{u0}, 4096\ns_add_u32 s{sK1}, s{u0}, 262144\ns_add_u32 s{sK2}, s{sK0}, 262144")
        st(1)
        a("s_barrier")
        st(2)
        lg = Ctr(a, "lgkmcnt", 15)
        def rd1a(g, lo, hi):
            for x, k in reads1a(g)[lo:hi]:
                a(x); lg.issue((g, k))
        lr = lastreads()
        def rdl(n):
            for x, k in lr[:n]:
                a(x); lg.issue(k)
            del lr[:n]
        def mf(u, X, W, C):
            D = vr(ACC[u], 16)
            a(f"v_mfma_f32_32x32x16_bf16 {D}, {vr(X,4)}, {vr(W,4)}, {C or D}" if ty == "V" else f"v_mfma_f32_32x32x16_bf16 {D}, {vr(W,4)}, {vr(X,4)}, {C or D}")
        rd1a(0, 0, 6)
        for g in range(24):
            b = g & 1
            edge = (g + 1) & 3 == 0
            cut = [0, 0, 0, 4, 6] if edge else [0, 3, 6, 6, 6]
            for u in range(4):
                if edge and u == 2:
                    c = (g + 1) >> 2
                    lg.wait_all()
                    d = R_SLOT if c % 3 else -2 * R_SLOT
                    if c == 6:
                        get_nonce(True)
                        for r in (XAD + 1, XAD + 2, XAD + 3, XAO + 1, XAO + 2, XAO + 3): a(f"v_add_u32 v{r}, {d & 0xffffffff}, v{r}")
                    for r in (XAD, WAD, XAO): a(f"v_add_u32 v{r}, {d & 0xffffffff}, v{r}")
                    a("s_barrier")
                    if c in (3, 6): st(2 + c // 3)
                lg.wait([(g, u)])
                mf(u, XO[b] if u & 1 else XR + 4*g, WF[b][u >> 1], "0" if g == 0 else None)
                if g + 1 < 24: rd1a(g + 1, cut[u], cut[u+1])
                elif u >= 2: rdl(6)
                if edge and u == 3 and c < 6:
                    for r in (XAD + 1, XAO + 1): a(f"v_add_u32 v{r}, {d & 0xffffffff}, v{r}")
                    if c == 4: a(f"buffer_load_dwordx2 {vr(vNON,2)}, v{vZ}, {sr(S4,4)}, 0 offen sc1")
                if g >= 4 and g & 3 == 0 and u >= 2:
                    for r in (XAD + u, XAO + u): a(f"v_add_u32 v{r}, {d & 0xffffffff}, v{r}")
        def epi(u):
            D = ACC[u]; P = [PKS[u][r >> 2] + (r & 3) for r in range(8)]
            o = []
            for r in range(8):
                o.append(f"v_cvt_pk_bf16_f32 v{P[r]}, v{D+2*r}, v{D+2*r+1}")
                if ty == "V": o.append(f"v_and_or_b32 v{P[r]}, v{P[r]}, v{vVM}, v{vVC}")
            if ty == "K": o += [f"v_and_b32 v{P[6]}, v{vPA}, v{P[6]}", f"v_and_b32 v{P[7]}, v{vPA}, v{P[7]}"]
            def stf():
                L = lab("L_nost")
                a(f"s_cbranch_scc1 {L}"); kvstore(u); a.label(L)
            return o + [stf]
        a(f"s_cmp_lt_u32 s{sG16}, 8")
        pend = []
        n = 0
        for u in range(4):
            for ks in range(4):
                lg.wait([("l", u, ks)])
                mf(u, LX[ks] if u & 1 else XR + 4*(24+ks), LW[u >> 1][ks], None)
                rdl(3)
                n += 1
                k = 0
                while pend and pend[0][0] <= n and k < 5:
                    x = pend.pop(0)[1]; x() if callable(x) else a(x); k += 1
            pend += [(n + 3, x) for x in epi(u)]
        st(5)
        assert not lr
        last = len(epi(3))
        done = 0
        while pend:
            if len(pend) == last and done < 12: a(f"s_nop {11 - done}")
            x = pend.pop(0)[1]; x() if callable(x) else a(x); done += 1
        if ty == "K": a("s_branch L_1a_join")
    a.label("L_1a_join")
    lg = Ctr(a, "lgkmcnt", 15)
    def sendflag():
        a(f"v_mov_b32 v{T}, {L_CNT}\nv_mov_b32 v{T+1}, 1")
        a("s_waitcnt vmcnt(0)")
        a(f"s_mov_b64 exec, 1\nds_add_rtn_u32 v{T+1}, v{T}, v{T+1}\ns_waitcnt lgkmcnt(0)")
        lg.q = []
        a(f"v_cmp_eq_u32 vcc, 3, v{T+1}\ns_cbranch_vccz L_noflag")
        a(f"buffer_store_dwordx2 {vr(vNON,2)}, v{vZ}, {sr(SWS,4)}, s{sFK} offen sc1")
        a.label("L_noflag")
        a("s_mov_b64 exec, -1")
        st(7)
    a("s_barrier")
    st(6)
    NB = 8; LOOK = 6
    QBUF = [160 + 4*i for i in range(NB)]
    def flagpoint():
        q = list(lg.q)
        a(f"s_cmp_lt_u32 s{sG16}, 8\ns_cbranch_scc1 L_noflag2")
        sendflag()
        a.label("L_noflag2")
        lg.q = q
        a("s_barrier")
    def qpass(D, off, fat=-1):
        def rdq(g):
            for e in range(2):
                a(f"ds_read_b64_tr_b16 {vr(QBUF[g % NB]+2*e,2)}, v{WQD} offset:{off + g*1024 + e*256}"); lg.issue(g)
        for g in range(LOOK): rdq(g)
        for g in range(28):
            if g == fat: flagpoint()
            lg.wait(g)
            a(f"v_mfma_f32_32x32x16_bf16 {vr(D,16)}, {vr(QBUF[g % NB],4)}, {vr(XR+4*g,4)}, {'0' if g == 0 else vr(D,16)}")
            if g + LOOK < 28: rdq(g + LOOK)
    D = ACC[1]
    qpass(D, 0, FLAGAT)
    if "fine" in OPT: st(1)
    if FLAGAT >= 28: flagpoint()
    a("s_nop 5")
    a(f"s_lshl_b32 s{t0}, s{sKQ}, 8\ns_add_u32 s{t0}, s{t0}, {L_G}")
    a(f"v_lshl_add_u32 v{DAC+2}, v{vN}, 3, s{t0}")
    a(f"s_lshl_b32 s{t0}, s{sKQ}, 11\ns_add_u32 s{t0}, s{t0}, {L_QX}")
    a(f"v_add_u32 v{DAC+3}, s{t0}, v{vL16}")
    a(f"v_mov_b32 v{T+2}, 0x{QSCALE:08x}")
    a(f"v_mov_b32 v{DAC}, v{D+12}")
    P = 208
    for r in range(0, 16, 2): a(f"v_pk_mul_f32 {vr(D+r,2)}, {vr(D+r,2)}, {vr(T+2,2)} op_sel_hi:[1,0]")
    for r in range(8): a(f"v_cvt_pk_bf16_f32 v{P+r}, v{D+2*r}, v{D+2*r+1}")
    a(f"s_mov_b32 exec_lo, 0\nv_mov_b32 v{P+6}, 0\nv_mov_b32 v{P+7}, 0\ns_mov_b64 exec, -1")
    a(f"ds_write_b128 v{DAC+3}, {vr(P,4)}")
    a(f"ds_write_b128 v{DAC+3}, {vr(P+4,4)} offset:1024")
    for x in [f"v_cvt_pk_bf16_f32 v{DAC}, v{DAC}, v{DAC}", f"v_lshlrev_b32 v{DAC}, 16, v{DAC}",
              f"v_mul_f32 v{DAC}, 0x{LOG2E ^ 0x80000000:08x}, v{DAC}", f"v_exp_f32 v{DAC}, v{DAC}", "s_nop 0",
              f"v_add_f32 v{DAC}, 1.0, v{DAC}", f"v_rcp_f32 v{DAC}, v{DAC}", "s_nop 0",
              f"v_cvt_pk_bf16_f32 v{DAC}, v{DAC}, v{DAC}", f"v_lshlrev_b32 v{DAC}, 16, v{DAC}",
              f"v_sub_f32 v{DAC+1}, 1.0, v{DAC}", f"v_cvt_pk_bf16_f32 v{DAC+1}, v{DAC+1}, v{DAC+1}", f"v_lshlrev_b32 v{DAC+1}, 16, v{DAC+1}",
              "s_mov_b32 exec_lo, 0", f"ds_write_b64 v{DAC+2}, {vr(DAC,2)}", "s_mov_b64 exec, -1"]: a(x)
    a("s_waitcnt lgkmcnt(0)")
    a("s_barrier")
    if "fine" in OPT: st(4)
    qpass(D, L_WQA - L_WQB)
    for x in low_setup: a(x)
    for r in range(0, 16, 2): a(f"v_pk_mul_f32 {vr(D+r,2)}, {vr(D+r,2)}, {vr(T+2,2)} op_sel_hi:[1,0]")
    for r in range(8): a(f"v_cvt_pk_bf16_f32 v{QA+r}, v{D+2*r}, v{D+2*r+1}")
    a(f"v_and_b32 v{QA+6}, v{vPA}, v{QA+6}\nv_and_b32 v{QA+7}, v{vPA}, v{QA+7}")
    for k in range(4): a(f"ds_read_b128 {vr(MASK+4*k,4)}, v{vLA+1} offset:{k*1024}")
    pre_phase2()

    class St: pass
    cur = St()
    def btile(s, q): return dict(key=("B", s), Q=QB[q], O=O[f"B{q}"], mask=False, addr=vBA0, off=L_S[s % 4], s=S[q])
    def atile(i, m, sb): return dict(key=("A", i), Q=QA, O=O["A"], mask=m, addr=vAA, off=i * 4096, s=sb)
    Btiles = [btile(s, q) for s in range(16) for q in range(2)]
    At = [atile(i, i in (0, 8), [S[0], RED, S[1]][i % 3]) for i in range(9)]
    seqC = []
    for s in range(16):
        seqC += Btiles[2*s:2*s+2]
        if APOS <= s < APOS + 3: seqC += At[3*(s-APOS):3*(s-APOS)+3]
    seqs = [seqC, Btiles]
    FOFF = {"K0": 0, "K1": 1024, "V0": 2048, "V1": 3072}
    def load(lg, f, t):
        a(f"ds_read_b128 {vr(FR[f],4)}, v{t['addr']} offset:{t['off'] + FOFF[f]}"); lg.issue(f)
    def reload_after(lg, f, tiles, i):
        if i + 1 < len(tiles) and tiles[i+1]["key"] != tiles[i]["key"]: load(lg, f, tiles[i+1])

    def dmaB(s):
        return [f"s_add_u32 m0, s{sM0}, {L_S[s % 4]}\ns_add_u32 s{sOFF}, s{sOFF}, 4096",
                f"buffer_load_dwordx4 v{vDB}, {sr(SWS,4)}, s{sOFF} offen sc1 lds",
                f"buffer_load_dwordx4 v{vDB}, {sr(SWS,4)}, s{sOFF} offen offset:1024 sc1 lds"]
    def dmaA(i):
        return [f"s_add_u32 m0, s{sM0}, {L_AREG + i*16384}" + (f"\nv_add_u32 v{vDA}, 16384, v{vDA}" if i else "\ns_nop 0"),
                f"buffer_load_dwordx4 v{vDA}, {sr(SKA,4)}, 0 offen sc1 lds",
                f"buffer_load_dwordx4 v{vDA}, {sr(SKA,4)}, 0 offen offset:1024 sc1 lds"]
    def qk(lg, tiles, i, j):
        t = tiles[i]; D = vr(t["s"], 16)
        lg.wait([f"K{j}"] + (["M"] if t["mask"] else []))
        C = D if j == 1 else (vr(MASK, 16) if t["mask"] else "0")
        a(f"v_mfma_f32_32x32x16_bf16 {D}, {vr(FR[f'K{j}'],4)}, {vr(t['Q']+4*j,4)}, {C}")
        reload_after(lg, f"K{j}", tiles, i)
    def pv(lg, tiles, i, j, merge=()):
        t = tiles[i]
        lg.wait([f"V{j}"] + list(merge))
        a(f"v_smfmac_f32_32x32x32_bf16 {vr(t['O'],16)}, {vr(FR[f'V{j}'],4)}, {vr(t['s']+8*j,8)}, v{vIDX}")
        reload_after(lg, f"V{j}", tiles, i)
    def slot(lg, tiles, i, extra=(), late=()):
        s0 = tiles[i]["s"]
        at = {r: [] for r in range(16)}
        xp = (1, 3, 4, 6, 7, 9, 10, 11, 13, 14, 15)
        for k, x in enumerate(extra): at[xp[(2 * k + 1) * len(xp) // (2 * len(extra))]].append(x)
        for k, x in enumerate(late): at[13 + k * 3 // len(late)].append(x)
        isB1 = tiles[i]["key"][0] == "B" and tiles[i]["Q"] == QB[1]
        for r in range(16):
            if r == 2 and i > 0: pv(lg, tiles, i - 1, 1, merge=("K0", "K1") if isB1 else ())
            if r == 5 and i + 1 < len(tiles): qk(lg, tiles, i + 1, 0)
            if r == 8 and i + 1 < len(tiles): qk(lg, tiles, i + 1, 1)
            if r == 12: pv(lg, tiles, i, 0)
            for x in at[r]: x() if callable(x) else a(x)
            a(f"v_exp_f32 v{s0+r}, v{s0+r}")
    def finalize(tag, R, n, L, G, vP, sDst, pk):
        o = [f"v_rcp_f32 v{T+1}, v{L}", f"v_med3_f32 v{T+2}, v{L}, v{vLO}, s{sHI}", f"v_mul_f32 v{T}, v{T+1}, v{G}"]
        if pk: o += [f"v_pk_mul_f32 {vr(R+r,2)}, {vr(R+r,2)}, {vr(T,2)} op_sel_hi:[1,0]" for r in range(0, n, 2)]
        else: o += [f"v_mul_f32 v{R+r}, v{R+r}, v{T}" for r in range(n)]
        o += [f"v_mul_f32 v{T+1}, v{R}, v{R+1}"] + [f"v_fma_f32 v{T+1}, v{R+r}, v{R+r+1}, v{T+1}" for r in range(2, n, 2)]
        o += [f"v_fma_f32 v{T+1}, v{T+1}, 0, v{L}", f"v_cmp_neq_f32 vcc, v{T+1}, v{T+2}"]
        def br():
            a(f"s_cbranch_vccnz L_slow{tag}"); a.label(f"L_fin{tag}")
        o.append(br)
        o += [f"v_cvt_pk_bf16_f32 v{R+r}, v{R+2*r}, v{R+2*r+1}" for r in range(n // 2)]
        o += [f"v_and_b32 v{R+n//2-2}, v{vP}, v{R+n//2-2}", f"v_and_b32 v{R+n//2-1}, v{vP}, v{R+n//2-1}"]
        o += [f"buffer_store_dwordx4 {vr(R+4*j,4)}, v{vL16}, {sr(SWS,4)}, s{sDst} offen offset:{j*1024} sc1" for j in range(n // 8)]
        return o
    def pkadd(D, A_, B_, n=8): return [f"v_pk_add_f32 {vr(D+r,2)}, {vr(A_+r,2)}, {vr(B_+r,2)}" for r in range(0, n, 2)]
    def dmaW(n, base, SR):
        return f"s_add_u32 m0, s{sWM0}, {base + n*8192}\ns_mov_b32 s{t1}, {n*64*896}\nbuffer_load_dwordx4 v{vDW}, {sr(SR,4)}, s{t1} offen lds"
    DROP = OPT.get("drop", "").split(",")
    def V(x, tag):
        def f():
            if tag in DROP: return
            a(x); cur.vm.issue(tag)
        return f
    def Lg(x, tag):
        def f():
            if tag in DROP: return
            a(x); cur.lg.issue(tag)
        return f
    def trio(d, tag): return [d[0], V(d[1], tag), V(d[2], tag)]
    OFA = 16
    sOA2 = u1
    P = APOS
    OA = O["A"]
    def mk():
        return {(s, q): [] for s in range(16) for q in range(5)}
    sched = mk()
    for s in range(1, 13): sched[s, 0] += trio(dmaB(s + 3), f"B{s+3}")
    AC = int(OPT.get("ac", 5))
    if P - AC >= 3:
        for i in range(3): sched[AC + i, 1] += trio(dmaA(i), f"A{i}")
    else:
        sched[AC, 0] += trio(dmaA(0), "A0"); sched[AC, 1] += trio(dmaA(1), "A1"); sched[AC + 1, 1] += trio(dmaA(2), "A2")
    POS = int(OPT.get("pos", P - 1))
    sched[POS, 1] += [V(f"buffer_store_dwordx4 {vr(PO,4)}, v{vL16}, {sr(SWS,4)}, s{so} offen sc1", "po") for so in (sOA, sOB)]
    sched[POS+2, 0] += [V(f"s_mov_b64 exec, s[{sW0}:{sW0+1}]\nbuffer_store_dwordx2 {vr(vNON,2)}, v{vZ}, {sr(SWS,4)}, s{sFA} offen sc1\ns_mov_b64 exec, -1", "f2")]
    def chk():
        cur.vm.wait("fl")
        if "fl" not in DROP: a(f"v_cmp_ne_u64 vcc, s[{sNON}:{sNON+1}], {vr(vLA+2,2)}\ns_cbranch_vccnz L_pflag_spin")
        a.label("L_pflag_ok")
    sched[12, 0] = [f"v_and_b32 v{vFL}, 15, v0", f"v_lshlrev_b32 v{vFL}, 7, v{vFL}",
                    V(f"buffer_load_dwordx2 {vr(vLA+2,2)}, v{vFL}, {sr(SWS,4)}, s{sFO} offen sc1", "fl")] + sched[12, 0]
    wo = [V(dmaW(k, L_WOB, S2), "wob") for k in (3, 4, 5, 6)] + [V(dmaW(k, L_WOA, S1), "woa") for k in range(7)]
    for (s_, q_), n in [((P+2, 1), 2), ((P+3, 1), 2), ((P+4, 1), 2), ((P+5, 1), 2), ((12, 1) if P < 7 else (13, 0), 3)] if P < 8 else [((10, 1), 2), ((11, 1), 2), ((12, 1), 3), ((13, 0), 4)]:
        sched[s_, q_] += wo[:n]; wo = wo[n:]
    assert not wo
    ol = [V(f"buffer_load_dwordx4 {vr(OFA+4*kk,4)}, v{vL16}, {sr(SWS,4)}, s{sOO if kk < 4 else sOA2} offen offset:{(kk&3)*1024} sc1", "ofa") for kk in range(8)]
    if P < 8:
        sched[13, 1] += [chk] + ol[0:2]; sched[14, 0] += ol[2:4] + [f"s_add_u32 s{sOA2}, s{sOO}, 4096"]; sched[14, 1] += ol[4:6]; sched[15, 0] += ol[6:8]
    else:
        sched[13, 1] += [chk]; sched[14, 0] += ol[0:2]; sched[14, 1] += ol[2:4] + [f"s_add_u32 s{sOA2}, s{sOO}, 4096"] + ol[4:5]; sched[15, 0] += ol[5:8]
    sched[15, 0] += [f"s_mul_i32 s{t0}, s{sQH}, 24576", f"v_add_u32 v{vBW}, s{t0}, v{vL16}",
                     f"s_add_u32 s{t0}, s{t0}, 1536", f"v_lshl_add_u32 v{vBL}, v{vN}, 4, s{t0}",
                     f"s_and_b32 s{t0}, s{sWM0}, 0x1800\ns_add_u32 s{t0}, s{t0}, {L_WOB + 16384}", f"v_lshl_add_u32 v{vBX}, v0, 2, s{t0}"]
    px = [mk(), mk()]
    def held(us):
        def f_():
            L = lab("L_held")
            a(f"s_cmp_lg_u32 s{sAS}, 0\ns_cbranch_scc1 {L}")
            for u in us: kvstore(u, (u0, sK0, sK1, sK2))
            a.label(L)
        return f_
    sched[0, 0] += [held([0]), held([1])]; sched[0, 1] += [held([2]), held([3])]
    sched[2, 0] += [V(f"s_mov_b64 exec, s[{sQM}:{sQM+1}]\nbuffer_store_dwordx2 {vr(vNON,2)}, v{vZ}, {sr(SWS,4)}, s{sFK} offen sc1\ns_mov_b64 exec, -1", "f1")]
    def chka():
        cur.vm.wait("af")
        if "af" not in DROP: a(f"v_cmp_ne_u64 vcc, s[{sNON}:{sNON+1}], {vr(vLA+2,2)}\ns_cbranch_vccnz L_aflag_spin")
        a.label("L_aflag_ok")
    sched[AC-1, 0] = [V(f"buffer_load_dwordx2 {vr(vLA+2,2)}, v{vAF}, {sr(SWS,4)}, s{sFC} offen sc1", "af")] + sched[AC-1, 0]
    sched[AC, 0] = [chka] + sched[AC, 0]
    rdmask = lambda m: [Lg(f"ds_read_b128 {vr(MASK+4*k,4)}, v{vLA+1} offset:{m*4096 + k*1024}", "M") for k in range(4)]
    px[0][P, 3] += rdmask(1)
    f = finalize("A", OA, 16, vLA, vGA, vPA, sOA, False)
    if "fin" in DROP: f = [lambda: a.label("L_finA")] + [f"v_mov_b32 v{OA+r}, 0" for r in range(8)] + f[-2:]
    f = [f"v_mov_b32 v{vLA}, v{OA+12}\nv_mov_b32 v{T}, v{OA+12}", "s_nop 0", f"v_permlane32_swap_b32 v{T}, v{vLA}"] + f
    h1 = len(f) if "fin1" in OPT else len(f) // 2
    px[0][P + 3, 1] += f[:h1]; px[0][P + 4, 0] += f[h1:]
    for hf in range(2):
        px[hf][P + PFAT, 1] += [f"s_lshr_b32 s{t0}, s2, 3\ns_lshl_b32 s{t0}, s{t0}, 2\ns_add_u32 s{t0}, s{t0}, s{sKQ}\ns_mul_i32 s{t0}, s{t0}, {49*64}",
                             f"v_min_u32 v{T}, 24, v0", f"v_lshlrev_b32 v{T}, 7, v{T}", V(f"buffer_load_dword v{vFL}, v{T}, {sr([S1, S2][hf],4)}, s{t0} offen", "pf")]
    def merge(x, y):
        o = [((k + 0.5) / len(x), 0, k, v) for k, v in enumerate(x)] + [((k + 0.5) / len(y), 1, k, v) for k, v in enumerate(y)]
        return [v for *_, v in sorted(o, key=lambda t: t[:3])]
    def top(s):
        if s == 1 and NPRE < 3:
            n = cur.vm.wait("B2", emit=False)
            L1, L2 = lab("L_w"), lab("L_w")
            a(f"s_cmp_lg_u32 s{sAS}, 0\ns_cbranch_scc1 {L1}\ns_waitcnt vmcnt({n + 8})\ns_branch {L2}")
            a.label(L1); a(f"s_waitcnt vmcnt({n})"); a.label(L2)
        cur.vm.wait(f"B{s+1}")
        if s == P: cur.vm.wait("A1")
        if s == P + 1: cur.vm.wait("A2")
        if s == POS + 2: cur.vm.wait("po")
        if s == P + 2: cur.lg.wait("M")
        if s == 15: cur.vm.wait("woa")
        a("s_barrier")
        st.step(s + (1 if "early" in OPT else -1))
        if s == P: st(9)
        if s == 12: st(10)
        if "fine" in OPT and s in (0, 1): st(2 + s)
    a.label("L_phase2")
    cur.lg = Ctr(a, "lgkmcnt", 15); cur.vm = Ctr(a, "vmcnt", 63)
    for k in range(1, NPRE):
        for _ in range(8): cur.vm.issue(f"B{k}")
    st(8)
    a("s_barrier")
    tiles = seqs[1]
    for f_ in ("K0", "K1", "V0", "V1"): load(cur.lg, f_, tiles[0])
    for k in range(NPRE, 4):
        for x in trio(dmaB(k), f"B{k}"): x() if callable(x) else a(x)
    qk(cur.lg, tiles, 0, 0); qk(cur.lg, tiles, 0, 1)
    a("s_nop 9")
    for s in range(P):
        top(s)
        for q in range(2): slot(cur.lg, tiles, 2*s + q, sched[s, q])
    a(f"s_cmp_lg_u32 s{sQH}, 0\ns_cbranch_scc1 L_pathL")
    states = []
    JOIN = P + 5
    lg0, vm0 = cur.lg, cur.vm
    for hf in range(2):
        if hf: a.label("L_pathL")
        tiles = seqs[hf]
        cur.lg, cur.vm = lg0.clone(a), vm0.clone(a)
        idx = 2 * P
        for s in range(P, JOIN):
            top(s)
            for q in range(5 if (hf == 0 and P <= s < P + 3) else 2):
                slot(cur.lg, tiles, idx, merge(sched[s, q], px[hf][s, q])); idx += 1
        states.append((list(cur.lg.q), list(cur.vm.q)))
        if hf == 0: a("s_branch L_B")
    assert states[0] == states[1], states
    a.label("L_B")
    for s in range(JOIN, 16):
        top(s)
        slot(cur.lg, tiles, idx, sched[s, 0]); idx += 1
        if s < 15:
            slot(cur.lg, tiles, idx, sched[s, 1]); idx += 1
    assert idx == len(tiles) - 1
    lg = cur.lg
    RB, LB = 160, 184
    ACC3 = [128, 144]; W3 = [72, 80, 88, 96]; OFB = 192
    vT3 = [2, 3]; vT3b = [4, 5]; vOUT = 8
    addr3 = [f"v_bfe_u32 v{T}, v0, 2, 2", f"v_lshlrev_b32 v{T}, 7, v{T}", f"v_bfe_u32 v{T+1}, v0, 4, 1", f"v_lshl_add_u32 v{T}, v{T+1}, 5, v{T}",
             f"v_and_b32 v{T+1}, 3, v0", f"v_lshl_add_u32 v{T}, v{T+1}, 3, v{T}", f"v_bfe_u32 v{T+1}, v0, 3, 1", f"v_lshl_add_u32 v{T}, v{T+1}, 6, v{T}",
             f"s_mul_i32 s{t0}, s{sKQ}, 14336", f"s_add_u32 s{t0}, s{t0}, {L_WOA}",
             f"v_add_u32 v{vT3b[0]}, s{t0}, v{T}", f"v_xor_b32 v{vT3b[1]}, 64, v{vT3b[0]}"]
    addr3b = [f"v_lshrrev_b32 v{T+1}, 5, v0"] + [f"v_lshl_add_u32 v{vT3[c]}, v{T+1}, 9, v{vT3b[c]}" for c in range(2)]
    addr3b += [f"v_mul_u32_u24 v{vOUT}, 896, v{vN}", f"v_lshl_add_u32 v{vOUT}, v{T+1}, 4, v{vOUT}"]
    def oa_max():
        a(f"v_max3_u32 v{T+3}, v{OFA}, v{OFA+1}, v{OFA+2}")
        for r in range(3, 31, 2): a(f"v_max3_u32 v{T+3}, v{T+3}, v{OFA+r}, v{OFA+r+1}")
        a(f"v_max_u32 v{T+3}, v{T+3}, v{OFA+31}")
    for kq in range(1, 4):
        a(f"s_cmp_eq_u32 s{sKQ}, {kq}\ns_cbranch_scc1 L_tail{kq}")
    lg0 = lg
    for kq in range(4):
        if kq: a.label(f"L_tail{kq}")
        lg = lg0.clone(a)
        def wr(o):
            sl = kq if kq < o else kq - 1
            return [f"ds_write_b128 v{vBW}, {vr(O['B0']+8*o+4*k,4)} offset:{(o*3+sl)*2048 + k*1024}" for k in range(2)]
        wl = lambda: [f"ds_write_b32 v{vBX}, v{O['B0']+8*kq+4}"]
        ex = [x for o in range(2) if o != kq for x in wr(o)] + (wl() if kq == 1 else [])
        slot(lg, tiles, idx, [], ex)
        a("s_nop 1")
        pv(lg, tiles, len(tiles) - 1, 1)
        if kq == 0: st(11)
        for x in addr3: a(x)
        for x in [x for o in (2, 3) if o != kq for x in wr(o)] + (wl() if kq == 3 else []): a(x)
        for x in addr3b: a(x)
        a("s_waitcnt vmcnt(0)")
        oa_max()
        a("s_waitcnt lgkmcnt(0)")
        a("s_barrier")
        own = O['B0'] + 8*kq
        wlate = [dmaW(n, L_WOB, S2) for n in range(3)]
        for sl in range(3):
            for k in range(2):
                a(f"ds_read_b128 {vr(RB+8*sl+4*k,4)}, v{vBW} offset:{(kq*3+sl)*2048 + k*1024}")
        if kq & 1:
            for x in wlate: a(x)
            a("s_waitcnt lgkmcnt(4)")
            for x in pkadd(RB, RB, own): a(x)
            a("s_waitcnt lgkmcnt(0)")
            for x in pkadd(RB+8, RB+8, RB+16): a(x)
            for r in (4, 0, 2, 6):
                a(f"v_pk_add_f32 {vr(RB+r,2)}, {vr(RB+r,2)}, {vr(RB+8+r,2)}")
                if r == 4: a(f"v_mov_b32 v{LB}, v{RB+4}\nv_mov_b32 v{LB+1}, v{RB+4}")
            a(f"v_permlane32_swap_b32 v{LB+1}, v{LB}")
        else:
            for sl in range(3): a(f"ds_read_b32 v{LB+sl}, v{vBL} offset:{((kq+1)*3+sl)*2048}")
            a(f"v_or_b32 v{vBX}, 128, v{vBX}")
            a(f"ds_read_b32 v{LB+3}, v{vBX}")
            for x in wlate[:2]: a(x)
            a("s_waitcnt lgkmcnt(8)")
            for x in pkadd(RB, RB, own): a(x)
            a("s_waitcnt lgkmcnt(4)")
            for x in pkadd(RB+8, RB+8, RB+16) + pkadd(RB, RB, RB+8): a(x)
            a("s_waitcnt lgkmcnt(0)")
            a(wlate[2])
            a(f"v_add_f32 v{LB}, v{LB}, v{LB+3}\nv_add_f32 v{LB+1}, v{LB+1}, v{LB+2}\nv_add_f32 v{LB}, v{LB}, v{LB+1}")
        if kq < 3: a("s_branch L_tail_join")
    a.label("L_tail_join")
    def reads3(i):
        kk = i & 7; hd, j = kk >> 1, kk & 1
        for ct in range(2):
            for e in range(2):
                a(f"ds_read_b64_tr_b16 {vr(W3[i & 3]+4*ct+2*e,2)}, v{vT3b[ct] if (j == 1 and e == 1) else vT3[ct]} offset:{(28*hd+16*j+8*e)*128}")
    def oload(OF, kk):
        a(f"buffer_load_dwordx4 {vr(OF+4*kk,4)}, v{vL16}, {sr(SWS,4)}, s{sOO if kk < 4 else u0} offen offset:{(kk&3)*1024} sc1")
    def oloads(OF, lo):
        for kk in range(lo, 8): oload(OF, kk)
    for i in range(3): reads3(i)
    for x in finalize("B", RB, 8, LB, vGB, vPB, sOB, True):
        x() if callable(x) else a(x)
    a(f"s_cmp_eq_u32 s{sCB}, 7")
    a("s_cbranch_scc1 L_fini")
    st(12)
    a(f"s_mov_b32 s{sCNT}, {SPIN_MAX}")
    a.label("L_oa_chk")
    a(f"v_cmp_eq_u32 vcc, -1, v{T+3}\ns_cbranch_vccnz L_oa_retry")
    a.label("L_oa_ok")
    a(f"s_add_u32 s{sOO}, s{sOO}, 32768\ns_add_u32 s{u0}, s{sOO}, 4096\ns_mov_b32 s{sCNT}, {SPIN_MAX}")
    nob = 0
    for i in range(16):
        kk = i & 7
        OF = OFA if i < 8 else OFB
        if i == 8: st(13)
        if i >= 8:
            assert nob == 8
            a.label(f"L_ob{kk}")
            a(f"s_waitcnt vmcnt({7-kk})")
            f = OFB + 4*kk
            a(f"v_max3_u32 v{T}, v{f}, v{f+1}, v{f+2}\nv_max_u32 v{T}, v{T}, v{f+3}\nv_cmp_eq_u32 vcc, -1, v{T}")
            a(f"s_cbranch_vccnz L_retry{kk}")
            a.label(f"L_ob{kk}_go")
        a(f"s_waitcnt lgkmcnt({min(8, 4*(15-i))})")
        for ct in range(2):
            D = vr(ACC3[ct], 16)
            a(f"v_mfma_f32_32x32x16_bf16 {D}, {vr(W3[i&3]+4*ct,4)}, {vr(OF+4*kk,4)}, {'0' if i == 0 else D}")
        if i == 5:
            for r in vT3 + vT3b: a(f"v_add_u32 v{r}, {(L_WOB - L_WOA) & 0xffffffff}, v{r}")
            a(f"s_waitcnt vmcnt({1 + nob})")
            a("s_barrier")
        if i + 3 < 16: reads3(i + 3)
        if OBAT <= i < 8:
            for _ in range(OBN if i < 7 else 8):
                if nob < 8:
                    oload(OFB, nob); nob += 1
    st(14)
    for kq in range(1, 4):
        a(f"s_cmp_eq_u32 s{sKQ}, {kq}\ns_cbranch_scc1 L_fin3_{kq}")
    R = 16
    for kq in range(4):
        if kq: a.label(f"L_fin3_{kq}")
        a("s_nop 9")
        for o in range(4):
            if o == kq: continue
            sl = kq if kq < o else kq - 1
            for k in range(2):
                a(f"ds_write_b128 v{vBW}, {vr(ACC3[0]+8*o+4*k,4)} offset:{(o*3+sl)*2048 + k*1024}")
        a("s_waitcnt lgkmcnt(0)")
        a("s_barrier")
        for sl in range(3):
            for k in range(2):
                a(f"ds_read_b128 {vr(R+8*sl+4*k,4)}, v{vBW} offset:{(kq*3+sl)*2048 + k*1024}")
        a("s_waitcnt lgkmcnt(4)")
        for x in pkadd(R, R, ACC3[0]+8*kq): a(x)
        if kq < 3: a("s_branch L_fin3_join")
    a.label("L_fin3_join")
    a("s_waitcnt lgkmcnt(0)")
    for x in pkadd(R+8, R+8, R+16) + pkadd(R, R, R+8): a(x)
    for r in range(4): a(f"v_cvt_pk_bf16_f32 v{R+8+r}, v{R+2*r}, v{R+2*r+1}")
    a("s_nop 1")
    a(f"v_permlane32_swap_b32 v{R+8}, v{R+10}\nv_permlane32_swap_b32 v{R+9}, v{R+11}")
    a(f"buffer_store_dwordx4 {vr(R+8,4)}, v{vOUT}, {sr(S3,4)}, s{sOUT} offen {OST}")
    a.label("L_fini")
    a("s_waitcnt vmcnt(0)")
    st.dump()
    a.label("L_end")
    a("s_endpgm")
    a.label("L_pflag_spin")
    poll(vFL, f"s{sFO}", None, vLA + 2)
    a("s_branch L_pflag_ok")
    a.label("L_aflag_spin")
    poll(vAF, f"s{sFC}", None, vLA + 2)
    a("s_branch L_aflag_ok")
    a.label("L_oa_retry")
    a(f"s_sub_u32 s{sCNT}, s{sCNT}, 1\ns_cbranch_scc1 L_oa_ok")
    a(f"s_add_u32 s{u0}, s{sOO}, 4096")
    oloads(OFA, 0)
    a("s_waitcnt vmcnt(0)")
    oa_max()
    a("s_branch L_oa_chk")
    for kk in range(8):
        a.label(f"L_retry{kk}")
        a(f"s_sub_u32 s{sCNT}, s{sCNT}, 1\ns_cbranch_scc1 L_giveup{kk}")
        a(f"s_waitcnt vmcnt(0)\ns_sleep {OPT.get('rsleep', 2)}")
        oloads(OFB, kk)
        a(f"s_branch L_ob{kk}")
        a.label(f"L_giveup{kk}")
        a(f"s_mov_b32 s{sCNT}, 0\ns_branch L_ob{kk}_go")

    def slow(tag, R, L, G, sTile, mat):
        SS, OO, KF, VF, Q, M, DL, NI = 192, 208, 224, 232, 240, 248, 249, 251
        sT, sT1, sKO, sT0 = t0, t1, u0, u1
        SK = SKA if mat == 0 else SWS
        a.label(f"L_slow{tag}")
        if mat == 0:
            for r in range(8): a(f"v_mov_b32 v{Q+r}, v{QA+r}")
            a(f"s_sub_i32 s{sT0}, s{sTile}, 8\ns_max_i32 s{sT0}, s{sT0}, 0\ns_add_u32 s{sT1}, s{sTile}, 1")
        else:
            for r in range(8): a(f"v_mov_b32 v{Q+r}, v{QB[0]+r}")
            a(f"s_bitcmp1_b32 s{sKQ}, 1\ns_cbranch_scc0 L_slowB_q")
            for r in range(8): a(f"v_mov_b32 v{Q+r}, v{QB[1]+r}")
            a.label("L_slowB_q")
            a(f"s_mov_b32 s{sT0}, 0\ns_mov_b32 s{sT1}, 64")
        a(f"v_mov_b32 v{M}, 0xff800000\nv_mov_b32 v{NI}, 0xff800000")
        for r in range(16): a(f"v_mov_b32 v{OO+r}, 0")
        for p in range(2):
            a(f"s_mov_b32 s{sT}, s{sT0}")
            a.label(f"L_slow{tag}_p{p}")
            a(f"s_lshl_b32 s{sKO}, s{sT}, 12")
            if mat == 1: a(f"s_add_u32 s{sKO}, s{sKO}, s{sKVB}")
            for j in range(2):
                a(f"buffer_load_dwordx4 {vr(KF+4*j,4)}, v{vL16}, {sr(SK,4)}, s{sKO} offen offset:{j*1024} sc1")
            if p == 1:
                for j in range(2):
                    a(f"buffer_load_dwordx4 {vr(VF+4*j,4)}, v{vL16}, {sr(SK,4)}, s{sKO} offen offset:{2048+j*1024} sc1")
            if mat == 0:
                a(f"s_sub_u32 s{t2}, s{sTile}, s{sT}\ns_lshl_b32 s{t2}, s{t2}, 5")
                a(f"v_lshrrev_b32 v{DL}, 5, v0\nv_lshlrev_b32 v{DL}, 3, v{DL}\nv_sub_u32 v{DL}, v{vN}, v{DL}")
                a(f"v_add_u32 v{DL}, s{t2}, v{DL}")
            a("s_waitcnt vmcnt(0)")
            a(f"v_mfma_f32_32x32x16_bf16 {vr(SS,16)}, {vr(KF,4)}, {vr(Q,4)}, 0")
            a(f"v_mfma_f32_32x32x16_bf16 {vr(SS,16)}, {vr(KF+4,4)}, {vr(Q+4,4)}, {vr(SS,16)}")
            a("s_nop 15")
            if mat == 0:
                for r in range(16):
                    a(f"v_subrev_u32 v{DL+1}, {16*(r>>3)+(r&7)}, v{DL}")
                    a(f"v_cmp_gt_u32 vcc, 0x100, v{DL+1}")
                    a("s_nop 1")
                    a(f"v_cndmask_b32 v{SS+r}, v{NI}, v{SS+r}, vcc")
            if p == 0:
                for r in range(16): a(f"v_max_f32 v{M}, v{M}, v{SS+r}")
            else:
                for r in range(16): a(f"v_sub_f32 v{SS+r}, v{SS+r}, v{M}")
                for r in range(16): a(f"v_exp_f32 v{SS+r}, v{SS+r}")
                a("s_nop 1")
                for j in range(2):
                    a(f"v_smfmac_f32_32x32x32_bf16 {vr(OO,16)}, {vr(VF+4*j,4)}, {vr(SS+8*j,8)}, v{vIDX}")
            a(f"s_add_u32 s{sT}, s{sT}, 1\ns_cmp_lt_u32 s{sT}, s{sT1}")
            a(f"s_cbranch_scc1 L_slow{tag}_p{p}")
            if p == 0:
                a(f"v_mov_b32 v{DL}, v{M}\ns_nop 1\nv_permlane32_swap_b32 v{M}, v{DL}\ns_nop 1\nv_max_f32 v{M}, v{M}, v{DL}")
        a("s_nop 15")
        a(f"v_mov_b32 v{DL}, v{OO+12}\nv_mov_b32 v{L}, v{OO+12}\ns_nop 1")
        a(f"v_permlane32_swap_b32 v{DL}, v{L}\ns_nop 1")
        a(f"v_rcp_f32 v{L}, v{L}\ns_nop 0\nv_mul_f32 v{L}, v{L}, v{G}")
        if mat == 0:
            for r in range(16): a(f"v_mul_f32 v{R+r}, v{OO+r}, v{L}")
            a(f"s_branch L_fin{tag}")
        else:
            a(f"s_bitcmp1_b32 s{sKQ}, 0\ns_cbranch_scc1 L_slow{tag}_odd")
            for r in range(8): a(f"v_mul_f32 v{R+r}, v{OO+r}, v{L}")
            a(f"s_branch L_fin{tag}")
            a.label(f"L_slow{tag}_odd")
            for r in range(8): a(f"v_mul_f32 v{R+r}, v{OO+8+r}, v{L}")
            a(f"s_branch L_fin{tag}")
    slow("A", OA, vLA, vGA, sTAt, 0)
    slow("B", RB, LB, vGB, sTBt, 1)
    a.label("L_code_end")
    return K, 256

def main(out):
    a = Asm()
    hdr = open("cdna_kernels/" + NAME + ".s.ref").read().split("; Override launch")[0]
    a.raw(hdr.rstrip())
    a.raw(f"; @launch grid=(256,1,1) block=(512,1,1) lds={LDS}")
    a.raw('.amdgcn_target "amdgcn-amd-amdhsa--gfx950"')
    a.raw(".text")
    K, v = kernel(a)
    a.raw('.section .rodata,"a"')
    a.raw(".p2align 6")
    a.raw(descriptor(K, v))
    open(out, "w").write(a.text())

if __name__ == "__main__":
    pos = [x for x in sys.argv[1:] if not x.startswith("--")]
    main(pos[0] if pos else "f.s")
```
